```python
import torch

def _softmax(x, axis=-1):
    return torch.softmax(x, dim=axis)
def _gelu(x):
    return torch.nn.functional.gelu(x, approximate="tanh")
def _silu(x):
    return torch.nn.functional.silu(x)
def _sigmoid(x):
    return torch.sigmoid(x)
def _layernorm(x, axis=-1, eps=1e-5):
    m = x.mean(dim=axis, keepdim=True)
    v = x.var(dim=axis, keepdim=True, unbiased=False)
    return (x - m) / torch.sqrt(v + eps)
def _scatter_add(tgt, idx, src, axis=0):
    return tgt.clone().index_add_(axis, idx, src)
def _segment_sum(src, seg, n):
    out = torch.zeros((n,) + src.shape[1:], dtype=src.dtype)
    return out.index_add_(0, seg, src)
def _pad(x, pw):
    flat = tuple(v for pair in reversed(pw) for v in pair)
    return torch.nn.functional.pad(x, flat)

kernel_name = 'recurrent_scan__ssm_conv_s4d__geglu_ffn__prompt'

def setup_inputs():

    _w = (lambda a: (lambda t: t.to(torch.bfloat16) if t.is_floating_point() else t)(torch.as_tensor(a)))
    def _A_setup():
        Bsz, L, D, N = 1, 2048, 576, 128
        return {
            "u": _w((lambda *s: torch.randn(*s, dtype=torch.bfloat16) * 0.05)(Bsz, L, D)),
            "log_A_real": _w((lambda *s: torch.randn(*s, dtype=torch.bfloat16) * 6.4)(D, N) * 0.5),
            "A_imag": _w((lambda *s: torch.randn(*s, dtype=torch.bfloat16) * 0.05)(D, N) * 3.14),
            "C_real": _w((lambda *s: torch.randn(*s, dtype=torch.bfloat16) * 0.05)(D, N) / N ** 0.5),
            "C_imag": _w((lambda *s: torch.randn(*s, dtype=torch.bfloat16) * 0.05)(D, N) / N ** 0.5),
            "log_dt": _w((lambda *s: torch.randn(*s, dtype=torch.bfloat16) * 0.05)(D) * 0.5 - 4.0),
            "D_skip": _w((lambda *s: torch.randn(*s, dtype=torch.bfloat16) * 0.05)(D)),
        }
    _A_in = _A_setup()

    def _B_setup():
        B, S, D, F = 1, 2048, 576, 4608
        return {
            "x": _w((lambda *s: torch.randn(*s, dtype=torch.bfloat16) * 0.05)(B, S, D)),
            "w_gate": _w((lambda *s: torch.randn(*s, dtype=torch.bfloat16) * 0.05)(D, F)),
            "w_up": _w((lambda *s: torch.randn(*s, dtype=torch.bfloat16) * 0.05)(D, F)),
            "w_down": _w((lambda *s: torch.randn(*s, dtype=torch.bfloat16) * 0.05)(F, D)),
        }
    _B_in = _B_setup()

    return {
        "A_u": _A_in["u"],
        "A_log_A_real": _A_in["log_A_real"],
        "A_A_imag": _A_in["A_imag"],
        "A_C_real": _A_in["C_real"],
        "A_C_imag": _A_in["C_imag"],
        "A_log_dt": _A_in["log_dt"],
        "A_D_skip": _A_in["D_skip"],
        "B_x": _B_in["x"],
        "B_w_gate": _B_in["w_gate"],
        "B_w_up": _B_in["w_up"],
        "B_w_down": _B_in["w_down"],
    }

def reference(A_u, A_log_A_real, A_A_imag, A_C_real, A_C_imag, A_log_dt, A_D_skip, B_x, B_w_gate, B_w_up, B_w_down):
    def _A_ref(u, log_A_real, A_imag, C_real, C_imag, log_dt, D_skip):
        L = u.shape[1]
        dt = torch.exp(log_dt)
        A = -torch.exp(log_A_real) + 1j * A_imag
        C = (C_real + 1j * C_imag) * dt[:, None]
        pos = (lambda x, dt: x.to(dt))(torch.arange(L), log_dt.dtype)
        P = torch.exp((A * dt[:, None])[:, :, None] * pos[None, None, :])
        K = 2.0 * torch.einsum("dn,dnl->dl", C, P).real
        L2 = 2 * L
        u_t = (lambda x, *d: x.permute(*d))(u, 0, 2, 1)
        Kf = (lambda x, *a, **k: torch.fft.rfft(x.float(), *a, **k))(K, L2)
        Uf = (lambda x, *a, **k: torch.fft.rfft(x.float(), *a, **k))(u_t, L2)
        y = (lambda x, *a, **k: torch.fft.irfft(x, *a, **k).to(torch.bfloat16))(Uf * Kf[None, :, :], L2)[:, :, :L]
        y = (lambda x, *d: x.permute(*d))(y, 0, 2, 1)
        return y + u * D_skip[None, None, :]

    def _B_ref(x, w_gate, w_up, w_down):
        return (_gelu(x @ w_gate) * (x @ w_up)) @ w_down

    x = A_u
    xn = _layernorm(x, axis=-1)
    s = _A_ref(xn, A_log_A_real, A_A_imag, A_C_real, A_C_imag, A_log_dt, A_D_skip)
    g = _silu(_B_ref(xn, B_w_gate, B_w_up, B_w_down))
    return x + s * g
```

```python
import re

TRANS = ('v_exp_f32','v_log_f32','v_rcp_f32','v_rsq_f32','v_sqrt_f32','v_sin_f32','v_cos_f32')

def regs_of(tok):
    tok = tok.strip()
    tok = re.sub(r'^-', '', tok)
    m = re.fullmatch(r'abs\((.*)\)|\|(.*)\|', tok)
    if m: tok = m.group(1) or m.group(2)
    m = re.fullmatch(r'([vas])(\d+)', tok)
    if m: return [tok]
    m = re.fullmatch(r'([vas])\[(\d+):(\d+)\]', tok)
    if m: return [f"{m.group(1)}{i}" for i in range(int(m.group(2)), int(m.group(3))+1)]
    if tok in ('vcc','m0','exec'): return [tok]
    if tok in ('vcc_lo','vcc_hi'): return ['vcc']
    if tok in ('exec_lo','exec_hi'): return ['exec']
    return []

class Ins:
    def __init__(self, text, tag=None):
        self.text = text.strip()
        self.tag = tag
        t = self.text.split(';')[0].strip()
        self.rd=set(); self.wr=set(); self.kind='other'; self.cost=1; self.srcc=[]; self.srcab=[]; self.dst=[]; self.data=[]
        if t.endswith(':'):
            self.kind='label'; self.op=t; self.cost=0; return
        if t.startswith('.') or t=='':
            self.kind='directive'; self.op=t; self.cost=0; return
        p = t.split(None,1); op=p[0]; self.op=op
        rest = p[1] if len(p)>1 else ''
        ops=[]; depth=0; cur=''
        for ch in rest:
            if ch in '[(': depth+=1
            if ch in '])': depth-=1
            if ch==',' and depth==0: ops.append(cur.strip()); cur=''
            else: cur+=ch
        if cur.strip(): ops.append(cur.strip())
        mods=''
        if ops:
            l = ops[-1].split(None,1)
            if len(l)>1 and not op.startswith('s_waitcnt'): ops[-1]=l[0]; mods=l[1]
        self.ops=ops; self.mods=mods
        R=lambda i: regs_of(ops[i]) if i<len(ops) else []
        base = re.sub(r'_(e32|e64|dpp|sdwa)$','',op)
        self.base=base
        if op.startswith('v_mfma'):
            self.kind='mfma'; self.passes = 4 if '16x16x32' in op else 8
            self.dst=R(0); self.srcab=R(1)+R(2); self.srcc=R(3)
            self.wr=set(self.dst); self.rd=set(self.srcab+self.srcc); self.cost=2
        elif op=='s_waitcnt':
            self.kind='wait'
            m=re.search(r'vmcnt\((\d+)\)',rest); self.vm=int(m.group(1)) if m else None
            m=re.search(r'lgkmcnt\((\d+)\)',rest); self.lgkm=int(m.group(1)) if m else None
        elif op=='s_barrier': self.kind='barrier'
        elif op=='s_nop': self.kind='nop'; self.cost=int(ops[0],0)+1
        elif op in ('s_endpgm','s_sleep','s_setprio'): self.kind='other'
        elif op.startswith('s_cbranch') or op=='s_branch':
            self.kind='branch'
            if 'scc' in op: self.rd={'scc'}
            if 'vcc' in op: self.rd={'vcc'}
            if 'exec' in op: self.rd={'exec'}
        elif op.startswith('s_load') or op in('s_memtime','s_memrealtime') or op.startswith('s_atomic'):
            self.kind='smem'; self.wr=set(R(0)); self.rd=set(R(1)+R(2)); self.dst=R(0)
            if op.startswith('s_atomic'): self.rd|=set(R(0))
        elif op.startswith('s_cmp') or op.startswith('s_bitcmp'):
            self.kind='salu'; self.rd=set(R(0)+R(1)); self.wr={'scc'}
        elif op.startswith('s_'):
            self.kind='salu'; self.wr=set(R(0)); self.rd=set(sum((R(i) for i in range(1,len(ops))),[]))
            if op.startswith('s_cselect') or op.startswith('s_addc') or op.startswith('s_subb'): self.rd.add('scc')
            if 'saveexec' in op: self.wr.add('exec'); self.rd.add('exec')
            if not re.match(r's_(mov|movk|mul|cselect|getreg|getpc)',op): self.wr.add('scc')
            if op in ('s_addk_i32','s_mulk_i32'): self.rd|=set(R(0))
        elif op.startswith('ds_read') or op.startswith('ds_bpermute') or op.startswith('ds_permute') or op.startswith('ds_swizzle'):
            self.kind='ds_read'; self.dst=R(0); self.wr=set(self.dst); self.rd=set(sum((R(i) for i in range(1,len(ops))),[]))
        elif op.startswith('ds_'):
            self.kind='ds_write'; self.rd=set(sum((R(i) for i in range(len(ops))),[]))
        elif op.startswith('buffer_load') or op.startswith('global_load'):
            if re.search(r'\blds\b',mods) or '_lds_' in op:
                self.kind='vm_dma'; self.rd=set(sum((R(i) for i in range(len(ops))),[]))|{'m0'}
            else:
                self.kind='vm_load'; self.dst=R(0); self.wr=set(self.dst); self.rd=set(sum((R(i) for i in range(1,len(ops))),[]))
        elif op.startswith('buffer_store'):
            self.kind='vm_store'; self.data=R(0); self.rd=set(sum((R(i) for i in range(len(ops))),[]))
        elif op.startswith('global_store'):
            self.kind='vm_store'; self.data=R(1); self.rd=set(sum((R(i) for i in range(len(ops))),[]))
        elif op.startswith('buffer_atomic') or op.startswith('global_atomic'):
            self.kind='vm_store'; self.rd=set(sum((R(i) for i in range(len(ops))),[]))
            if 'sc0' in mods:
                self.kind='vm_load'; self.dst=R(0); self.wr=set(self.dst)
        elif op in ('buffer_inv','buffer_wbl2'):
            self.kind='vm_store'
        elif op.startswith('v_'):
            self.kind='trans' if base in TRANS else 'valu'
            if self.kind=='trans': self.cost=2
            nd=1
            if re.match(r'v_(add|sub|subrev|addc|subb)_co_',base): nd=2
            if base.startswith('v_permlane') and 'swap' in base:
                self.wr=set(R(0)+R(1)); self.rd=set(R(0)+R(1))
            else:
                self.wr=set(sum((R(i) for i in range(nd)),[])); self.rd=set(sum((R(i) for i in range(nd,len(ops))),[]))
            if base in ('v_fmac_f32','v_dot2c_f32_bf16','v_writelane_b32') or 'dpp' in op or 'UNUSED_PRESERVE' in mods: self.rd|=set(R(0))
            if base.startswith('v_cmpx'): self.wr.add('exec')
        else:
            raise ValueError("unknown instr: "+text)
    def __repr__(self): return self.text

class Prog:
    def __init__(self): self.l=[]
    def __call__(self, text, tag=None):
        for ln in text.split('\n'):
            if ln.strip() and not ln.strip().startswith(';'): self.l.append(Ins(ln,tag))
        return self
    def ext(self, items):
        for it in items:
            if isinstance(it,Ins): self.l.append(it)
            else: self(it)
    def text(self):
        return "".join((i.text if i.kind=='label' else "    "+i.text)+"\n" for i in self.l)

def check(l, name=""):
    errs=[]; vmq=[]; lq=[]
    hist=[]
    t=0
    isv=lambda r: r[0] in 'va' and r not in('vcc',)
    for idx,i in enumerate(l):
        if i.kind in('label','directive'): continue
        touch=i.rd|i.wr
        for q,nm in((vmq,'vmcnt'),(lq,'lgkmcnt')):
            for o in q:
                if set(o.dst)&touch: errs.append(f"{name}[{idx}] '{i.text}' touches pending {nm} result of '{o.text}'")
        if i.kind=='wait':
            if i.vm is not None:
                while len(vmq)>i.vm: vmq.pop(0)
            if i.lgkm is not None:
                if any(o.kind=='smem' for o in lq):
                    if i.lgkm==0: lq.clear()
                else:
                    while len(lq)>i.lgkm: lq.pop(0)
        for p,tp in reversed(hist[-24:]):
            d=t-tp
            if d>=20: break
            need=0; why=''
            pv = p.kind in('valu','trans')
            if p.kind=='mfma':
                D=set(p.dst); big={4:8,8:12}[p.passes]
                if i.kind=='mfma':
                    if D&set(i.srcab): need,why=big,'mfma D->A/B'
                    elif D&set(i.srcc):
                        if not(i.srcc==p.dst and i.passes==p.passes): need,why={4:6,8:10}[p.passes],'mfma D->C overlap'
                    elif D&set(i.dst): need,why={4:6,8:10}[p.passes],'mfma D->D waw'
                elif D&touch: need,why=big,'mfma D->other'
                if i.kind in('valu','trans') and set(p.srcc)&i.wr and need<{4:3,8:7}[p.passes]: need,why={4:3,8:7}[p.passes],'mfma C war'
            if pv:
                vw={r for r in p.wr if isv(r)}; sw=p.wr-vw
                if i.kind=='mfma' and vw&i.rd: need,why=max(need,2),'valu->mfma'
                if i.kind=='mfma' and 'exec' in p.wr: need,why=max(need,4),'exec->mfma'
                if i.kind in('valu','trans'):
                    if p.kind=='trans' and vw&i.rd: need,why=max(need,1),'trans->valu'
                    if ('dpp' in i.op or i.base.startswith('v_permlane')) and vw&i.rd: need,why=max(need,2),'valu->dpp/permlane'
                    if i.base in('v_readlane_b32','v_readfirstlane_b32') and vw&i.rd: need,why=max(need,1),'valu->readlane'
                    if sw&i.rd-{'exec'}: need,why=max(need,4 if 'lane' in i.base else 2),'valu sgpr->valu'
                    if 'exec' in p.wr and ('dpp' in i.op): need,why=max(need,5),'exec->dpp'
                    if 'exec' in p.wr and ('lane' in i.base): need,why=max(need,4),'exec->lane'
                    if 'sdwa' in p.op and vw&touch: need,why=max(need,1),'sdwa->valu'
                    if p.base.startswith('v_dot2') and vw&touch and not(i.base==p.base and not (vw&set(sum((regs_of(o) for o in i.ops[1:3]),[])))): need,why=max(need,3),'dot->other'
                if p.kind=='trans' and i.kind in('ds_write','vm_store','ds_read','vm_load') and vw&i.rd: need,why=max(need,1),'trans->mem'
                if p.base.startswith('v_dot2') and i.kind not in('valu','trans') and vw&touch: need,why=max(need,3),'dot->other'
                if i.kind.startswith('vm_') and sw&i.rd: need,why=max(need,5),'valu sgpr->vmem'
                if i.kind=='branch' and sw&i.rd and False: pass
            if p.kind=='salu' and 'm0' in p.wr and i.kind=='vm_dma': need,why=max(need,1),'m0->dma'
            if p.kind=='vm_store' and len(p.data)>=3 and set(p.data)&i.wr: need,why=max(need,2),'store data war'
            if need>d: errs.append(f"{name}[{idx}] '{i.text}' needs {need} states after '{p.text}' ({why}), has {d}")
        if i.kind in('vm_load','vm_dma','vm_store'):
            vmq.append(i)
            if len(vmq)>63: errs.append(f"{name}[{idx}] vmcnt overflow")
        if i.kind in('ds_read','ds_write','smem') and i.tag!='stamp':
            lq.append(i)
        t += i.cost if i.kind=='nop' else 1
        hist.append((i,t))
    return errs

def kd(name, vgpr, accum, sgpr=102):
    return f""".section .rodata,"a"
.p2align 6
.amdhsa_kernel {name}
  .amdhsa_next_free_vgpr {vgpr}
  .amdhsa_next_free_sgpr {sgpr}
  .amdhsa_accum_offset {accum}
  .amdhsa_group_segment_fixed_size 0
  .amdhsa_kernarg_size 112
  .amdhsa_user_sgpr_count 2
  .amdhsa_user_sgpr_kernarg_segment_ptr 1
  .amdhsa_system_sgpr_workgroup_id_x 1
.end_amdhsa_kernel
"""
def head(name):
    return f""".text
.globl {name}
.p2align 8
.type {name},@function
{name}:
"""
def vr(b,n=1,f='v'): return f"{f}{b}" if n==1 else f"{f}[{b}:{b+n-1}]"
def fhex(x):
    import struct
    return "0x%08x"%struct.unpack('<I',struct.pack('<f',x))[0]
```

```python
import sys, importlib
HEADER = open('recurrent_scan__ssm_conv_s4d__geglu_ffn__prompt.s.ref').read().split('; Override launch')[0]
def assemble(parts, path):
    launches = "".join(l for l,_ in parts)
    body = "".join(t for _,t in parts)
    src = HEADER + launches + '.amdgcn_target "amdgcn-amd-amdhsa--gfx950"\n' + body
    open(path,'w').write(src)
    return src
```

```python
from asmlib import *
import math
KA = dict(x=0, logA=8, Aim=16, Cre=24, Cim=32, logdt=40, Dskip=48, Bx=56, Wg=64, Wu=72, Wd=80, out=88, dbg=96, ws=104)
L=2048; D=576; F=4608
XB = L*D*2
WB = D*F*2
WS_XN = 0
WS_K  = 0x280000
WS_S  = 0x500000
WS_P  = 0x780000
WS_H  = 0x1100000
HB = L*F*2
LOG2E = 1.4426950408889634
import struct
def f32(x): return struct.unpack('<f',struct.pack('<f',x))[0]
LOG2E_HI = f32(LOG2E); LOG2E_LO = LOG2E-LOG2E_HI

def srd(p, s, base, off, nbytes):
    if off==0:
        p(f"s_mov_b32 s{s}, s{base}\ns_mov_b32 s{s+1}, s{base+1}")
    elif off>0:
        p(f"s_add_u32 s{s}, s{base}, {off}\ns_addc_u32 s{s+1}, s{base+1}, 0")
    else:
        p(f"s_sub_u32 s{s}, s{base}, {-off}\ns_subb_u32 s{s+1}, s{base+1}, 0")
    p(f"s_mov_b32 s{s+2}, {nbytes}\ns_mov_b32 s{s+3}, 0x20000")

STAMPS=False
STAMP_S0=70
def stamp(j):
    return [Ins(f"s_memrealtime s[{STAMP_S0+4*j}:{STAMP_S0+4*j+1}]",'stamp'),Ins(f"s_memtime s[{STAMP_S0+4*j+2}:{STAMP_S0+4*j+3}]",'stamp')] if STAMPS else []
def stamp_flush(p, kidx, n, s_ws, s_wave, nw=4):
    if not STAMPS: return
    srd(p,60,s_ws,0x3000000+kidx*65536,65536)
    p(f"s_mul_i32 s64, s2, {nw}\ns_add_u32 s64, s64, s{s_wave}\ns_lshl_b32 s64, s64, 6\nv_mov_b32 v0, 0\ns_waitcnt lgkmcnt(0)")
    for j in range(n):
        p(f"v_mov_b32 v1, s{STAMP_S0+4*j}\nbuffer_store_dword v1, v0, s[60:63], s64 offen offset:{4*j}")
        p(f"v_mov_b32 v1, s{STAMP_S0+4*j+2}\nbuffer_store_dword v1, v0, s[60:63], s64 offen offset:{32+4*j}")
```

```python
import common
from common import *

def ln_code(p, sX, sXN, s_tok2, lane, ST=""):
    p(f"""
    v_and_b32 v2, 1, v{lane}
    v_bfe_u32 v3, v{lane}, 1, 2              ; g
    v_lshrrev_b32 v4, 3, v{lane}             ; bq
    v_mul_u32_u24 v5, 1152, v2
    v_lshl_add_u32 v5, v4, 6, v5
    v_lshl_add_u32 v5, v3, 4, v5
    v_cmp_gt_u32 vcc, 48, v{lane}
    v_mov_b32 v7, 0x7f000000
    s_mul_i32 s40, s{s_tok2}, 1152
    v_cndmask_b32 v5, v7, v5, vcc
    """)
    for i in range(3):
        p(f"buffer_load_dwordx4 v[{16+4*i}:{19+4*i}], v5, s[{sX}:{sX+3}], s40 offen offset:{384*i}")
    p(f"""
    v_lshlrev_b32 v6, 12, v4
    v_lshl_add_u32 v6, v3, 8, v6
    v_lshl_add_u32 v6, v2, 4, v6
    v_cndmask_b32 v6, v7, v6, vcc
    s_lshr_b32 s41, s{s_tok2}, 6
    s_mul_i32 s41, s41, {18*4096}
    s_bfe_u32 s42, s{s_tok2}, 0x20004
    s_lshl_b32 s42, s42, 10
    s_add_u32 s41, s41, s42
    s_and_b32 s42, s{s_tok2}, 15
    s_lshl_b32 s42, s42, 4
    s_add_u32 s41, s41, s42
    s_add_u32 s42, s41, {6*4096}
    s_add_u32 s43, s41, {12*4096}
    s_mov_b32 s44, {fhex(1.0/576)}
    """)
    def reduce(r, t):
        p(f"""
        s_nop 1
        v_add_f32_dpp v{r}, v{r}, v{r} quad_perm:[2,3,0,1] row_mask:0xf bank_mask:0xf
        s_nop 1
        v_add_f32_dpp v{r}, v{r}, v{r} row_ror:4 row_mask:0xf bank_mask:0xf
        s_nop 1
        v_add_f32_dpp v{r}, v{r}, v{r} row_ror:8 row_mask:0xf bank_mask:0xf
        v_mov_b32 v{t}, v{r}
        s_nop 1
        v_permlane16_swap_b32 v{t}, v{r}
        v_add_f32 v{r}, v{r}, v{t}
        v_mov_b32 v{t}, v{r}
        s_nop 1
        v_permlane32_swap_b32 v{t}, v{r}
        v_add_f32 v{r}, v{r}, v{t}
        """)
    for i in range(3):
        p(f"s_waitcnt vmcnt({2-i})")
        for j in range(4):
            d=4*i+j
            p(f"v_lshlrev_b32 v{32+2*d}, 16, v{16+d}\nv_and_b32 v{33+2*d}, 0xffff0000, v{16+d}")
        if i==0:
            p("v_pk_add_f32 v[8:9], v[32:33], v[34:35]\nv_pk_add_f32 v[10:11], v[36:37], v[38:39]")
        else:
            for j in range(4):
                d=4*i+j; a=8+2*(j&1)
                p(f"v_pk_add_f32 v[{a}:{a+1}], v[{a}:{a+1}], v[{32+2*d}:{33+2*d}]")
    p("v_pk_add_f32 v[8:9], v[8:9], v[10:11]\nv_add_f32 v8, v8, v9")
    reduce(8,9)
    p("""
    v_mul_f32 v8, s44, v8                    ; mean
    v_cvt_pk_bf16_f32 v12, v8, v8
    v_and_b32 v12, 0xffff0000, v12           ; mb
    v_sub_f32 v14, v8, v12                   ; m - mb
    """)
    for d in range(12):
        p(f"v_pk_add_f32 v[{32+2*d}:{33+2*d}], v[{32+2*d}:{33+2*d}], v[12:13] op_sel_hi:[1,0] neg_lo:[0,1] neg_hi:[0,1]")
    p("v_pk_mul_f32 v[8:9], v[32:33], v[32:33]\nv_pk_mul_f32 v[10:11], v[34:35], v[34:35]")
    for d in range(2,12):
        a=8+2*(d&1)
        p(f"v_pk_fma_f32 v[{a}:{a+1}], v[{32+2*d}:{33+2*d}], v[{32+2*d}:{33+2*d}], v[{a}:{a+1}]")
    p("v_pk_add_f32 v[8:9], v[8:9], v[10:11]\nv_add_f32 v8, v8, v9\nv_cndmask_b32 v8, 0, v8, vcc")
    reduce(8,9)
    p(f"""
    v_mul_f32 v8, s44, v8
    v_fma_f32 v8, -v14, v14, v8              ; var
    v_max_f32 v8, 0, v8
    v_cvt_pk_bf16_f32 v8, v8, v8
    v_and_b32 v8, 0xffff0000, v8
    v_add_f32 v8, {fhex(1e-5)}, v8
    v_cvt_pk_bf16_f32 v8, v8, v8
    v_and_b32 v8, 0xffff0000, v8
    v_sqrt_f32 v8, v8
    """)
    for d in range(12): p(f"v_cvt_pk_bf16_f32 v{16+d}, v{32+2*d}, v{33+2*d}")
    p("""
    v_cvt_pk_bf16_f32 v8, v8, v8
    v_and_b32 v8, 0xffff0000, v8
    v_rcp_f32 v12, v8
    """)
    for d in range(12): p(f"v_lshlrev_b32 v{32+2*d}, 16, v{16+d}\nv_and_b32 v{33+2*d}, 0xffff0000, v{16+d}")
    for i in range(3):
        for j in range(4):
            d=4*i+j
            p(f"v_pk_mul_f32 v[{32+2*d}:{33+2*d}], v[{32+2*d}:{33+2*d}], v[12:13] op_sel_hi:[1,0]")
        for j in range(4):
            d=4*i+j
            p(f"v_cvt_pk_bf16_f32 v{16+d}, v{32+2*d}, v{33+2*d}")
        p(f"buffer_store_dwordx4 v[{16+4*i}:{19+4*i}], v6, s[{sXN}:{sXN+3}], s{41+i} offen {ST}")

ROWB=544
def kgen_loads(p, sP, s_ch, lane):
    p(f"""
    v_lshlrev_b32 v2, 2, v{lane}
    s_lshl_b32 s40, s{s_ch}, 8
    s_lshl_b32 s41, s{s_ch}, 1
    v_mov_b32 v3, 0
    buffer_load_dword v16, v2, s[{sP['logA']}:{sP['logA']+3}], s40 offen
    buffer_load_ushort v20, v3, s[{sP['logdt']}:{sP['logdt']+3}], s41 offen
    buffer_load_dword v17, v2, s[{sP['Aim']}:{sP['Aim']+3}], s40 offen
    buffer_load_dword v18, v2, s[{sP['Cre']}:{sP['Cre']+3}], s40 offen
    buffer_load_dword v19, v2, s[{sP['Cim']}:{sP['Cim']+3}], s40 offen
    """)

def kgen_code(p, sK, s_ch, s_lds, lane, nextra=0, ST=""):
    p(f"""
    v_lshl_add_u32 v4, v{lane}, 3, s{s_lds}
    v_and_b32 v2, 15, v{lane}                ; m (row) / a
    v_lshrrev_b32 v3, 4, v{lane}             ; g
    v_lshl_add_u32 v12, v3, 4, s{s_lds}      ; base + g*16
    v_mov_b32 v13, {ROWB}
    v_mad_u32_u24 v5, v2, v13, v12
    v_lshrrev_b32 v14, 2, v2
    v_and_b32 v15, 3, v2
    v_subrev_u32 v6, 1, v15
    v_max_i32 v6, 0, v6
    v_lshl_add_u32 v6, v14, 1, v6            ; q = 2g' + max(j-1,0)
    v_mad_u32_u24 v6, v6, v13, v12
    v_min_u32 v15, 2, v15                    ; j clamp
    v_lshrrev_b32 v7, 1, v14                 ; beta
    v_lshl_add_u32 v7, v14, 1, v7
    v_add_u32 v7, v7, v15
    v_mad_u32_u24 v7, v7, v13, v12
    v_mad_u32_u24 v8, v14, 3, v15
    v_mad_u32_u24 v8, v8, v13, v12
    v_lshlrev_b32 v9, 5, v2                  ; a*32
    v_lshl_add_u32 v11, v3, 9, v9            ; T8: a*32 + beta*512
    v_lshrrev_b32 v14, 1, v3
    v_lshl_add_u32 v10, v14, 9, v9
    v_and_b32 v14, 1, v3
    v_lshl_add_u32 v10, v14, 4, v10          ; T4: a*32 + beta*512 + h*16
    v_lshl_add_u32 v9, v3, 3, v9             ; T1/T2: a*32 + g*8
    s_lshl_b32 s42, s{s_ch}, 12
    s_mov_b32 s44, {fhex(LOG2E_HI)}
    s_mov_b32 s45, {fhex(LOG2E_LO)}
    s_mov_b32 s46, {fhex(math.log(2))}
    s_waitcnt vmcnt({3+nextra})
    v_lshlrev_b32 v22, 16, v16
    v_and_b32 v23, 0xffff0000, v16
    v_lshlrev_b32 v24, 16, v20
    """)
    for r in range(3): p(f"v_mul_f32 v{26+r}, s44, v{22+r}")
    for r in range(3): p(f"v_fma_f32 v{30+r}, v{22+r}, s44, -v{26+r}")
    for r in range(3): p(f"v_exp_f32 v{26+r}, v{26+r}")
    for r in range(3): p(f"v_fmac_f32 v{30+r}, s45, v{22+r}")
    for r in range(3): p(f"v_mul_f32 v{30+r}, s46, v{30+r}")
    for r in range(3): p(f"v_fmac_f32 v{26+r}, v{26+r}, v{30+r}")
    p(f"""
    v_cvt_pk_bf16_f32 v26, v26, v27
    v_cvt_pk_bf16_f32 v28, v28, v28
    v_and_b32 v24, 0xffff0000, v28           ; dt
    v_lshlrev_b32 v22, 16, v26
    v_and_b32 v23, 0xffff0000, v26
    s_waitcnt vmcnt({nextra})
    v_lshlrev_b32 v26, 16, v17
    v_and_b32 v27, 0xffff0000, v17
    v_pk_mul_f32 v[22:23], v[22:23], v[24:25] op_sel_hi:[1,0]
    v_pk_mul_f32 v[26:27], v[26:27], v[24:25] op_sel_hi:[1,0]
    v_mul_f32 v22, {fhex(-LOG2E)}, v22
    v_mul_f32 v23, {fhex(-LOG2E)}, v23       ; alpha
    v_mul_f32 v26, 0.15915494, v26
    v_mul_f32 v27, 0.15915494, v27
    v_add_f32 v24, v24, v24                  ; 2dt
    v_lshlrev_b32 v28, 16, v18
    v_and_b32 v29, 0xffff0000, v18
    v_lshlrev_b32 v30, 16, v19
    v_and_b32 v31, 0xffff0000, v19
    v_pk_mul_f32 v[28:29], v[28:29], v[24:25] op_sel_hi:[1,0]
    v_pk_mul_f32 v[30:31], v[30:31], v[24:25] op_sel_hi:[1,0]
    """)
    W={1:32, 16:36, 256:40}
    for pp,b in W.items():
        if pp==1:
            for k in range(2): p(f"v_exp_f32 v{12+k}, v{22+k}")
            for k in range(2): p(f"v_fract_f32 v{14+k}, v{26+k}")
        else:
            for k in range(2): p(f"v_mul_f32 v{12+k}, {fhex(float(pp))}, v{22+k}")
            for k in range(2): p(f"v_mul_f32 v{14+k}, {fhex(float(pp))}, v{26+k}")
            for k in range(2): p(f"v_exp_f32 v{12+k}, v{12+k}")
            for k in range(2): p(f"v_fract_f32 v{14+k}, v{14+k}")
        for k in range(2): p(f"v_cos_f32 v{b+k}, v{14+k}")
        for k in range(2): p(f"v_sin_f32 v{b+2+k}, v{14+k}")
        p(f"v_pk_mul_f32 v[{b}:{b+1}], v[{b}:{b+1}], v[12:13]\nv_pk_mul_f32 v[{b+2}:{b+3}], v[{b+2}:{b+3}], v[12:13]")
    def cmul(d,a,b):
        assert d!=a and d!=b
        p(f"""
        v_pk_mul_f32 v[{d}:{d+1}], v[{a}:{a+1}], v[{b}:{b+1}]
        v_pk_mul_f32 v[{d+2}:{d+3}], v[{a}:{a+1}], v[{b+2}:{b+3}]
        v_pk_fma_f32 v[{d}:{d+1}], v[{a+2}:{a+3}], v[{b+2}:{b+3}], v[{d}:{d+1}] neg_lo:[1,0,0] neg_hi:[1,0,0]
        v_pk_fma_f32 v[{d+2}:{d+3}], v[{a+2}:{a+3}], v[{b}:{b+1}], v[{d+2}:{d+3}]
        """)
    wcnt=[0]
    def emit(z,row,neg=False):
        t=16+2*(wcnt[0]%3); wcnt[0]+=1
        n='-' if neg else ''
        p(f"v_cvt_pk_bf16_f32 v{t}, v{z}, v{z+1}\nv_cvt_pk_bf16_f32 v{t+1}, {n}v{z+2}, {n}v{z+3}\nds_write_b64 v4, v[{t}:{t+1}] offset:{row*ROWB}")
    def reads(dst, areg):
        for s in range(8): p(f"ds_read_b128 v[{dst+4*s}:{dst+4*s+3}], v{areg} offset:{64*s}")
    def mm(acc, A):
        for s in range(8):
            c = "0" if s==0 else f"v[{acc}:{acc+3}]"
            p(f"v_mfma_f32_16x16x32_bf16 v[{acc}:{acc+3}], v[{A+4*s}:{A+4*s+3}], v[{RB+4*s}:{RB+4*s+3}], {c}")
    RB=64; A0=96; A1=128; ACC=160; O=176
    Z=[44,48]; W2,W4,W8,BS=52,56,60,[24,28]
    cur=28; emit(cur,0,True)
    for a in range(1,16):
        nx=Z[a&1]; cmul(nx,cur,W[16]); emit(nx,a,True); cur=nx
    reads(RB,5)
    p("v_mov_b32 v22, 0x3f803f80\nv_mov_b32 v23, 0\nds_write_b64 v4, v[22:23]")
    emit(W[1],1); cur=W[1]
    for j in range(2,16):
        nx={2:W2,4:W4,8:W8}.get(j, Z[j&1]); cmul(nx,cur,W[1]); emit(nx,j); cur=nx
    reads(A0,5)
    cur=W[256]; emit(cur,0)
    for q in range(1,9):
        nx=Z[q&1]; cmul(nx,cur,W2); emit(nx,q); cur=nx
        if q==4:
            p("s_waitcnt lgkmcnt(5)"); mm(ACC,A0)
    reads(A1,6)
    base=W[256]
    for be in range(2):
        nb=BS[be&1]; cmul(nb,base,W[256]); base=nb; emit(base,5*be); cur=base
        for q in range(1,5):
            nx=Z[q&1]; cmul(nx,cur,W4); emit(nx,5*be+q); cur=nx
        if be==0:
            p("s_waitcnt lgkmcnt(5)"); mm(ACC+4,A1)
            p(f"v_cvt_pk_bf16_f32 v{O}, v{ACC}, v{ACC+1}\nv_cvt_pk_bf16_f32 v{O+1}, v{ACC+2}, v{ACC+3}")
            p(f"buffer_store_dwordx2 v[{O}:{O+1}], v9, s[{sK}:{sK+3}], s42 offen {ST}")
    reads(A0,7)
    for be in range(4):
        nb=BS[be&1]; cmul(nb,base,W[256]); base=nb; emit(base,3*be)
        cmul(Z[0],base,W8); emit(Z[0],3*be+1)
        cmul(Z[1],base,W[16]); emit(Z[1],3*be+2)
        if be==1:
            p("s_waitcnt lgkmcnt(6)"); mm(ACC+8,A0)
            p(f"v_cvt_pk_bf16_f32 v{O+2}, v{ACC+4}, v{ACC+5}\nv_cvt_pk_bf16_f32 v{O+3}, v{ACC+6}, v{ACC+7}")
            p(f"buffer_store_dwordx2 v[{O+2}:{O+3}], v9, s[{sK}:{sK+3}], s42 offen offset:512 {ST}")
    reads(A1,8)
    a=ACC+8
    for k,(x,y) in enumerate(((0,0),(0,1),(1,1),(2,2))): p(f"v_cvt_pk_bf16_f32 v{O+4+k}, v{a+x}, v{a+y}")
    p(f"buffer_store_dwordx4 v[{O+4}:{O+7}], v10, s[{sK}:{sK+3}], s42 offen offset:1024 {ST}")
    p("s_waitcnt lgkmcnt(0)"); mm(ACC+12,A1)
    p("s_nop 7")
    a=ACC+12
    for k,(x,y) in enumerate(((0,0),(0,0),(0,1),(1,1),(1,1),(1,1),(2,2),(2,2))): p(f"v_cvt_pk_bf16_f32 v{O+8+k}, v{a+x}, v{a+y}")
    p(f"buffer_store_dwordx4 v[{O+8}:{O+11}], v11, s[{sK}:{sK+3}], s42 offen offset:2048 {ST}")
    p(f"buffer_store_dwordx4 v[{O+12}:{O+15}], v11, s[{sK}:{sK+3}], s42 offen offset:2064 {ST}")

def gen_k0(name="prep_kernel", opt={}):
    p=Prog()
    p(f"""
    s_cmp_ge_u32 s2, 256
    s_cbranch_scc1 {name}_end
    """)
    p.ext(stamp(0))
    p(f"""
    s_load_dwordx4 s[4:7], s[0:1], 0         ; x, logA
    s_load_dwordx8 s[8:15], s[0:1], 16
    s_load_dwordx2 s[16:17], s[0:1], {KA['ws']}
    v_lshrrev_b32 v1, 6, v0
    v_and_b32 v0, 63, v0
    v_readfirstlane_b32 s3, v1
    s_cmp_ge_u32 s3, 4
    s_cbranch_scc1 {name}_kgen
    s_lshl_b32 s20, s2, 2
    s_add_u32 s20, s20, s3
    s_lshl_b32 s20, s20, 1
    s_waitcnt lgkmcnt(0)
    """)
    srd(p,24,4,0,XB); srd(p,28,16,WS_XN,XB)
    ln_code(p,24,28,20,0,opt.get('st',''))
    if common.STAMPS:
        p.ext(stamp(1)); p("s_waitcnt vmcnt(0)"); p.ext(stamp(2)); stamp_flush(p,0,3,16,3)
    p("s_endpgm")
    e1=check(p.l,'ln')
    q=Prog()
    q(f"""
    {name}_kgen:
    s_cmp_ge_u32 s2, 192
    s_cbranch_scc1 {name}_end
    s_sub_u32 s3, s3, 4
    s_mul_i32 s20, s2, 3
    s_add_u32 s20, s20, s3
    s_mul_i32 s21, s3, {16*ROWB}
    s_waitcnt lgkmcnt(0)
    """)
    sP=dict(logA=48,Aim=52,Cre=56,Cim=60,logdt=64)
    srd(q,48,6,0,D*256); srd(q,52,8,0,D*256); srd(q,56,10,0,D*256); srd(q,60,12,0,D*256); srd(q,64,14,0,D*2)
    kgen_loads(q,sP,20,0)
    srd(q,24,16,WS_K,XB)
    kgen_code(q,24,20,21,0,0,opt.get('st',''))
    if common.STAMPS:
        q.ext(stamp(1)); q("s_waitcnt vmcnt(0)"); q.ext(stamp(2)); stamp_flush(q,5,3,16,3)
    q(f"{name}_end:\ns_endpgm")
    e2=check(q.l,'kgen')
    for e in e1+e2: print("HAZARD:",e)
    launch=f"; @launch kernel={name} grid=(256,1,1) block=(448,1,1) lds={3*16*ROWB}\n"
    return launch, head(name)+p.text()+q.text()+kd(name,192,192)
if __name__=="__main__":
    l,t=gen_k0(); print(len(t.split('\n')))
```

```python
import common
from common import *
from sched import *

K1C = -2*math.sqrt(2/math.pi)*LOG2E
GK0 = K1C; GK1 = K1C*0.044715
sX,sWg,sWu,sS,sH = 8,12,16,20,24
SK=32; sM0=50; sM0S=51; sXO=52; sHO=53; sGK=58
RING=16; NR=3; HP=40; ACC=64
def xreg(b,t):
    i=4*b+t
    return f"a[{4*i}:{4*i+3}]" if i<64 else f"v[{224+4*(i-64)}:{224+4*(i-64)+3}]"

def g1_setup(p, s_wave, s_wg):
    p(f"""
    s_and_b32 s60, s{s_wg}, 7                ; xcd
    s_lshr_b32 s61, s{s_wg}, 3               ; idx
    s_and_b32 s62, s60, 1
    s_lshl_b32 s62, s62, 2
    s_and_b32 s63, s61, 3
    s_add_u32 s62, s62, s63                  ; mt
    s_lshl_b32 s62, s62, 2
    s_add_u32 s62, s62, s{s_wave}            ; tok64
    s_lshr_b32 s60, s60, 1                   ; ks
    s_lshl_b32 s60, s60, 1
    s_lshr_b32 s63, s61, 4                   ; q
    s_add_u32 s60, s60, s63
    s_bfe_u32 s61, s61, 0x20002              ; i
    s_mul_i32 s{sXO}, s62, {18*4096}
    s_mul_i32 s63, s62, 144
    s_mul_i32 s64, s60, 18
    s_add_u32 s63, s63, s64
    s_lshl_b32 s64, s61, 2
    s_add_u32 s64, s64, s63
    s_lshl_b32 s{sHO}, s64, 12
    s_add_u32 s{sHO+1}, s{sHO}, 4096
    s_add_u32 s{sHO+2}, s{sHO}, 8192
    s_add_u32 s{sHO+3}, s{sHO}, 12288
    s_lshr_b32 s64, s61, 1
    s_add_u32 s64, s64, s63
    s_add_u32 s64, s64, 16
    s_lshl_b32 s64, s64, 12
    s_and_b32 s65, s61, 1
    s_lshl_b32 s65, s65, 10
    s_add_u32 s{sHO+4}, s64, s65
    s_mul_i32 s63, s60, 1152
    s_lshl_b32 s64, s61, 8
    s_add_u32 s64, s64, s63
    s_mul_i32 s65, s{s_wave}, {8*9216}
    s_add_u32 s64, s64, s65
    s_lshl_b32 s65, s61, 5
    s_add_u32 s65, s65, s63
    s_add_u32 s65, s65, 1024
    s_lshr_b32 s66, s{s_wave}, 1
    s_mul_i32 s66, s66, {32*9216}
    s_add_u32 s65, s65, s66
    s_lshl_b32 s{sM0}, s{s_wave}, 11
    s_lshl_b32 s{sM0S}, s{s_wave}, 10
    s_and_b32 s66, s{s_wave}, 1
    s_lshl_b32 s66, s66, 1
    s_mov_b32 s{sGK}, {fhex(GK1)}
    v_mov_b32 v8, {fhex(GK0)}
    v_lshlrev_b32 v1, 4, v0
    v_lshrrev_b32 v10, 3, v0                 ; row
    v_bfe_u32 v11, v0, 4, 1                  ; (row>>1)&1
    v_or_b32 v11, s66, v11                   ; f
    v_bfe_u32 v12, v0, 1, 2
    v_xor_b32 v11, v11, v12                  ; piece
    v_and_b32 v12, 1, v0
    v_lshlrev_b32 v12, 4, v12
    v_mul_u32_u24 v2, 9216, v10
    v_lshl_add_u32 v2, v11, 5, v2
    v_add3_u32 v2, v2, v12, s64
    v_bfe_u32 v10, v0, 1, 2                  ; p1p0
    v_bfe_u32 v11, v0, 3, 1                  ; p2 -> r3
    v_lshl_add_u32 v10, v11, 3, v10
    v_bfe_u32 v11, v0, 4, 1                  ; p3 -> r2
    v_lshl_add_u32 v10, v11, 2, v10
    v_bfe_u32 v11, v0, 5, 1                  ; p4
    v_lshl_add_u32 v10, v11, 4, v10
    v_mul_u32_u24 v3, 9216, v10
    v_add3_u32 v3, v3, v12, s65
    v_lshrrev_b32 v10, 4, v0                 ; g
    v_bfe_u32 v11, v0, 2, 2                  ; e
    v_and_b32 v12, 3, v0                     ; cg
    v_lshlrev_b32 v12, 3, v12
    v_lshl_add_u32 v4, v10, 11, v12
    v_lshl_add_u32 v4, v11, 7, v4
    v_bfe_u32 v13, v0, 3, 2                  ; f = (e>>1) | (g&1)<<1
    v_lshl_add_u32 v4, v13, 5, v4
    v_xor_b32 v5, 32, v4
    v_xor_b32 v6, 64, v4
    v_xor_b32 v7, 96, v4
    v_bfe_u32 v13, v0, 2, 3                  ; 4*(g&1)+e
    v_lshl_add_u32 v9, v13, 5, v12
    v_lshrrev_b32 v13, 5, v0
    v_lshl_add_u32 v9, v13, 9, v9
    """)
    for b in range(18): p(f"s_mov_b32 s{SK+b}, {b*32*9216}")

def gelu_ops(c, aset, ST):
    ops=[]; base=ACC+32*aset; k=0
    for t in range(4):
        g=[base+4*t+j for j in range(4)]; u=[base+16+4*t+j for j in range(4)]
        tm=[10+(4*t+j)%6 for j in range(4)]
        for j in range(4):
            ops+= [f"v_mul_f32 v{tm[j]}, v{g[j]}, v{g[j]}", f"v_mul_f32 v{u[j]}, v{u[j]}, v{g[j]}",
                   f"v_fma_f32 v{tm[j]}, v{tm[j]}, s{sGK}, v8", f"v_mul_f32 v{g[j]}, v{tm[j]}, v{g[j]}", f"v_exp_f32 v{g[j]}, v{g[j]}"]
        for j in range(4): ops+=[f"v_add_f32 v{g[j]}, 1.0, v{g[j]}", f"v_rcp_f32 v{g[j]}, v{g[j]}"]
        for j in range(4): ops.append(f"v_mul_f32 v{u[j]}, v{u[j]}, v{g[j]}")
        if c<8: d=HP+4*t+2*(c&1)
        else: d=HP+2*t
        ops+=[f"v_cvt_pk_bf16_f32 v{d}, v{u[0]}, v{u[1]}", f"v_cvt_pk_bf16_f32 v{d+1}, v{u[2]}, v{u[3]}"]
        if c<8 and c&1:
            ops.append(f"buffer_store_dwordx4 v[{HP+4*t}:{HP+4*t+3}], v1, s[{sH}:{sH+3}], s{sHO+c//2} offen offset:{1024*t} {ST}")
        if c==8 and t&1:
            ops.append(f"buffer_store_dwordx4 v[{HP+2*t-2}:{HP+2*t+1}], v1, s[{sH}:{sH+3}], s{sHO+4} offen offset:{1024*(t-1)} {ST}")
    return [Ins(o,'hst') for o in ops]

def g1_main(opt={}):
    ST=opt.get('st','')
    HU=[]
    for j in range(9):
        for c in range(4):
            for m in range(2): HU.append((c,m,j))
    def seg(c,j0,j1):
        for j in range(j0,j1):
            for m in range(2): HU.append((c,m,j))
    seg(4,0,3); seg(5,0,3); seg(4,3,9); seg(6,0,3); seg(7,0,3); seg(5,3,9); seg(6,3,9); seg(7,3,9); seg(8,0,9)
    aset={0:0,1:1,2:2,3:3,4:4,5:0,6:1,7:2,8:3}
    gw={0:(66,78),1:(78,90),2:(90,102),3:(102,114),4:(114,126),5:(126,138),6:(138,150),7:(150,162),8:(162,999)}
    nH=len(HU); assert nH==162
    def slot_addr(c,m,j,k):
        b=2*j+k
        if c<4: return b*8192+m*1024
        if c<8: return ((18+b)%20)*8192+m*1024
        return ((36+j//2)%20)*8192+(j&1)*4096+k*2048+m*1024
    win={r:0 for r in (4,5,6,7,9)}
    def reads(h):
        c,m,j=HU[h]; r=9 if c==8 else 4+c%4; R=RING+8*(h%NR); o=[]
        a0=slot_addr(c,m,j,0); w=a0>>16
        if w!=win[r]:
            o.append(Ins(f"v_add_u32 v{r}, {((w-win[r])*65536)&0xffffffff}, v{r}")); win[r]=w
        d2=256 if c==8 else 512
        for k in range(2):
            a=slot_addr(c,m,j,k)-w*65536; assert 0<=a<65536-d2
            o.append(Ins(f"ds_read_b64_tr_b16 v[{R+4*k}:{R+4*k+1}], v{r} offset:{a}"))
            o.append(Ins(f"ds_read_b64_tr_b16 v[{R+4*k+2}:{R+4*k+3}], v{r} offset:{a+d2}"))
        return o
    def xload(b):
        o=[[Ins(f"buffer_load_dwordx4 {xreg(b,t)}, v1, s[{sX}:{sX+3}], s{sXO} offen offset:{1024*t}",('x',b))] for t in range(4)]
        if b<17: o[3].append(Ins(f"s_add_u32 s{sXO}, s{sXO}, 4096"))
        return o
    def wload(grp,b):
        sl=(18*grp+b)%20
        Wf=opt.get('wf','')
        return [[Ins(f"s_add_u32 m0, s{sM0}, {sl*8192}")],
                [Ins(f"buffer_load_dwordx4 v2, s[{sWg}:{sWg+3}], s{SK+b} offen {Wf} lds",('w',grp,b))],
                [Ins(f"buffer_load_dwordx4 v2, s[{sWu}:{sWu+3}], s{SK+b} offen offset:1024 {Wf} lds",('w',grp,b))]]
    def sload(j):
        Wf=opt.get('wf','')
        return [[Ins(f"s_add_u32 m0, s{sM0S}, {slot_addr(8,0,j,0)}")],
                [Ins(f"buffer_load_dwordx4 v3, s[{sS}:{sS+3}], s{SK+2*j} offen {Wf} lds",('s',j))]]
    def pairload(j): return wload(0,2*j)+xload(2*j)+wload(0,2*j+1)+xload(2*j+1)
    LEAD=opt.get('lead',3)
    pro=[]
    for j in range(LEAD):
        for g in pairload(j):
            pro+=g
            if g[0].kind=='salu': pro.append(Ins("s_nop 0"))
    pro+=stamp(1)
    pro.append(WaitVM([('w',0,0),('w',0,1)],True)); pro+=reads(0)+reads(1)
    pre={}; post={}
    def place(groups,h0,h1):
        gaps=[8*h+o for h in range(h0,h1) for o in (1,3,4,5,6)]
        assert len(groups)<=len(gaps)
        for i,g in enumerate(groups): post.setdefault(gaps[i*len(gaps)//len(groups)],[]).extend(g)
    mf=[]
    for h,(c,m,j) in enumerate(HU):
        R=RING+8*(h%NR)
        for t in range(4):
            d=ACC+32*aset[c]+16*m+4*t
            for k in range(2):
                cc="0" if (j==0 and k==0) else f"v[{d}:{d+3}]"
                mf.append(Ins(f"v_mfma_f32_16x16x32_bf16 v[{d}:{d+3}], v[{R+4*k}:{R+4*k+3}], {xreg(2*j+k,t)}, {cc}"))
        pre.setdefault(8*h,[]).append(Ins(f"s_waitcnt lgkmcnt({4 if h+1<nH else 0})"))
        if h+2<nH:
            r=reads(h+2)
            if len(r)==5: pre[8*h].insert(0,r.pop(0))
            post.setdefault(8*h,[]).extend(r[:2]); post.setdefault(8*h+2,[]).extend(r[2:])
    pre[0].append(WaitVM([('x',0),('x',1)])); pre[0]+=stamp(2)
    for j in range(1,9):
        pre[8*(8*j-2)].append(WaitVM([('w',0,2*j),('w',0,2*j+1),('x',2*j),('x',2*j+1)],True))
    pre[8*70].append(WaitVM([('w',1,b) for b in range(6)],True))
    pre[8*82].append(WaitVM([('w',1,b) for b in range(18)],True))
    pre[8*108].append(WaitVM([],True))
    pre[8*142].append(WaitVM([('s',j) for j in range(9)],True))
    pre[8*72]+=stamp(3); pre[8*144]+=stamp(4)
    for j in range(LEAD,9): place(pairload(j), 8*(j-LEAD), 8*(j-LEAD)+8)
    g1=[[Ins("v_add_u32 v2, 128, v2")]]
    h0=8*(9-LEAD)
    sched_g1=opt.get('g1',[(h0,h0+8,0,6),(h0+8,h0+16,6,12),(70,78,12,18)] if LEAD==3 else None)
    for (a,b_,x,y) in sched_g1:
        jj=(y-3)//2
        bars=[8*j-2 for j in range(1,10)]
        assert y-3<0 or any(8*jj+7<=q<=a for q in bars), (a,b_,x,y)
        place(g1+sum((wload(1,b) for b in range(x,y)),[]),a,b_); g1=[]
    place(sum((sload(j) for j in range(9)),[]),108,130)
    streams=[(8*gw[c][0]+1, 8*gw[c][1], gelu_ops(c,aset[c],ST)) for c in range(9)]
    streams[8]=(streams[8][0],streams[8][1],[Ins("s_nop 7")]+streams[8][2])
    body=fill(mf,pre,post,streams)
    return pro+body

def gen_k1(name="g1_kernel", opt={}, kidx=1):
    p=Prog()
    p(f"s_cmp_ge_u32 s2, 256\ns_cbranch_scc1 {name}_end")
    p.ext(stamp(0))
    p(f"""
    s_load_dwordx4 s[4:7], s[0:1], {KA['Wg']}
    s_load_dwordx2 s[28:29], s[0:1], {KA['ws']}
    v_lshrrev_b32 v1, 6, v0
    v_and_b32 v0, 63, v0
    v_readfirstlane_b32 s3, v1
    """)
    g1_setup(p,3,2)
    p("s_waitcnt lgkmcnt(0)")
    srd(p,sX,28,WS_XN,XB); srd(p,sWg,4,0,WB); srd(p,sWu,6,-1024,WB+1024); srd(p,sH,28,WS_H,HB)
    p(f"s_bitcmp1_b32 s3, 0\ns_cselect_b32 s{sS}, s6, s4\ns_cselect_b32 s{sS+1}, s7, s5\ns_mov_b32 s{sS+2}, {WB}\ns_mov_b32 s{sS+3}, 0x20000")
    body=resolve_waits(g1_main(opt))
    print("g1 gaps",gapstats(body))
    p.ext(body)
    p.ext(stamp(5))
    if common.STAMPS: p("s_waitcnt vmcnt(0)")
    p.ext(stamp(6))
    stamp_flush(p,kidx,7,28,3)
    p(f"{name}_end:\ns_endpgm")
    for e in check(p.l,'g1'): print("HAZARD:",e)
    launch=f"; @launch kernel={name} grid=(256,1,1) block=(256,1,1) lds=163840\n"
    return launch, head(name)+p.text()+kd(name,512,256)
if __name__=="__main__":
    l,t=gen_k1(); open('k1.s','w').write(t); print(len(t.split('\n')))
```

```python
import common
from common import *
from sched import *
import ssm

sH,sW,sP = 8,12,16
sM0=50; sWO=51; sHO=52; sPO=53
RING=32; ACC=96; PK=80
def hreg(b,t,lo=0,n=4):
    i=2*b+t
    return (f"a[{4*i+lo}:{4*i+lo+n-1}]" if i<64 else f"v[{224+4*(i-64)+lo}:{224+4*(i-64)+lo+n-1}]")

def g2_setup(p, s_wave, s_wg):
    p(f"""
    s_and_b32 s60, s{s_wg}, 7                ; xcd
    s_lshr_b32 s61, s{s_wg}, 3               ; idx
    s_and_b32 s62, s60, 1
    s_lshl_b32 s62, s62, 3
    s_and_b32 s63, s61, 7
    s_add_u32 s62, s62, s63                  ; mt128
    s_lshl_b32 s62, s62, 1
    s_lshr_b32 s63, s{s_wave}, 1
    s_add_u32 s62, s62, s63                  ; tok64
    s_lshr_b32 s60, s60, 1                   ; ks
    s_lshr_b32 s61, s61, 3                   ; nt
    s_and_b32 s63, s{s_wave}, 1
    s_lshl_b32 s63, s63, 11                  ; tb0*1024
    s_mul_i32 s64, s62, 144
    s_mul_i32 s65, s60, 36
    s_add_u32 s64, s64, s65
    s_lshl_b32 s64, s64, 12
    s_add_u32 s{sHO}, s64, s63
    s_lshl_b32 s64, s60, 5
    s_add_u32 s64, s64, s62
    s_mul_i32 s64, s64, 18
    s_mul_i32 s65, s61, 6
    s_add_u32 s64, s64, s65
    s_lshl_b32 s64, s64, 12
    s_add_u32 s{sPO}, s64, s63
    s_mul_i32 s{sWO}, s60, {1152*1152}
    s_mul_i32 s64, s61, 384
    s_mul_i32 s65, s{s_wave}, {8*1152}
    s_add_u32 s64, s64, s65
    s_add_u32 s64, s64, 2048
    s_mul_i32 s{sM0}, s{s_wave}, 3072
    v_lshlrev_b32 v1, 4, v0
    v_lshrrev_b32 v20, 3, v0                 ; row8
    v_lshrrev_b32 v21, 4, v0                 ; f = row8>>1
    v_bfe_u32 v22, v0, 1, 2
    v_xor_b32 v21, v21, v22
    v_and_b32 v22, 1, v0
    v_lshlrev_b32 v22, 4, v22
    v_mul_u32_u24 v2, 1152, v20
    v_lshl_add_u32 v2, v21, 5, v2
    v_add3_u32 v2, v2, v22, s64
    v_subrev_u32 v3, 896, v2
    v_subrev_u32 v4, 1792, v2
    v_bfe_u32 v20, v0, 2, 3                  ; row8 = 4*(g&1)+e
    v_bfe_u32 v21, v0, 3, 2                  ; f
    v_and_b32 v22, 3, v0
    v_lshlrev_b32 v22, 3, v22
    v_lshrrev_b32 v23, 5, v0
    v_mul_u32_u24 v23, 3072, v23
    v_lshl_add_u32 v23, v20, 7, v23
    v_lshl_add_u32 v23, v21, 5, v23
    v_add_u32 v8, v23, v22
    v_xor_b32 v9, 32, v8
    v_xor_b32 v10, 64, v8
    v_xor_b32 v11, 96, v8
    v_bfe_u32 v20, v0, 4, 1
    v_bfe_u32 v21, v0, 5, 1
    v_lshl_add_u32 v20, v20, 1, v21          ; pi(g)
    v_and_b32 v21, 15, v0
    v_lshl_add_u32 v20, v20, 4, v21
    v_lshlrev_b32 v5, 4, v20
    """)
    for w in (1,2):
        for c in range(4): p(f"v_add_u32 v{8+4*w+c}, {49152*w}, v{8+c}")

def g2_main(opt={}):
    ST=opt.get('st',''); HF=opt.get('hf',''); WF=opt.get('wf','')
    HU=[(j,cp) for j in range(18) for cp in range(6)]; nH=len(HU)
    def reads(h):
        j,cp=HU[h]; R=RING+16*(h%3); o=[]
        for x in range(2):
            ct=2*cp+x
            for k in range(2):
                b=2*j+k; sl=b%12
                r=8+4*(sl//4)+(ct&3); a=(sl%4)*12288+(ct>>2)*1024
                d=R+8*x+4*k
                o.append(Ins(f"ds_read_b64_tr_b16 v[{d}:{d+1}], v{r} offset:{a}"))
                o.append(Ins(f"ds_read_b64_tr_b16 v[{d+2}:{d+3}], v{r} offset:{a+6144}"))
        return o
    def bload(b):
        o=[[Ins(f"s_add_u32 m0, s{sM0}, {(b%12)*12288}")]]
        for jc in range(3): o.append([Ins(f"buffer_load_dwordx4 v{2+jc}, s[{sW}:{sW+3}], s{sWO} offen offset:{1024*jc} {WF} lds",('w',b))])
        o.append([Ins(f"s_add_u32 s{sWO}, s{sWO}, {32*1152}")])
        if b%18<16:
            for t in range(2): o.append([Ins(f"buffer_load_dwordx4 {hreg(b,t)}, v1, s[{sH}:{sH+3}], s{sHO} offen offset:{1024*t} {HF}",('h',b))])
        else:
            for t in range(2):
                for sub in range(2): o.append([Ins(f"buffer_load_dwordx2 {hreg(b,t,2*sub,2)}, v1, s[{sH}:{sH+3}], s{sHO} offen offset:{1024*sub+8*t} {HF}",('h',b))])
        o.append([Ins(f"s_add_u32 s{sHO}, s{sHO}, 4096")])
        return o
    NPRO=opt.get('npro',6)
    pro=[]
    for b in range(NPRO):
        for g in bload(b):
            pro+=g
            if 'm0' in g[0].wr: pro.append(Ins("s_nop 0"))
    pro+=stamp(1)
    pro.append(WaitVM([('w',0),('w',1)],True)); pro+=reads(0)+reads(1)
    pre={}; post={}; mf=[]
    for h,(j,cp) in enumerate(HU):
        R=RING+16*(h%3)
        for x in range(2):
            for t in range(2):
                d=ACC+8*(2*cp+x)+4*t
                for k in range(2):
                    cc="0" if (j==0 and k==0) else f"v[{d}:{d+3}]"
                    mf.append(Ins(f"v_mfma_f32_16x16x32_bf16 v[{d}:{d+3}], v[{R+8*x+4*k}:{R+8*x+4*k+3}], {hreg(2*j+k,t)}, {cc}"))
        pre.setdefault(8*h,[]).append(Ins(f"s_waitcnt lgkmcnt({8 if h+1<nH else 0})"))
        if h+2<nH:
            r=reads(h+2)
            for gi,(a,b_) in zip((0,1,3,5),((0,2),(2,4),(4,6),(6,8))): post.setdefault(8*h+gi,[]).extend(r[a:b_])
    def place(groups,h0,h1):
        gaps=[8*h+o for h in range(h0,h1) for o in (2,4,6)]
        assert len(groups)<=len(gaps),(len(groups),len(gaps))
        for i,g in enumerate(groups): post.setdefault(gaps[i*len(gaps)//len(groups)],[]).extend(g)
    tags=lambda b0,b1:[(k,b) for b in range(b0,b1) for k in 'wh']
    pre[0].append(WaitVM([('h',0),('h',1)])); pre[0]+=stamp(2)
    pre[8*4].append(WaitVM(tags(2,4),True))
    pre[8*10].append(WaitVM(tags(4,6),True))
    pre[8*16].append(WaitVM(tags(6,8),True))
    for e in range(2,9): pre[8*(12*e-2)].append(WaitVM(tags(4*e,4*e+4),True))
    def merge(gs):
        o=[]
        for g in gs:
            if g[0].kind=='salu' and o and o[-1][0].kind=='salu': o[-1]=o[-1]+g
            else: o.append(g)
        return o
    place(merge(sum((bload(b) for b in range(NPRO,12)),[])),0,16)
    place(merge(sum((bload(b) for b in range(12,16)),[])),16,26)
    for e in range(4,9):
        place(merge(sum((bload(b) for b in range(4*e,4*e+4)),[])),12*(e-2)+2,12*(e-2)+14)
    pre[8*54]+=stamp(3)
    streams=[]
    for cp in range(6):
        ops=[]
        for t in range(2):
            a0=ACC+8*(2*cp)+4*t; a1=a0+8; d=PK+4*((2*cp+t)%4)
            ops+=[f"v_cvt_pk_bf16_f32 v{d}, v{a0}, v{a0+1}",f"v_cvt_pk_bf16_f32 v{d+2}, v{a1}, v{a1+1}",
                  f"v_cvt_pk_bf16_f32 v{d+1}, v{a0+2}, v{a0+3}",f"v_cvt_pk_bf16_f32 v{d+3}, v{a1+2}, v{a1+3}"]
        for t in range(2):
            d=PK+4*((2*cp+t)%4)
            ops+=[f"v_permlane16_swap_b32 v{d}, v{d+2}",f"v_permlane16_swap_b32 v{d+1}, v{d+3}",
                  f"buffer_store_dwordx4 v[{d}:{d+3}], v5, s[{sP}:{sP+3}], s{sPO} offen offset:{1024*t} {ST}"]
        if cp<5: ops.append(f"s_add_u32 s{sPO}, s{sPO}, 4096")
        streams.append((8*(102+cp+1)+3, 9999, [Ins(o,'pst') for o in ops]))
    body=fill(mf,pre,post,streams)
    return pro+body

def gen_k2(name="g2_kernel", opt={}, kidx=2):
    p=Prog()
    p(f"s_cmp_ge_u32 s2, 256\ns_cbranch_scc1 {name}_end")
    p.ext(stamp(0))
    p(f"""
    s_load_dwordx2 s[4:5], s[0:1], {KA['Wd']}
    s_load_dwordx2 s[6:7], s[0:1], {KA['Dskip']}
    s_load_dwordx2 s[28:29], s[0:1], {KA['ws']}
    v_lshrrev_b32 v1, 6, v0
    v_and_b32 v0, 63, v0
    v_readfirstlane_b32 s3, v1
    s_cmp_ge_u32 s2, 192
    s_cbranch_scc1 {name}_ssm
    """)
    g2_setup(p,3,2)
    p("s_waitcnt lgkmcnt(0)")
    srd(p,sH,28,WS_H,HB); srd(p,sW,4,-2048,WB+2048); srd(p,sP,28,WS_P,4*XB)
    body=auto_nop(resolve_waits(g2_main(opt)))
    print("g2 gaps",gapstats(body))
    p.ext(body)
    p.ext(stamp(5))
    if common.STAMPS: p("s_waitcnt vmcnt(0)")
    p.ext(stamp(6)); p.ext(stamp(4))
    stamp_flush(p,kidx,7,28,3)
    p("s_endpgm")
    q=Prog(); q(f"{name}_ssm:")
    if opt.get('ssm',1): ssm.gen_ssm(q,3,2,28,6,opt,kidx+1)
    q(f"{name}_end:\ns_endpgm")
    for e in check(p.l,'g2')+check(q.l,'ssm'): print("HAZARD:",e)
    launch=f"; @launch kernel={name} grid=(256,1,1) block=(256,1,1) lds=163840\n"
    return launch, head(name)+p.text()+q.text()+kd(name,512,256)
```

```python
import common
from common import *
from sched import *

EPS=[0]
def final_math(p, P, S, X, T):
    for d in range(4):
        o=T+2*d
        for i,b in enumerate(P):
            t=o if i==0 else T+8
            p(f"v_lshlrev_b32 v{t}, 16, v{b+d}\nv_and_b32 v{t+1}, 0xffff0000, v{b+d}")
            if i: p(f"v_pk_add_f32 v[{o}:{o+1}], v[{o}:{o+1}], v[{t}:{t+1}]")
    E=T+8
    for d in range(4):
        o=T+2*d
        p(f"v_cvt_pk_bf16_f32 v{o}, v{o}, v{o+1}\nv_and_b32 v{o+1}, 0xffff0000, v{o}\nv_lshlrev_b32 v{o}, 16, v{o}")
    for e in range(8): p(f"v_mul_f32 v{E+e}, {fhex(-LOG2E)}, v{T+e}")
    for e in range(8): p(f"v_exp_f32 v{E+e}, v{E+e}")
    for e in range(8): p(f"v_add_f32 v{E+e}, 1.0, v{E+e}")
    for e in range(8): p(f"v_rcp_f32 v{E+e}, v{E+e}")
    for d in range(4): p(f"v_pk_mul_f32 v[{T+2*d}:{T+2*d+1}], v[{T+2*d}:{T+2*d+1}], v[{E+2*d}:{E+2*d+1}]")
    for d in range(4):
        o=T+2*d
        p(f"v_cvt_pk_bf16_f32 v{o}, v{o}, v{o+1}\nv_and_b32 v{o+1}, 0xffff0000, v{o}\nv_lshlrev_b32 v{o}, 16, v{o}")
        p(f"v_lshlrev_b32 v{E+2*d}, 16, v{S+d}\nv_and_b32 v{E+2*d+1}, 0xffff0000, v{S+d}")
        p(f"v_pk_mul_f32 v[{o}:{o+1}], v[{o}:{o+1}], v[{E+2*d}:{E+2*d+1}]")
        if EPS[0]: p(f"v_mul_f32 v{o}, {fhex(1+EPS[0])}, v{o}\nv_mul_f32 v{o+1}, {fhex(1+EPS[0])}, v{o+1}")
        p(f"v_cvt_pk_bf16_f32 v{o}, v{o}, v{o+1}\nv_and_b32 v{o+1}, 0xffff0000, v{o}\nv_lshlrev_b32 v{o}, 16, v{o}")
        p(f"v_lshlrev_b32 v{E+2*d}, 16, v{X+d}\nv_and_b32 v{E+2*d+1}, 0xffff0000, v{X+d}")
        p(f"v_pk_add_f32 v[{o}:{o+1}], v[{o}:{o+1}], v[{E+2*d}:{E+2*d+1}]")
        p(f"v_cvt_pk_bf16_f32 v{X+d}, v{o}, v{o+1}")

def gen_k3(name="fin_kernel", opt={}, kidx=4):
    p=Prog()
    p(f"s_cmp_ge_u32 s2, 576\ns_cbranch_scc1 {name}_end")
    p.ext(stamp(0))
    p(f"""
    s_load_dwordx2 s[4:5], s[0:1], {KA['x']}
    s_load_dwordx2 s[6:7], s[0:1], {KA['out']}
    s_load_dwordx2 s[28:29], s[0:1], {KA['ws']}
    v_lshlrev_b32 v1, 4, v0
    s_lshl_b32 s30, s2, 12
    s_mul_hi_u32 s31, s2, {(2**32+17)//18}   ; tok64
    s_mul_i32 s32, s31, 18
    s_sub_u32 s32, s2, s32                   ; blk
    s_mul_i32 s31, s31, {64*1152}
    s_lshl_b32 s32, s32, 6
    s_add_u32 s31, s31, s32
    v_lshrrev_b32 v2, 6, v0                  ; tb
    v_and_b32 v3, 15, v0
    v_lshl_add_u32 v2, v2, 4, v3
    v_mul_u32_u24 v2, 1152, v2
    v_bfe_u32 v3, v0, 4, 2
    v_lshl_add_u32 v2, v3, 4, v2
    s_add_u32 s33, s30, {XB}
    s_add_u32 s34, s30, {2*XB}
    s_add_u32 s35, s30, {3*XB}
    s_waitcnt lgkmcnt(0)
    """)
    srd(p,8,28,WS_P,4*XB); srd(p,12,28,WS_S,XB); srd(p,16,4,0,XB); srd(p,20,6,0,XB)
    for i,so in enumerate((30,33,34,35)): p(f"buffer_load_dwordx4 v[{4+4*i}:{7+4*i}], v1, s[8:11], s{so} offen")
    p("buffer_load_dwordx4 v[20:23], v1, s[12:15], s30 offen\nbuffer_load_dwordx4 v[24:27], v2, s[16:19], s31 offen\ns_waitcnt vmcnt(0)")
    p.ext(stamp(1))
    final_math(p,[4,8,12,16],20,24,28)
    p("buffer_store_dwordx4 v[24:27], v2, s[20:23], s31 offen")
    if common.STAMPS:
        p("s_waitcnt vmcnt(0)"); p.ext(stamp(2)); p("s_mov_b32 s3, 0"); stamp_flush(p,kidx,3,28,3,1)
    p(f"{name}_end:\ns_endpgm")
    for e in check(p.l,'fin'): print("HAZARD:",e)
    launch=f"; @launch kernel={name} grid=(576,1,1) block=(256,1,1) lds=0\n"
    return launch, head(name)+p.text()+kd(name,48,48)
```

```python
from asmlib import *

class WaitVM:
    def __init__(self, tags, barrier=False): self.tags=set(tags); self.barrier=barrier; self.kind='pseudo'; self.cost=1+(1 if barrier else 0)

def resolve_waits(items):
    out=[]; issued=[]; done=0
    for it in items:
        if isinstance(it,WaitVM):
            last=-1
            for tg in it.tags:
                idx=[i for i,t in enumerate(issued) if t==tg]
                assert idx, f"wait for unissued tag {tg}"
                last=max(last,idx[-1])
            if last+1>done:
                n=len(issued)-(last+1)
                assert n<=63
                if out and out[-1].kind=='wait' and out[-1].vm is None:
                    out[-1]=Ins(f"s_waitcnt vmcnt({n}) lgkmcnt({out[-1].lgkm})")
                else: out.append(Ins(f"s_waitcnt vmcnt({n})"))
                done=last+1
            if it.barrier: out.append(Ins("s_barrier"))
        else:
            if it.kind in('vm_load','vm_dma','vm_store'): issued.append(it.tag)
            if it.kind=='wait' and it.vm is not None: done=max(done,len(issued)-it.vm)
            out.append(it)
    return out

VMCOST=2
def cost(i):
    if i.kind in('vm_load','vm_dma','vm_store'): return VMCOST
    return i.cost

def fill(mfmas, pre, post, streams, cap=2, window=10, lat_trans=2):
    n=len(mfmas); out=[]
    fixed=[sum(cost(x) for x in post.get(i,[]))+sum(cost(x) for x in pre.get(i+1,[])) for i in range(n)]
    si=0; pend=[]; cur_end=None
    recent=[]
    def ready(k):
        o=pend[k]
        for e in pend[:k]:
            if (e.wr&(o.rd|o.wr)) or (e.rd&o.wr): return False
        for d,e in enumerate(reversed(recent[-lat_trans:])):
            if e.kind=='trans' and e.wr&o.rd: return False
        if o.kind in('valu','trans'):
            for e in recent[-2:]:
                if e.kind=='vm_store' and len(e.data)>=3 and set(e.data)&o.wr: return False
                if o.base.startswith('v_permlane') and e.kind in('valu','trans') and e.wr&o.rd: return False
        return True
    def emit(x):
        out.append(x)
        if x.kind!='pseudo': recent.append(x)
    carry=0.0
    for i in range(n):
        for x in pre.get(i,[]): emit(x)
        emit(mfmas[i])
        for x in post.get(i,[]): emit(x)
        room=cap-fixed[i]
        while True:
            if not pend:
                if si<len(streams) and streams[si][0]<=i:
                    pend=list(streams[si][2]); cur_end=streams[si][1]; si+=1; carry=0.0
                else: break
            e=min(cur_end,n)
            must = cur_end<=n
            extra=0
            if must:
                rem=sum(cost(x) for x in pend)
                avail=max(room,0)+sum(max(cap-fixed[j],0) for j in range(i+1,e))
                gaps=max(e-i,1)
                if rem>avail:
                    carry+= (rem-avail)/gaps
                    extra=int(carry+0.5) if i<e-1 else rem
            room2=max(room,0)+extra
            used=0
            while pend:
                pick=None
                for k in range(min(window,len(pend))):
                    if cost(pend[k])<=room2-used and ready(k): pick=k; break
                if pick is None:
                    if must and i>=e-1:
                        pick=next((k for k in range(min(window,len(pend))) if ready(k)),None)
                        if pick is None: emit(Ins("s_nop 0")); continue
                    else: break
                x=pend.pop(pick); emit(x); used+=cost(x)
            over=max(used-max(room,0),0); carry-=over
            room-=used
            if pend or room<=0: break
    while pend or si<len(streams):
        if not pend:
            pend=list(streams[si][2]); si+=1
        pick=next((k for k in range(min(window,len(pend))) if ready(k)),None)
        if pick is None: emit(Ins("s_nop 0")); continue
        emit(pend.pop(pick))
    return out

def gapstats(l):
    import collections
    h=collections.Counter(); c=None
    for x in l:
        if x.kind=='mfma':
            if c is not None: h[c]+=1
            c=0
        elif c is not None: c+=cost(x)
    tot=sum(max(k,2)*v for k,v in h.items())+2*sum(h.values())+c
    return dict(sorted(h.items())), c, tot*4

def auto_lgkm(items):
    out=[]; q=[]
    for it in items:
        if it.kind=='pseudo':
            if getattr(it,'drain',False) and q:
                out.append(Ins("s_waitcnt lgkmcnt(0)")); q=[]
            out.append(it); continue
        if it.kind=='wait' and it.lgkm is not None:
            while len(q)>it.lgkm: q.pop(0)
        touch=it.rd|it.wr; last=-1
        for k,o in enumerate(q):
            if set(o.dst)&touch: last=k
        if last>=0:
            n=min(len(q)-last-1,15)
            out.append(Ins(f"s_waitcnt lgkmcnt({n})")); q=q[len(q)-n:] if n else []
        if it.kind in('ds_read','ds_write'): q.append(it)
        out.append(it)
    return out

def auto_nop(items):
    import re
    l=list(items)
    for _ in range(400):
        errs=[e for e in check(l) if 'states after' in e]
        if not errs: return l
        m=re.match(r"\[(\d+)\].*needs (\d+) states.*has (\d+)",errs[0])
        idx,need,has=map(int,m.groups())
        l.insert(idx,Ins(f"s_nop {need-has-1}"))
    raise RuntimeError("auto_nop")

def spread(post, groups, g0, g1):
    n=len(groups)
    for i,g in enumerate(groups):
        post.setdefault(g0+i*(g1-g0)//n,[]).extend(g if isinstance(g,list) else [g])
def weave(mf, pre, post):
    out=[]
    for i,m in enumerate(mf):
        out+=pre.get(i,[]); out.append(m); out+=post.get(i,[])
    return out
```

```python
import common
from common import *
from sched import *

XR0=0; XR1=32768; UB=65536; UCS=4624; UDS=1152; KB=UB+9*UCS; KCS=4128
assert KB%16==0
LDS_END=KB+9*KCS
ZL=XR1; ZS=8208
ZL=LDS_END; assert ZL%16==0
ZL=0
sXN,sKG,sS=8,12,16
ABUF=[0,64]; BBUF=[128,192]
SETS=[64,96,128,160,192]
UT=224

def gen_ssm(p, s_wave, s_wg, s_ws, s_dsk, opt, kidx):
    ST=opt.get('sst','')
    w=s_wave
    p(f"""
    s_and_b32 s60, s{s_wg}, 7                ; xcd
    s_lshr_b32 s61, s{s_wg}, 3
    s_sub_u32 s61, s61, 24
    s_lshl_b32 s62, s60, 3
    s_add_u32 s62, s62, s61
    s_add_u32 s63, s60, 64
    s_lshr_b32 s64, s62, 2
    s_lshl_b32 s64, s64, 12
    s_and_b32 s65, s62, 3
    s_lshl_b32 s65, s65, 8
    s_add_u32 s40, s64, s65
    s_lshr_b32 s64, s63, 2
    s_lshl_b32 s64, s64, 12
    s_and_b32 s65, s63, 3
    s_lshl_b32 s65, s65, 8
    s_add_u32 s41, s64, s65
    s_mul_i32 s64, s{w}, {8*18*4096}
    s_add_u32 s42, s40, s64
    s_add_u32 s43, s41, s64
    s_lshl_b32 s44, s{w}, 13
    s_lshl_b32 s64, s62, 3
    s_add_u32 s64, s64, s{w}                 ; chA
    s_lshl_b32 s45, s64, 12
    s_add_u32 s46, s45, {4*4096}
    s_add_u32 s65, s62, 512
    s_lshl_b32 s47, s65, 12
    s_lshl_b32 s66, s{w}, 10
    s_add_u32 s47, s47, s66
    s_mul_i32 s48, s{w}, {KCS}
    s_add_u32 s48, s48, {KB+32}
    s_add_u32 s49, s66, {KB+32+8*KCS}
    s_lshl_b32 s64, s64, 1
    s_lshl_b32 s65, s65, 1
    s_mul_i32 s50, s{w}, {18*4096}
    s_add_u32 s50, s50, s41
    s_lshl_b32 s66, s61, 1
    s_add_u32 s50, s50, s66
    v_lshlrev_b32 v1, 4, v0                  ; lane*16
    v_lshrrev_b32 v20, 4, v0                 ; g
    v_and_b32 v21, 15, v0                    ; n / i
    v_lshlrev_b32 v2, 4, v21
    v_lshl_add_u32 v2, v20, 10, v2           ; tb*1024+n*16
    v_mov_b32 v22, 0
    s_waitcnt lgkmcnt(0)
    """)
    srd(p,sXN,s_ws,WS_XN,XB); srd(p,sKG,s_ws,WS_K,XB); srd(p,sS,s_ws,WS_S,XB); srd(p,20,s_dsk,0,D*2)
    LF=opt.get('slf','')
    pro=[]
    I=lambda t,tag=None: pro.append(Ins(t,tag))
    def xr(base,so,tag):
        o=[]
        for k in range(8):
            o.append([Ins(f"s_add_u32 m0, s44, {base+1024*k}"), Ins(f"s_add_u32 s67, s{so}, {k*18*4096}"),
                      Ins(f"buffer_load_dwordx4 v2, s[{sXN}:{sXN+3}], s67 offen {LF} lds",tag)])
        return o
    def kl(m0,so,tag,n=4):
        return [[Ins(m0),Ins("s_nop 0")]+[Ins(f"buffer_load_dwordx4 v1, s[{sKG}:{sKG+3}], s{so} offen offset:{1024*k} {LF} lds",tag) for k in range(n)]]
    for g in xr(XR0,42,'xr0')+kl("s_mov_b32 m0, s48",45,'kA'): pro+=g
    I(f"buffer_load_ushort v10, v22, s[20:23], s64 offen",'d')
    I(f"buffer_load_ushort v11, v22, s[20:23], s64 offen offset:8",'d')
    I(f"buffer_load_ushort v12, v22, s[20:23], s65 offen",'d')
    for g in kl("s_mov_b32 m0, s49",47,'kX',1)+xr(XR1,43,'xr1')+kl(f"s_add_u32 m0, s48, {4*KCS}",46,'kB'): pro+=g
    pro+=stamp(1)
    q=Prog()
    q(f"""
    v_bfe_u32 v22, v0, 2, 2                  ; e
    v_and_b32 v23, 3, v0                     ; cg
    v_lshrrev_b32 v24, 5, v0
    v_lshlrev_b32 v24, 5, v24
    v_lshl_add_u32 v24, v22, 2, v24
    v_and_b32 v25, 1, v20
    v_lshl_add_u32 v24, v25, 1, v24
    v_lshlrev_b32 v24, 4, v24
    v_lshl_add_u32 v24, v23, 3, v24
    v_add_u32 v3, s44, v24
    v_and_b32 v24, 7, v0
    v_bfe_u32 v25, v0, 3, 2
    v_lshrrev_b32 v26, 5, v0
    v_mul_u32_u24 v25, {UDS}, v25
    v_lshl_add_u32 v25, v26, 4, v25
    s_lshl_b32 s66, s{w}, 8
    s_add_u32 s66, s66, {UB+128}
    v_add_u32 v25, s66, v25
    v_add_u32 v5, {8*UCS}, v25
    v_mul_u32_u24 v4, {UCS}, v24
    v_add_u32 v4, v4, v25
    v_cmp_eq_u32 s[52:53], s61, v24
    v_cmp_eq_u32 s[54:55], 63, v0
    v_lshlrev_b32 v24, 3, v20
    v_add_u32 v24, v24, v22
    v_sub_u32 v24, v23, v24
    v_add_u32 v24, 24, v24
    v_lshlrev_b32 v24, 3, v24
    v_add_u32 v6, s48, v24
    v_add_u32 v7, {KB+32+8*KCS}, v24         ; extra
    v_lshlrev_b32 v24, 3, v21
    v_lshl_add_u32 v24, v20, 4, v24
    s_mul_i32 s66, s{w}, {UCS}
    s_add_u32 s66, s66, {UB+8}
    v_add_u32 v8, s66, v24
    s_mul_i32 s67, s{w}, {UDS}
    s_add_u32 s67, s67, {UB+8+8*UCS}
    v_add_u32 v9, s67, v24
    v_lshl_add_u32 v24, v21, 2, v20
    v_lshlrev_b32 v25, 1, v24
    s_add_u32 s66, s66, 120
    v_add_u32 v13, s66, v25
    v_lshl_add_u32 v14, v24, 3, s48
    s_mul_i32 s66, s{w}, {ZS}
    s_add_u32 s66, s66, {ZL+16}
    v_lshl_add_u32 v15, v24, 4, s66
    v_subrev_u32 v24, 16, v0
    v_add_u32 v25, 47, v0
    v_cmp_gt_u32 vcc, 16, v0
    v_mov_b32 v26, 63
    v_lshlrev_b32 v27, 6, s{w}
    v_cndmask_b32 v24, v24, v25, vcc
    v_cmp_eq_u32 vcc, 0, v0
    v_add_u32 v27, v27, v0                   ; tid
    v_lshlrev_b32 v17, 2, v27
    v_cndmask_b32 v24, v24, v26, vcc
    v_lshlrev_b32 v16, 2, v24
    v_add_u32 v17, {ZL+4}, v17
    v_and_b32 v24, 3, v27
    v_mul_u32_u24 v24, {UDS}, v24
    v_lshrrev_b32 v25, 2, v27
    v_lshl_add_u32 v24, v25, 1, v24
    v_add_u32 v18, {UB+8*UCS+128}, v24
    v_mul_u32_u24 v24, {KCS}, v22
    v_lshl_add_u32 v24, v20, 5, v24
    v_lshl_add_u32 v24, v23, 3, v24
    s_lshl_b32 s66, s{w}, 10
    s_add_u32 s66, s66, {KB+32}
    v_add_u32 v19, s66, v24
    v_mov_b32 v28, 0
    v_mov_b32 v29, 0
    v_mov_b32 v30, 0
    v_mov_b32 v31, 0
    v_lshrrev_b32 v24, 3, v0
    v_and_b32 v25, 7, v0
    v_lshlrev_b32 v25, 4, v25
    s_mul_i32 s66, s{w}, {UDS}
    s_add_u32 s66, s66, {UB}
    v_add_u32 v25, s66, v25
    v_mul_u32_u24 v24, {UCS}, v24
    v_add_u32 v24, v24, v25
    ds_write_b128 v24, v[28:31]
    ds_write_b128 v25, v[28:31] offset:{8*UCS}
    v_lshrrev_b32 v24, 1, v0
    v_min_u32 v24, 8, v24
    v_mul_u32_u24 v24, {KCS}, v24
    v_and_b32 v25, 1, v0
    v_lshl_add_u32 v24, v25, 4, v24
    v_add_u32 v24, {KB}, v24
    ds_write_b128 v24, v[28:31]
    """)
    for k in range(8): q(f"v_mov_b32 v{UT+k}, 0")
    pro+=q.l
    def transp(src,wreg,masked):
        rd=[]; wr=[]
        for k in range(8):
            d=32+4*k
            rd.append([Ins(f"ds_read_b64_tr_b16 v[{d}:{d+1}], v3 offset:{src+1024*k}"),Ins(f"ds_read_b64_tr_b16 v[{d+2}:{d+3}], v3 offset:{src+1024*k+256}")])
            wr.append([Ins(f"ds_write_b128 v{wreg}, v[{d}:{d+3}] offset:{32*k}")])
        return rd,wr
    rd,wr=transp(XR0,4,False)
    pro.append(WaitVM(['xr0']))
    for g in rd+wr: pro+=g
    def aload(buf,reg,off):
        o=[]
        for s in range(16):
            d=ABUF[buf]+4*s
            o.append(Ins(f"ds_read_b64_tr_b16 a[{d}:{d+1}], v{reg} offset:{off+256*s+32}"))
            o.append(Ins(f"ds_read_b64_tr_b16 a[{d+2}:{d+3}], v{reg} offset:{off+256*s}"))
        return o
    def bload(buf,reg,off):
        o=[]
        for jj in range(16):
            d=BBUF[buf]+4*jj
            o.append(Ins(f"ds_read_b64 a[{d}:{d+1}], v{reg} offset:{off+64*jj}"))
            o.append(Ins(f"ds_read_b64 a[{d+2}:{d+3}], v{reg} offset:{off+64*jj+8}"))
        return o
    bar=WaitVM(['kA','d'],True); bar.drain=True
    pro.append(bar)
    pro+=stamp(2)
    al=aload(0,6,0); bl=bload(0,8,0)
    pro+=bl[:4]+al+bl[4:]
    pro+=[Ins(f"v_lshlrev_b32 v{r}, 16, v{r}") for r in (10,11,12)]
    passes=[(0,0,0),(0,1,1),(0,0,2),(0,1,3),(1,0,4),(0,1,0),(0,0,1),(0,1,2),(0,0,3)]
    mf=[]; done={}
    for pi,(ab,bb,st) in enumerate(passes):
        for jp in range(8):
            for b in range(jp,8):
                d=SETS[st]+4*b
                for k in range(2):
                    s=2*b-2*jp+1-k; jj=2*jp+k
                    cc="0" if (jp==0 and k==0) else f"v[{d}:{d+3}]"
                    mf.append(Ins(f"v_mfma_f32_16x16x32_bf16 v[{d}:{d+3}], a[{ABUF[ab]+4*s}:{ABUF[ab]+4*s+3}], a[{BBUF[bb]+4*jj}:{BBUF[bb]+4*jj+3}], {cc}"))
                if b==jp: done[(pi,b)]=len(mf)-1
    pre={}; post={}
    P=lambda i:72*i
    boff=[None,(8,UDS),(8,2*UDS),(8,3*UDS),(9,0),(8,4*UCS),(8,4*UCS+UDS),(8,4*UCS+2*UDS),(8,4*UCS+3*UDS)]
    for pi in range(1,9):
        g0=P(pi-1)+(1 if pi!=4 else 4)
        spread(post,bload(passes[pi][1],*boff[pi]),g0,P(pi)-6)
    rd,wr=transp(XR1,5,True)
    pre[P(1)]=[WaitVM(['xr1','kX','kB'])]
    spread(post,rd,P(1),P(1)+24)
    post.setdefault(P(1)+34,[]).extend([Ins("s_mov_b64 exec, s[52:53]")]+sum(wr,[])+[Ins("s_mov_b64 exec, -1")])
    bar=WaitVM([],True); bar.drain=True
    pre[P(2)+2]=[bar]
    spread(post,aload(1,7,0),P(2)+4,P(3)-4)
    spread(post,aload(0,6,4*KCS),P(4)+1,P(5)-6)
    def finish(p0,uoff,yoff,dreg,last):
        S,Z1,Z2,Z3=SETS[:4]
        ops=[]
        for b in range(8):
            t=UT+4*(b&1)
            r=[Ins(f"ds_read_u16_d16_hi v{t+f}, v13 offset:{uoff+f*UDS+128*b}") for f in range(4)]
            a=[Ins(f"v_fmac_f32 v{S+4*b+f}, v{dreg}, v{t+f}") for f in range(4)]
            ops.append((r,a))
        seq=ops[0][0]+ops[1][0]
        for b in range(8):
            seq+=ops[b][1]
            if b+2<8: seq+=ops[b+2][0]
        spread(post,seq,P(p0+1)+6,P(p0+2)-2)
        f1=[Ins(f"v_add_f32 v{S+4*b+1+k}, v{S+4*b+1+k}, v{Z1+4*b+k}") for b in range(8) for k in range(3)]
        spread(post,f1,P(p0+2)+6,P(p0+2)+60)
        f2=[Ins(f"v_add_f32 v{x}, v{x}, v{Z2+4*b+k}") for b in range(8) for k,x in enumerate((S+4*b+2,S+4*b+3,Z1+4*b+3))]
        spread(post,f2,P(p0+3)+5,P(p0+3)+29)
        st1=[]; st2=[]
        for b in range(8):
            C=[Z1+4*b+3,Z2+4*b+3,Z3+4*b+3]
            o=[Ins(f"v_add_f32 v{x}, v{x}, v{Z3+4*b+k}") for k,x in enumerate((S+4*b+3,C[0],C[1]))]
            for k in range(3):
                prev=f"v{C[k]-4}" if b else "v28"
                o.append(Ins(f"v_cndmask_b32 v{Z1+4*b+k}, v{C[k]}, {prev}, s[54:55]"))
            o+=[Ins(f"ds_bpermute_b32 v{Z2+4*b+k}, v16, v{Z1+4*b+k}") for k in range(3)]
            st1.append(o)
            o=[Ins(f"v_add_f32 v{S+4*b+k}, v{S+4*b+k}, v{Z2+4*b+k}") for k in range(3)]
            o+=[Ins(f"v_cvt_pk_bf16_f32 v{Z3+4*b}, v{S+4*b}, v{S+4*b+1}"),Ins(f"v_cvt_pk_bf16_f32 v{Z3+4*b+1}, v{S+4*b+2}, v{S+4*b+3}"),
                Ins(f"ds_write_b64 v14, v[{Z3+4*b}:{Z3+4*b+1}] offset:{yoff+512*b}")]
            st2.append(o)
        seq=st1[0]+st1[1]
        for b in range(8):
            seq+=st2[b]
            if b+2<8: seq+=st1[b+2]
        return seq, st1
    seqA,_=finish(0,0,0,10,False)
    spread(post,seqA,P(3)+46,P(5)-1)
    seqB,st1=finish(5,4*UCS,4*KCS,11,True)
    ncut=seqB.index(st1[4][0])
    spread(post,seqB[:ncut],P(8)+32,P(9)-1)
    tail=seqB[ncut:]
    ZX=SETS[4]
    zw=[Ins(f"ds_write_b128 v15, v[{ZX+4*b}:{ZX+4*b+3}] offset:{1024*b}") for b in range(8)]
    zz=[Ins("s_mov_b64 exec, 1"),Ins("v_subrev_u32 v24, 16, v15"),Ins("ds_write_b128 v24, v[28:31]"),Ins("s_mov_b64 exec, -1")]
    post.setdefault(P(5)+4,[]).extend(zz)
    spread(post,zw,P(5)+8,P(5)+40)
    bar=WaitVM([],True); bar.drain=True
    pre[P(5)+68]=[bar]
    xs=[]
    for k in range(8):
        r=[Ins(f"ds_read_b32 v{ZX+4*k+d}, v17 offset:{d*ZS+4*(3-d)+1024*k}") for d in range(4)]
        xs+=r
    spread(post,xs,P(7)+2,P(7)+40)
    xu=[Ins(f"ds_read_u16_d16_hi v{UT+k}, v18 offset:{128*k}") for k in range(8)]
    spread(post,xu,P(7)+40,P(7)+50)
    xo=[]
    for k in range(8):
        z=ZX+4*k
        xo+=[Ins(f"v_add_f32 v{z}, v{z}, v{z+1}"),Ins(f"v_add_f32 v{z+2}, v{z+2}, v{z+3}"),Ins(f"v_fmac_f32 v{z}, v12, v{UT+k}"),
             Ins(f"v_add_f32 v{z}, v{z}, v{z+2}"),Ins(f"v_cvt_pk_bf16_f32 v{z}, v{z}, v{z}"),
             Ins(f"buffer_store_short v{z}, v2, s[{sS}:{sS+3}], s50 offen {ST}",'xs'),Ins(f"s_add_u32 s50, s50, {4*18*4096}")]
    spread(post,xo,P(7)+58,P(8)+32)
    pre.setdefault(P(4),[]).extend(stamp(3))
    body=weave(mf,pre,post)+stamp(4)+tail
    bar=WaitVM([],True); bar.drain=True
    body.append(bar)
    fr=[]; fs=[]
    for k in range(8):
        d=32+4*k
        fr+=[Ins(f"ds_read_b64_tr_b16 v[{d}:{d+1}], v19 offset:{128*k}"),Ins(f"ds_read_b64_tr_b16 v[{d+2}:{d+3}], v19 offset:{128*k+4*KCS}")]
        fs+=[Ins(f"buffer_store_dwordx4 v[{d}:{d+3}], v2, s[{sS}:{sS+3}], s42 offen {ST}",'fs'),Ins(f"s_add_u32 s42, s42, {18*4096}")]
    body+=fr+fs
    allc=auto_nop(resolve_waits(auto_lgkm(pro+body)))
    print("ssm gaps",gapstats(allc))
    p.ext(allc)
    p.ext(stamp(5))
    if common.STAMPS: p("s_waitcnt vmcnt(0)")
    p.ext(stamp(6))
    stamp_flush(p,kidx,7,s_ws,w)
```

```python
import sys, json
import common
from build import *
out=sys.argv[1]; which=sys.argv[2]; opts=json.loads(sys.argv[3]) if len(sys.argv)>3 else {}
common.STAMPS = bool(opts.get('stamps',0))
import k0,k1
parts=[]
if '0' in which: parts.append(k0.gen_k0(opt=opts.get('k0',{})))
if '1' in which: parts.append(k1.gen_k1(opt=opts.get('k1',{})))
if '2' in which:
    import k2; parts.append(k2.gen_k2(opt=opts.get('k2',{})))
if '3' in which:
    import k3; parts.append(k3.gen_k3(opt=opts.get('k3',{})))
src=assemble(parts,out)
from mbh import *
co=build(out,'x',14,lists=True)
L=launch_list_of(src,True)
print("srdcheck:",cl.address_register_problem(co,None,cl.launch_list_kernel_names(L)), "size",len(src))
```

```python
import re

TRANS = ('v_exp_f32','v_log_f32','v_rcp_f32','v_rsq_f32','v_sqrt_f32','v_sin_f32','v_cos_f32')

def regs_of(tok):
    tok = tok.strip()
    tok = re.sub(r'^-', '', tok)
    m = re.fullmatch(r'abs\((.*)\)|\|(.*)\|', tok)
    if m: tok = m.group(1) or m.group(2)
    m = re.fullmatch(r'([vas])(\d+)', tok)
    if m: return [tok]
    m = re.fullmatch(r'([vas])\[(\d+):(\d+)\]', tok)
    if m: return [f"{m.group(1)}{i}" for i in range(int(m.group(2)), int(m.group(3))+1)]
    if tok in ('vcc','m0','exec'): return [tok]
    if tok in ('vcc_lo','vcc_hi'): return ['vcc']
    if tok in ('exec_lo','exec_hi'): return ['exec']
    return []

class Ins:
    def __init__(self, text, tag=None):
        self.text = text.strip()
        self.tag = tag
        t = self.text.split(';')[0].strip()
        self.rd=set(); self.wr=set(); self.kind='other'; self.cost=1; self.srcc=[]; self.srcab=[]; self.dst=[]; self.data=[]
        if t.endswith(':'):
            self.kind='label'; self.op=t; self.cost=0; return
        if t.startswith('.') or t=='':
            self.kind='directive'; self.op=t; self.cost=0; return
        p = t.split(None,1); op=p[0]; self.op=op
        rest = p[1] if len(p)>1 else ''
        ops=[]; depth=0; cur=''
        for ch in rest:
            if ch in '[(': depth+=1
            if ch in '])': depth-=1
            if ch==',' and depth==0: ops.append(cur.strip()); cur=''
            else: cur+=ch
        if cur.strip(): ops.append(cur.strip())
        mods=''
        if ops:
            l = ops[-1].split(None,1)
            if len(l)>1 and not op.startswith('s_waitcnt'): ops[-1]=l[0]; mods=l[1]
        self.ops=ops; self.mods=mods
        R=lambda i: regs_of(ops[i]) if i<len(ops) else []
        base = re.sub(r'_(e32|e64|dpp|sdwa)$','',op)
        self.base=base
        if op.startswith('v_mfma'):
            self.kind='mfma'; self.passes = 4 if '16x16x32' in op else 8
            self.dst=R(0); self.srcab=R(1)+R(2); self.srcc=R(3)
            self.wr=set(self.dst); self.rd=set(self.srcab+self.srcc); self.cost=2
        elif op=='s_waitcnt':
            self.kind='wait'
            m=re.search(r'vmcnt\((\d+)\)',rest); self.vm=int(m.group(1)) if m else None
            m=re.search(r'lgkmcnt\((\d+)\)',rest); self.lgkm=int(m.group(1)) if m else None
        elif op=='s_barrier': self.kind='barrier'
        elif op=='s_nop': self.kind='nop'; self.cost=int(ops[0],0)+1
        elif op in ('s_endpgm','s_sleep','s_setprio'): self.kind='other'
        elif op.startswith('s_cbranch') or op=='s_branch':
            self.kind='branch'
            if 'scc' in op: self.rd={'scc'}
            if 'vcc' in op: self.rd={'vcc'}
            if 'exec' in op: self.rd={'exec'}
        elif op.startswith('s_load') or op in('s_memtime','s_memrealtime') or op.startswith('s_atomic'):
            self.kind='smem'; self.wr=set(R(0)); self.rd=set(R(1)+R(2)); self.dst=R(0)
            if op.startswith('s_atomic'): self.rd|=set(R(0))
        elif op.startswith('s_cmp') or op.startswith('s_bitcmp'):
            self.kind='salu'; self.rd=set(R(0)+R(1)); self.wr={'scc'}
        elif op.startswith('s_'):
            self.kind='salu'; self.wr=set(R(0)); self.rd=set(sum((R(i) for i in range(1,len(ops))),[]))
            if op.startswith('s_cselect') or op.startswith('s_addc') or op.startswith('s_subb'): self.rd.add('scc')
            if 'saveexec' in op: self.wr.add('exec'); self.rd.add('exec')
            if not re.match(r's_(mov|movk|mul|cselect|getreg|getpc)',op): self.wr.add('scc')
            if op in ('s_addk_i32','s_mulk_i32'): self.rd|=set(R(0))
        elif op.startswith('ds_read') or '_rtn_' in op or op.startswith('ds_bpermute') or op.startswith('ds_permute') or op.startswith('ds_swizzle'):
            self.kind='ds_read'; self.dst=R(0); self.wr=set(self.dst); self.rd=set(sum((R(i) for i in range(1,len(ops))),[]))
        elif op.startswith('ds_'):
            self.kind='ds_write'; self.rd=set(sum((R(i) for i in range(len(ops))),[]))
        elif op.startswith('buffer_load') or op.startswith('global_load'):
            if re.search(r'\blds\b',mods) or '_lds_' in op:
                self.kind='vm_dma'; self.rd=set(sum((R(i) for i in range(len(ops))),[]))|{'m0'}
            else:
                self.kind='vm_load'; self.dst=R(0); self.wr=set(self.dst); self.rd=set(sum((R(i) for i in range(1,len(ops))),[]))
        elif op.startswith('buffer_store'):
            self.kind='vm_store'; self.data=R(0); self.rd=set(sum((R(i) for i in range(len(ops))),[]))
        elif op.startswith('global_store'):
            self.kind='vm_store'; self.data=R(1); self.rd=set(sum((R(i) for i in range(len(ops))),[]))
        elif op.startswith('buffer_atomic') or op.startswith('global_atomic'):
            self.kind='vm_store'; self.rd=set(sum((R(i) for i in range(len(ops))),[]))
            if 'sc0' in mods:
                self.kind='vm_load'; self.dst=R(0); self.wr=set(self.dst)
        elif op in ('buffer_inv','buffer_wbl2'):
            self.kind='vm_store'
        elif op.startswith('v_'):
            self.kind='trans' if base in TRANS else 'valu'
            if self.kind=='trans': self.cost=2
            nd=1
            if re.match(r'v_(add|sub|subrev|addc|subb)_co_',base): nd=2
            if base.startswith('v_permlane') and 'swap' in base:
                self.wr=set(R(0)+R(1)); self.rd=set(R(0)+R(1))
            else:
                self.wr=set(sum((R(i) for i in range(nd)),[])); self.rd=set(sum((R(i) for i in range(nd,len(ops))),[]))
            if base in ('v_fmac_f32','v_dot2c_f32_bf16','v_writelane_b32') or 'dpp' in op or 'UNUSED_PRESERVE' in mods: self.rd|=set(R(0))
            if base.startswith('v_cmpx'): self.wr.add('exec')
        else:
            raise ValueError("unknown instr: "+text)
    def __repr__(self): return self.text

class Prog:
    def __init__(self): self.l=[]
    def __call__(self, text, tag=None):
        for ln in text.split('\n'):
            if ln.strip() and not ln.strip().startswith(';'): self.l.append(Ins(ln,tag))
        return self
    def ext(self, items):
        for it in items:
            if isinstance(it,Ins): self.l.append(it)
            else: self(it)
    def text(self):
        return "".join((i.text if i.kind=='label' else "    "+i.text)+"\n" for i in self.l)

def check(l, name=""):
    errs=[]; vmq=[]; lq=[]
    hist=[]
    t=0; lastscc=None
    isv=lambda r: r[0] in 'va' and r not in('vcc',)
    for idx,i in enumerate(l):
        if i.kind in('label','directive'): continue
        touch=i.rd|i.wr
        if 'scc' in i.rd:
            ok=('s_add_u32','s_sub_u32') if i.op.startswith(('s_addc','s_subb')) else ('s_cmp','s_bitcmp')
            if lastscc is None or not lastscc.op.startswith(ok): errs.append(f"{name}[{idx}] '{i.text}' reads scc from '{lastscc}'")
        if 'scc' in i.wr: lastscc=i
        for q,nm in((vmq,'vmcnt'),(lq,'lgkmcnt')):
            for o in q:
                if set(o.dst)&touch and not (o.tag=='touch' and i.tag=='touch'): errs.append(f"{name}[{idx}] '{i.text}' touches pending {nm} result of '{o.text}'")
        if i.kind=='wait':
            if i.vm is not None:
                while len(vmq)>i.vm: vmq.pop(0)
            if i.lgkm is not None:
                if any(o.kind=='smem' for o in lq):
                    if i.lgkm==0: lq.clear()
                else:
                    while len(lq)>i.lgkm: lq.pop(0)
        for p,tp in reversed(hist[-24:]):
            d=t-tp
            if d>=20: break
            need=0; why=''
            pv = p.kind in('valu','trans')
            if p.kind=='mfma':
                D=set(p.dst); big={4:8,8:12}[p.passes]
                if i.kind=='mfma':
                    if D&set(i.srcab): need,why=big,'mfma D->A/B'
                    elif D&set(i.srcc):
                        if not(i.srcc==p.dst and i.passes==p.passes): need,why={4:6,8:10}[p.passes],'mfma D->C overlap'
                    elif D&set(i.dst): need,why={4:6,8:10}[p.passes],'mfma D->D waw'
                elif D&touch: need,why=big,'mfma D->other'
                if i.kind in('valu','trans') and set(p.srcc)&i.wr and need<{4:3,8:7}[p.passes]: need,why={4:3,8:7}[p.passes],'mfma C war'
            if pv:
                vw={r for r in p.wr if isv(r)}; sw=p.wr-vw
                if i.kind=='mfma' and vw&i.rd: need,why=max(need,2),'valu->mfma'
                if i.kind=='mfma' and 'exec' in p.wr: need,why=max(need,4),'exec->mfma'
                if i.kind in('valu','trans'):
                    if p.kind=='trans' and vw&i.rd: need,why=max(need,1),'trans->valu'
                    if ('dpp' in i.op or i.base.startswith('v_permlane')) and vw&i.rd: need,why=max(need,2),'valu->dpp/permlane'
                    if i.base in('v_readlane_b32','v_readfirstlane_b32') and vw&i.rd: need,why=max(need,1),'valu->readlane'
                    if sw&i.rd-{'exec'}: need,why=max(need,4 if 'lane' in i.base else 2),'valu sgpr->valu'
                    if 'exec' in p.wr and ('dpp' in i.op): need,why=max(need,5),'exec->dpp'
                    if 'exec' in p.wr and ('lane' in i.base): need,why=max(need,4),'exec->lane'
                    if 'sdwa' in p.op and vw&touch: need,why=max(need,1),'sdwa->valu'
                    if p.base.startswith('v_dot2') and vw&touch and not(i.base==p.base and not (vw&set(sum((regs_of(o) for o in i.ops[1:3]),[])))): need,why=max(need,3),'dot->other'
                if p.kind=='trans' and i.kind in('ds_write','vm_store','ds_read','vm_load') and vw&i.rd: need,why=max(need,1),'trans->mem'
                if p.base.startswith('v_dot2') and i.kind not in('valu','trans') and vw&touch: need,why=max(need,3),'dot->other'
                if i.kind.startswith('vm_') and sw&i.rd: need,why=max(need,5),'valu sgpr->vmem'
                if i.kind=='branch' and sw&i.rd and False: pass
            if p.kind=='salu' and 'm0' in p.wr and i.kind=='vm_dma': need,why=max(need,1),'m0->dma'
            if p.kind=='vm_store' and len(p.data)>=3 and set(p.data)&i.wr: need,why=max(need,2),'store data war'
            if need>d: errs.append(f"{name}[{idx}] '{i.text}' needs {need} states after '{p.text}' ({why}), has {d}")
        if i.kind in('vm_load','vm_dma','vm_store'):
            vmq.append(i)
            if len(vmq)>63: errs.append(f"{name}[{idx}] vmcnt overflow")
        if i.kind in('ds_read','ds_write','smem') and i.tag!='stamp':
            lq.append(i)
        t += i.cost if i.kind=='nop' else 1
        hist.append((i,t))
    return errs

def kd(name, vgpr, accum, sgpr=102):
    return f""".section .rodata,"a"
.p2align 6
.amdhsa_kernel {name}
  .amdhsa_next_free_vgpr {vgpr}
  .amdhsa_next_free_sgpr {sgpr}
  .amdhsa_accum_offset {accum}
  .amdhsa_group_segment_fixed_size 0
  .amdhsa_kernarg_size 112
  .amdhsa_user_sgpr_count 2
  .amdhsa_user_sgpr_kernarg_segment_ptr 1
  .amdhsa_system_sgpr_workgroup_id_x 1
.end_amdhsa_kernel
"""
def head(name):
    return f""".text
.globl {name}
.p2align 8
.type {name},@function
{name}:
"""
def vr(b,n=1,f='v'): return f"{f}{b}" if n==1 else f"{f}[{b}:{b+n-1}]"
def fhex(x):
    import struct
    return "0x%08x"%struct.unpack('<I',struct.pack('<f',x))[0]

def follow(l, taken):
    lab={x.op[:-1]:i for i,x in enumerate(l) if x.kind=='label'}
    out=[]; i=0
    while i<len(l):
        x=l[i]; out.append(x)
        if x.kind=='branch':
            t=x.ops[0]
            if t in lab and lab[t]>i and (x.op=='s_branch' or t in taken): i=lab[t]; continue
        if x.kind=='other' and x.op=='s_endpgm': break
        i+=1
    return out
```

```python
import re
import common
from common import *
from sched import *

WSZ = 0x4000000
WS_F   = 0x2400000
F_EPOCH= WS_F
F_LN   = WS_F+0x1000
F_HA   = WS_F+0x4000
F_HB   = F_HA+0x4000
F_K    = WS_F+0x10000
F_S    = WS_F+0x20000
F_P    = WS_F+0x24000
OOB    = 0x7ff00000
sXP,sOP=4,6
sWS,sWg,sWu,sS,sWd=8,12,16,20,24
sDP=28; sTAG=30
SK=32; sM0=50; sM0S=51; sXO=52; sHO=53; sGK=58; sKO=59
ST0=86
MODE={'stamp':None}
def stamp(j):
    if not MODE['stamp']: return []
    assert j<8
    op='s_memrealtime' if MODE['stamp']=='rt' else 's_memtime'
    return [Ins(f"{op} s[{ST0+2*j}:{ST0+2*j+1}]",'stamp')]
def stamp_flush(p, kidx):
    if not MODE['stamp']: return
    p(f"s_lshl_b32 s60, s2, 2\ns_add_u32 s60, s60, s3\ns_lshl_b32 s60, s60, 6\ns_add_u32 s60, s60, {0x3000000+kidx*65536}\nv_mov_b32 v0, 0\ns_waitcnt lgkmcnt(0)")
    for j in range(8):
        p(f"v_mov_b32 v1, s{ST0+2*j}\nbuffer_store_dword v1, v0, s[{sWS}:{sWS+3}], s60 offen offset:{4*j}")

def remap(l, vshift=0, smap={}):
    out=[]
    for i in l:
        t=i.text.split(';')[0]
        t=re.sub(r'\bv\[(\d+):(\d+)\]',lambda m:f"v[{int(m.group(1))+vshift}:{int(m.group(2))+vshift}]",t)
        t=re.sub(r'\bv(\d+)\b',lambda m:f"v{int(m.group(1))+vshift}",t)
        t=re.sub(r'\bs(\d+)\b',lambda m:f"s{smap.get(int(m.group(1)),int(m.group(1)))}",t)
        out.append(Ins(t,i.tag))
    return out

class Ctx:
    def __init__(self): self.ool=[]; self.n=0
    def poll_issue(self, areg, dreg, so, off=0):
        return Ins(f"buffer_load_dword v{dreg}, v{areg}, s[{sWS}:{sWS+3}], s{so} offen offset:{off} sc1",('poll',self.n+1))
    def poll_check(self, areg, dreg, so, off=0, vtag=15):
        self.n+=1; k=self.n
        self.ool.append(f"""
Lspin{k}:
    s_mov_b32 s85, 0
Lspin{k}_l:
    s_sleep 4
    buffer_load_dword v{dreg}, v{areg}, s[{sWS}:{sWS+3}], s{so} offen offset:{off} sc1
    s_add_u32 s85, s85, 1
    s_cmp_gt_u32 s85, 0x8000
    s_cbranch_scc1 Lspin{k}_r
    s_waitcnt vmcnt(0)
    v_cmp_ne_u32 vcc, v{dreg}, v{vtag}
    s_cbranch_vccnz Lspin{k}_l
Lspin{k}_r:
    s_waitcnt vmcnt(0)
    s_branch Lback{k}
""")
        return [WaitVM([('poll',k)]), Ins(f"v_cmp_ne_u32 vcc, v{dreg}, v{vtag}"), Ins(f"s_cbranch_vccnz Lspin{k}"), Ins(f"Lback{k}:")]
```

```python
from pcommon import *
K1C = -2*math.sqrt(2/math.pi)*LOG2E
GK0 = K1C; GK1 = K1C*0.044715
RING=16; NR=3; HP=40; ACC=64
F_HC=F_HA+0x8000
sM2=70; sWO=71; sH2=72; sPO=73; sFA=74; sFP=75; sFQ=76; sFS=77; sFX=78; sTW=79
R2BASE=8192
def xreg(b,t):
    i=4*b+t
    return f"a[{4*i}:{4*i+3}]" if i<64 else f"v[{224+4*(i-64)}:{224+4*(i-64)+3}]"
def hreg(b,t,lo=0,n=4):
    i=2*b+t
    return (f"a[{4*i+lo}:{4*i+lo+n-1}]" if i<64 else f"v[{224+4*(i-64)+lo}:{224+4*(i-64)+lo+n-1}]")

def setup(p):
    w=3; g=2
    p(f"""
    s_and_b32 s60, s2, 7                     ; xcd
    s_lshr_b32 s61, s2, 3                    ; idx
    s_and_b32 s62, s60, 1
    s_lshl_b32 s62, s62, 2
    s_and_b32 s63, s61, 3
    s_add_u32 s62, s62, s63                  ; mt
    s_lshl_b32 s62, s62, 2
    s_add_u32 s62, s62, s3                   ; tok64
    s_lshr_b32 s67, s60, 1                   ; ks
    s_lshl_b32 s68, s62, 2
    s_add_u32 s68, s68, s67
    s_lshl_b32 s68, s68, 3
    s_lshr_b32 s69, s61, 2                   ; slice 0..7
    s_add_u32 s68, s68, s69
    s_lshl_b32 s68, s68, 4
    s_add_u32 s68, s68, {F_HA}
    v_mov_b32 v14, {OOB}
    v_writelane_b32 v14, s68, 0
    v_writelane_b32 v14, s84, 1
    s_lshl_b32 s31, s62, 7
    s_add_u32 s31, s31, {F_LN}
    s_lshl_b32 s60, s67, 1
    s_lshr_b32 s63, s61, 4                   ; q
    s_add_u32 s60, s60, s63
    s_bfe_u32 s69, s61, 0x20002              ; i
    s_mul_i32 s{sXO}, s62, {18*4096}
    s_mul_i32 s63, s62, 144
    s_mul_i32 s64, s60, 18
    s_add_u32 s63, s63, s64
    s_add_u32 s63, s63, {WS_H//4096}
    s_lshl_b32 s64, s69, 2
    s_add_u32 s64, s64, s63
    s_lshl_b32 s{sHO}, s64, 12
    s_add_u32 s{sHO+1}, s{sHO}, 4096
    s_add_u32 s{sHO+2}, s{sHO}, 8192
    s_add_u32 s{sHO+3}, s{sHO}, 12288
    s_lshr_b32 s64, s69, 1
    s_add_u32 s64, s64, s63
    s_add_u32 s64, s64, 16
    s_lshl_b32 s64, s64, 12
    s_and_b32 s65, s69, 1
    s_lshl_b32 s65, s65, 10
    s_add_u32 s{sHO+4}, s64, s65
    s_mul_i32 s63, s60, 1152
    s_lshl_b32 s64, s69, 8
    s_add_u32 s64, s64, s63
    s_and_b32 s65, s61, 3
    s_lshl_b32 s65, s65, 1
    s_lshr_b32 s66, s3, 1
    s_add_u32 s65, s65, s66
    s_mul_i32 s68, s65, 72
    v_add_u32 v57, s68, v0
    v_mul_u32_u24 v57, 9216, v57
    s_add_u32 s68, s64, 128
    v_add_u32 v57, s68, v57
    v_add_u32 v58, {64*9216}, v57
    s_lshl_b32 s68, s65, 3
    s_add_u32 s68, s68, {512-8}
    v_add_u32 v59, s68, v0
    v_mul_u32_u24 v59, 9216, v59
    v_add_u32 v59, s64, v59
    v_cmp_gt_u32 vcc, 8, v0
    v_mov_b32 v60, {OOB}
    s_lshl_b32 s68, s69, 3
    v_cndmask_b32 v58, v59, v58, vcc
    v_cmp_gt_u32 vcc, 16, v0
    s_add_u32 s68, s68, s65
    s_mul_i32 s68, s68, 18
    v_cndmask_b32 v58, v60, v58, vcc
    v_add_u32 v59, s68, v0
    v_mul_u32_u24 v59, 9216, v59
    s_add_u32 s68, s63, 1024
    v_add_u32 v59, s68, v59
    v_cmp_gt_u32 vcc, 18, v0
    s_mul_i32 s65, s3, {8*9216}
    s_add_u32 s64, s64, s65
    v_cndmask_b32 v59, v60, v59, vcc
    s_lshl_b32 s65, s69, 5
    s_add_u32 s65, s65, s63
    s_add_u32 s65, s65, 1024
    s_mul_i32 s66, s66, {32*9216}
    s_add_u32 s65, s65, s66
    s_lshl_b32 s{sM0}, s3, 11
    s_lshl_b32 s{sM0S}, s3, 10
    s_and_b32 s66, s3, 1
    s_lshl_b32 s66, s66, 1
    s_mov_b32 s{sGK}, {fhex(GK1)}
    v_mov_b32 v8, {fhex(GK0)}
    v_lshlrev_b32 v1, 4, v0
    v_lshlrev_b32 v60, 7, v0                 ; lane*128
    v_lshrrev_b32 v10, 3, v0                 ; row
    v_bfe_u32 v11, v0, 4, 1
    v_or_b32 v11, s66, v11
    v_bfe_u32 v12, v0, 1, 2
    v_xor_b32 v11, v11, v12
    v_and_b32 v12, 1, v0
    v_lshlrev_b32 v12, 4, v12
    v_mul_u32_u24 v2, 9216, v10
    v_lshl_add_u32 v2, v11, 5, v2
    v_add3_u32 v2, v2, v12, s64
    v_bfe_u32 v10, v0, 1, 2
    v_bfe_u32 v11, v0, 3, 1
    v_lshl_add_u32 v10, v11, 3, v10
    v_bfe_u32 v11, v0, 4, 1
    v_lshl_add_u32 v10, v11, 2, v10
    v_bfe_u32 v11, v0, 5, 1
    v_lshl_add_u32 v10, v11, 4, v10
    v_mul_u32_u24 v3, 9216, v10
    v_add3_u32 v3, v3, v12, s65
    v_lshrrev_b32 v10, 4, v0
    v_bfe_u32 v11, v0, 2, 2
    v_and_b32 v12, 3, v0
    v_lshlrev_b32 v12, 3, v12
    v_lshl_add_u32 v4, v10, 11, v12
    v_lshl_add_u32 v4, v11, 7, v4
    v_bfe_u32 v13, v0, 3, 2
    v_lshl_add_u32 v4, v13, 5, v4
    v_xor_b32 v5, 32, v4
    v_xor_b32 v6, 64, v4
    v_xor_b32 v7, 96, v4
    v_bfe_u32 v11, v0, 2, 3                  ; 4*(g&1)+e
    v_lshl_add_u32 v9, v11, 5, v12
    v_lshrrev_b32 v10, 5, v0
    v_lshl_add_u32 v9, v10, 9, v9
    v_mul_u32_u24 v10, 3072, v10
    v_lshl_add_u32 v10, v11, 7, v10
    v_lshl_add_u32 v10, v13, 5, v10
    v_add_u32 v56, v10, v12
    v_add_u32 v56, {R2BASE}, v56
    s_lshl_b32 s63, s61, 2
    s_add_u32 s63, s63, s3
    s_mul_i32 s63, s63, {81*128}
    s_mul_i32 s{sWO}, s67, {1152*1152}
    s_add_u32 s{sTW}, s63, s{sWO}
    s_add_u32 s{sTW}, s{sTW}, 2048
    """)
    for b in range(18): p(f"s_mov_b32 s{SK+b}, {b*32*9216}")
def setup_g2(p):
    p(f"""
    s_and_b32 s60, s2, 1
    s_lshl_b32 s60, s60, 3
    s_and_b32 s63, s61, 7
    s_add_u32 s60, s60, s63                  ; mt128
    s_lshr_b32 s61, s61, 3                   ; nt
    s_lshl_b32 s62, s60, 1
    s_lshr_b32 s63, s3, 1
    s_add_u32 s62, s62, s63                  ; tok64
    s_lshl_b32 s64, s62, 2
    s_add_u32 s64, s64, s67
    s_lshl_b32 s64, s64, 7
    s_add_u32 s{sFA}, s64, {F_HA}
    s_and_b32 s63, s3, 1
    s_lshl_b32 s63, s63, 11                  ; tb0*1024
    s_mul_i32 s64, s62, 144
    s_mul_i32 s65, s67, 36
    s_add_u32 s64, s64, s65
    s_lshl_b32 s64, s64, 12
    s_add_u32 s64, s64, s63
    s_add_u32 s{sH2}, s64, {WS_H}
    s_lshl_b32 s64, s67, 5
    s_add_u32 s64, s64, s62
    s_mul_i32 s64, s64, 18
    s_mul_i32 s65, s61, 6
    s_add_u32 s64, s64, s65
    s_lshl_b32 s64, s64, 12
    s_add_u32 s64, s64, s63
    s_add_u32 s{sPO}, s64, {WS_P}
    s_mul_i32 s64, s60, 3
    s_add_u32 s64, s64, s61
    s_lshl_b32 s64, s64, 9
    s_add_u32 s64, s64, {F_P}
    s_lshl_b32 s66, s3, 7
    s_lshl_b32 s68, s67, 4
    s_add_u32 s66, s66, s68
    s_add_u32 s{sFP}, s64, s66
    s_lshl_b32 s66, s67, 7
    s_add_u32 s{sFQ}, s64, s66
    s_lshl_b32 s62, s60, 1
    s_lshr_b32 s63, s67, 1
    s_add_u32 s62, s62, s63
    s_mul_i32 s62, s62, 18
    s_add_u32 s62, s62, s65
    s_lshr_b32 s64, s3, 1
    s_add_u32 s62, s62, s64
    s_lshl_b32 s62, s62, 2
    s_and_b32 s63, s67, 1
    s_lshl_b32 s63, s63, 1
    s_and_b32 s66, s3, 1
    s_add_u32 s63, s63, s66
    s_add_u32 s62, s62, s63
    s_lshl_b32 s{sFS}, s62, 10
    s_lshl_b32 s62, s60, 2
    s_add_u32 s62, s62, s67
    s_lshl_b32 s62, s62, 1
    s_add_u32 s62, s62, s66
    s_mul_i32 s62, s62, {16*1152}
    s_add_u32 s65, s65, s64
    s_lshl_b32 s65, s65, 6
    s_add_u32 s{sFX}, s62, s65
    s_mul_i32 s64, s61, 384
    s_mul_i32 s65, s3, {8*1152}
    s_add_u32 s64, s64, s65
    s_add_u32 s64, s64, 2048
    s_mul_i32 s{sM2}, s3, 3072
    s_add_u32 s{sM2}, s{sM2}, {R2BASE}
    v_lshrrev_b32 v10, 3, v0
    v_lshrrev_b32 v11, 4, v0
    v_bfe_u32 v12, v0, 1, 2
    v_xor_b32 v11, v11, v12
    v_and_b32 v12, 1, v0
    v_lshlrev_b32 v12, 4, v12
    v_mul_u32_u24 v10, 1152, v10
    v_lshl_add_u32 v10, v11, 5, v10
    v_add3_u32 v61, v10, v12, s64
    v_and_b32 v62, 0x70, v1
    """)

def gelu_ops(c, aset):
    ops=[]; base=ACC+32*aset
    for t in range(4):
        o=[]
        g=[base+4*t+j for j in range(4)]; u=[base+16+4*t+j for j in range(4)]
        tm=[10+(4*t+j)%4 for j in range(4)]
        for j in range(4):
            o+= [f"v_mul_f32 v{tm[j]}, v{g[j]}, v{g[j]}", f"v_mul_f32 v{u[j]}, v{u[j]}, v{g[j]}",
                 f"v_fma_f32 v{tm[j]}, v{tm[j]}, s{sGK}, v8", f"v_mul_f32 v{g[j]}, v{tm[j]}, v{g[j]}", f"v_exp_f32 v{g[j]}, v{g[j]}"]
        for j in range(4): o+=[f"v_add_f32 v{g[j]}, 1.0, v{g[j]}", f"v_rcp_f32 v{g[j]}, v{g[j]}"]
        for j in range(4): o.append(f"v_mul_f32 v{u[j]}, v{u[j]}, v{g[j]}")
        d=HP+4*t+2*(c&1) if c<8 else HP+2*t
        o+=[f"v_cvt_pk_bf16_f32 v{d}, v{u[0]}, v{u[1]}", f"v_cvt_pk_bf16_f32 v{d+1}, v{u[2]}, v{u[3]}"]
        if c<8 and c&1: o.append(f"buffer_store_dwordx4 v[{HP+4*t}:{HP+4*t+3}], v1, s[{sWS}:{sWS+3}], s{sHO+c//2} offen offset:{1024*t} sc1")
        if c==8 and t&1: o.append(f"buffer_store_dwordx4 v[{HP+2*t-2}:{HP+2*t+1}], v1, s[{sWS}:{sWS+3}], s{sHO+4} offen offset:{1024*(t-1)} sc1")
        ops.append([Ins(x,('hst',c//2)) for x in o])
    return ops

def flag_store(off): return Ins(f"buffer_store_dword v15, v14, s[{sWS}:{sWS+3}], s80 offen sc1",'flag'), Ins(f"s_mov_b32 s80, {off}")
def touch(areg, srd_, so, fl, off=0): return Ins(f"buffer_load_dword v63, v{areg}, s[{srd_}:{srd_+3}], {so} offen offset:{off} {fl}",'touch')

class G1:
    def __init__(s, opt):
        s.opt=opt
        HU=[]
        for j in range(9):
            for c in range(4):
                for m in range(2): HU.append((c,m,j))
        def seg(c,j0,j1):
            for j in range(j0,j1):
                for m in range(2): HU.append((c,m,j))
        seg(4,0,3); seg(5,0,3); seg(4,3,9); seg(6,0,3); seg(7,0,3); seg(5,3,9); seg(6,3,9); seg(7,3,9); seg(8,0,9)
        s.HU=HU; nH=len(HU)
        aset={0:0,1:1,2:2,3:3,4:4,5:0,6:1,7:2,8:3}; s.aset=aset
        def slot_addr(c,m,j,k):
            b=2*j+k
            if c<4: return b*8192+m*1024
            if c<8: return ((18+b)%20)*8192+m*1024
            return ((36+j//2)%20)*8192+(j&1)*4096+k*2048+m*1024
        win={r:0 for r in (4,5,6,7,9)}
        def reads(h):
            c,m,j=HU[h]; r=9 if c==8 else 4+c%4; R=RING+8*(h%NR); o=[]
            w=slot_addr(c,m,j,0)>>16
            if w!=win[r]:
                o.append(Ins(f"v_add_u32 v{r}, {((w-win[r])*65536)&0xffffffff}, v{r}")); win[r]=w
            d2=256 if c==8 else 512
            for k in range(2):
                a=slot_addr(c,m,j,k)-w*65536
                o.append(Ins(f"ds_read_b64_tr_b16 v[{R+4*k}:{R+4*k+1}], v{r} offset:{a}"))
                o.append(Ins(f"ds_read_b64_tr_b16 v[{R+4*k+2}:{R+4*k+3}], v{r} offset:{a+d2}"))
            return o
        XF=opt.get('xf','sc1'); WF=opt.get('wf','')
        def xload(b):
            o=[[Ins(f"buffer_load_dwordx4 {xreg(b,t)}, v1, s[{sWS}:{sWS+3}], s{sXO} offen offset:{1024*t} {XF}",('x',b))] for t in range(4)]
            if b<17: o[3].append(Ins(f"s_add_u32 s{sXO}, s{sXO}, 4096"))
            return o
        def wload(grp,b):
            sl=(18*grp+b)%20
            return [[Ins(f"s_add_u32 m0, s{sM0}, {sl*8192}")],
                    [Ins(f"buffer_load_dwordx4 v2, s[{sWg}:{sWg+3}], s{SK+b} offen {WF} lds",('w',grp,b))],
                    [Ins(f"buffer_load_dwordx4 v2, s[{sWu}:{sWu+3}], s{SK+b} offen offset:1024 {WF} lds",('w',grp,b))]]
        def sload(j):
            return [[Ins(f"s_add_u32 m0, s{sM0S}, {slot_addr(8,0,j,0)}")],
                    [Ins(f"buffer_load_dwordx4 v3, s[{sS}:{sS+3}], s{SK+2*j} offen {WF} lds",('s',j))]]
        NX0=opt.get('nx0',2)
        s.pro=sum((g for b in range(NX0) for g in xload(b)),[])
        s.pro.append(Ins("s_barrier")); s.pro+=reads(0)+reads(1)
        pre={}; post={}; mf=[]
        s.pre,s.post,s.mf=pre,post,mf
        for h,(c,m,j) in enumerate(HU):
            R=RING+8*(h%NR)
            for t in range(4):
                d=ACC+32*aset[c]+16*m+4*t
                for k in range(2):
                    cc="0" if (j==0 and k==0) else f"v[{d}:{d+3}]"
                    mf.append(Ins(f"v_mfma_f32_16x16x32_bf16 v[{d}:{d+3}], v[{R+4*k}:{R+4*k+3}], {xreg(2*j+k,t)}, {cc}"))
            pre.setdefault(8*h,[]).append(Ins(f"s_waitcnt lgkmcnt({4 if h+1<nH else 0})"))
            if h+2<nH:
                r=reads(h+2)
                if len(r)==5: pre[8*h].insert(0,r.pop(0))
                post.setdefault(8*h,[]).extend(r[:2]); post.setdefault(8*h+2,[]).extend(r[2:])
        for j in range(9): pre[64*j].append(WaitVM([('x',2*j),('x',2*j+1)]))
        pre[0]+=stamp(2)
        XE=opt.get('xend',40)
        s.place(sum((xload(b) for b in range(NX0,18)),[]),0,XE)
        ht=opt.get('ht',18)
        post.setdefault(8*ht+7,[]).append(touch(57,sS,0,'nt')); post.setdefault(8*ht+15,[]).append(touch(58,sS,0,'nt'))
        hk=opt.get('hk',33)
        for k in range(4): post.setdefault(8*(hk+k)+7,[]).append(Ins(f"buffer_store_dwordx4 v[{HP+4*k}:{HP+4*k+3}], v192, s[{sWS}:{sWS+3}], s{sKO} offen offset:{1024*k} sc1",'kst'))
        b1,b2=opt.get('bars',(40,62))
        pre[8*b1].append(WaitVM([],True))
        n1=2+2*((b1+1)//8)
        n1=min(n1,opt.get('n1',10))
        s.place(wload(0,16)+wload(0,17)+[[Ins("v_add_u32 v2, 128, v2")]]+sum((wload(1,b) for b in range(n1)),[]),max(XE,b1),b2)
        pre[8*b2].append(WaitVM([('w',0,16),('w',0,17)]+[('w',1,b) for b in range(opt.get('n2',6))],True))
        assert b2==62
        s.place(sum((wload(1,b) for b in range(n1,18)),[]),63,76)
        pre[8*82].append(WaitVM([('w',1,b) for b in range(18)],True))
        post.setdefault(8*83+4,[]).append(touch(59,sS,0,'nt'))
        post.setdefault(8*84+4,[]).append(touch(60,sWd,f"s{sTW}",'nt'))
        post.setdefault(8*85+4,[]).append(touch(60,sWd,f"s{sTW}",'nt',17*128))
        pre[8*108].append(WaitVM([],True))
        s.place(sum((sload(j) for j in range(9)),[]),108,126)
        hf=opt.get('hfa',128)
        a,b=flag_store(0)
        pre[8*hf]+=[WaitVM([('hst',1)])]; post.setdefault(8*hf-2,[]).append(b); post.setdefault(8*hf+1,[]).append(a)
        post.setdefault(8*hf+4,[]).append(touch(60,sWS,f"s{sHO}",''))
        pre[8*142].append(WaitVM([('s',j) for j in range(9)],True))
        pre[8*72]+=stamp(3)
        G=lambda c:gelu_ops(c,aset[c])
        s.streams=[(8*(66+12*c)+1,8*(78+12*c),sum(G(c),[])) for c in range(6)]
        g6=G(6); s.streams+=[(8*138+1,8*144,g6[0]+g6[1]),(8*144,8*150,g6[2]+g6[3])]
        s.streams.append((8*150,8*162,sum(G(7),[])))
        s.gS=sum(G(8),[])
    def place(s,groups,h0,h1,offs=(1,3,4,5,6)):
        gaps=[8*h+o for h in range(h0,h1) for o in offs if not (s.post.get(8*h+o))]
        assert len(groups)<=len(gaps),(len(groups),len(gaps))
        for i,g in enumerate(groups): s.post.setdefault(gaps[i*len(gaps)//len(groups)],[]).extend(g)

SEQ=[18*Q+4*i for Q in range(2) for i in range(4)]+[18*Q+4*i+2 for Q in range(2) for i in range(4)]+[16,34]
RG=[192,208,16]; AW=[[4,5,6,7],[32,33,34,35],[36,37,38,39]]; PK=40
def add_g2(s, cx):
    opt=s.opt; pre,post,mf=s.pre,s.post,s.mf; H0=162
    NSEC=opt.get('nsec',2)
    HU=[(j,cp) for j in range(18-NSEC) for cp in range(6)]+[(j,cp) for cp in range(6) for j in range(18-NSEC,18)]
    nH=len(HU); blk=lambda n:SEQ[n//2]+(n&1)
    def reads(h):
        j,cp=HU[h]; R=RG[h%3]; o=[]
        for x in range(2):
            ct=2*cp+x
            for k in range(2):
                sl=(2*j+k)%12; r=AW[sl//4][ct&3]; a=(sl%4)*12288+(ct>>2)*1024; d=R+8*x+4*k
                o.append(Ins(f"ds_read_b64_tr_b16 v[{d}:{d+1}], v{r} offset:{a}"))
                o.append(Ins(f"ds_read_b64_tr_b16 v[{d+2}:{d+3}], v{r} offset:{a+6144}"))
        return o
    HF=opt.get('hf','sc1'); WF=opt.get('wf2','')
    DV=[61,2,3]
    def wl(n):
        o=[[Ins(f"s_add_u32 m0, s{sM2}, {(n%12)*12288}"),Ins(f"s_add_u32 s81, s{sWO}, {blk(n)*32*1152}")]]
        for jc in range(3): o.append([Ins(f"buffer_load_dwordx4 v{DV[jc]}, s[{sWd}:{sWd+3}], s81 offen offset:{1024*jc} {WF} lds",('w2',n))])
        return o
    def hl(n):
        o=[[Ins(f"s_add_u32 s82, s{sH2}, {blk(n)*4096}")]]
        if n<32:
            for t in range(2): o.append([Ins(f"buffer_load_dwordx4 {hreg(n,t)}, v1, s[{sWS}:{sWS+3}], s82 offen offset:{1024*t} {HF}",('h2',n))])
        else:
            for sub in range(2):
                for t in range(2): o.append([Ins(f"buffer_load_dwordx2 {hreg(n,t,2*sub,2)}, v1, s[{sWS}:{sWS+3}], s82 offen offset:{1024*sub+8*t}",('h2',n))])
        return o
    G=lambda h:8*(H0+h)
    for h,(j,cp) in enumerate(HU):
        R=RG[h%3]
        for x in range(2):
            for t in range(2):
                d=ACC+8*(2*cp+x)+4*t
                for k in range(2):
                    cc="0" if (j==0 and k==0) else f"v[{d}:{d+3}]"
                    mf.append(Ins(f"v_mfma_f32_16x16x32_bf16 v[{d}:{d+3}], v[{R+8*x+4*k}:{R+8*x+4*k+3}], {hreg(2*j+k,t)}, {cc}"))
        pre.setdefault(G(h),[]).append(Ins(f"s_waitcnt lgkmcnt({8 if h+1<nH else 0})"))
    pre[G(-1)]=[Ins("s_waitcnt lgkmcnt(8)")]
    for h in range(-2,nH-2):
        r=reads(h+2)
        for gi,a in zip((0,1,3,5),(0,2,4,6)): post.setdefault(G(h)+gi,[]).extend(r[a:a+2])
    tr=[[Ins("v_mov_b32 v4, v56"),Ins("v_xor_b32 v5, 32, v56")],[Ins("v_xor_b32 v6, 64, v56"),Ins("v_xor_b32 v7, 96, v56")],
        [Ins("v_subrev_u32 v2, 896, v61"),Ins("v_subrev_u32 v3, 1792, v61")],[cx.poll_issue(62,57,sFA)]]
    s.place(tr,144,146)
    pre[G(-14)]+=cx.poll_check(62,57,sFA)
    NP=opt.get('np2',6)
    s.place(sum((wl(n) for n in range(2)),[]),146,148)
    s.place(hl(0)+hl(1)+sum((wl(n)+hl(n) for n in range(2,NP)),[]),148,158)
    pre[G(-2)].append(WaitVM([(k,n) for n in range(min(NP,4)) for k in('w2','h2')],True))
    pre[G(0)]+=stamp(4)
    aw=[[Ins(f"v_add_u32 v{AW[w][c]}, {49152*w}, v{AW[0][c]}") for c in (c0,c0+1)] for w in (1,2) for c0 in (0,2)]
    for i,g in enumerate(aw): post.setdefault(G(i)+7,[]).extend(g[:1]); post.setdefault(G(i+4)+7,[]).extend(g[1:])
    bars={10:range(4,6),16:range(6,8)}
    for e in range(2,9): bars[12*e-2]=range(4*e,4*e+4)
    if NSEC>2: bars[6*(18-NSEC)+(NSEC-2)-2]=bars.pop(94)
    for h,bl in bars.items(): pre[G(h)].append(WaitVM([(k,n) for n in bl for k in('w2','h2')],True))
    need={n:h for h,bl in bars.items() for n in bl}
    hB=opt.get('hB',22); hC=opt.get('hC',66)
    E=opt.get('e2',86); items=[]
    for n in range(NP,36):
        ew=2 if n>=10 else 0
        if n>=12:
            last=6*((n-12)//2)+5
            ew=min(max(q, last+3 if q<last else q) for q in bars if q>=last-1)
        eh=0 if n<16 else (hB if n<32 else hC)
        items+=[(ew,g,n) for g in wl(n)]+[(eh,g,n) for g in hl(n)]
    gaps=[(h,o) for h in range(0,100) for o in (2,4,6)]
    gi=0; tot=len(items)
    for i,(e,g,n) in enumerate(items):
        gi=max(gi, i*3*E//tot, 3*e)
        h,o=gaps[gi]; assert h<=need[n]-opt.get('margin2',4),(n,h,need[n])
        post.setdefault(G(h)+o,[]).extend(g); gi+=1
    hlast=h
    gE=opt.get('gE',44)
    s.streams.append((G(0)+4,G(gE),s.gS))
    for (hh,tag,off,to) in ((opt.get('hfb',9),('hst',3),0x4000,sHO+2),(gE+9,('hst',4),0x8000,None)):
        a,b=flag_store(off)
        pre[G(hh)]+=[WaitVM([tag])]; post.setdefault(G(hh-1)+7,[]).append(b); post.setdefault(G(hh)+7,[]).append(a)
        if to and opt.get('htouch',1): post.setdefault(G(hh+1)+7,[]).append(touch(60,sWS,f"s{to}",''))
    for hh in (hB,hC):
        post.setdefault(G(hh-5)+7,[]).extend([Ins(f"s_add_u32 s{sFA}, s{sFA}, 0x4000"),cx.poll_issue(62,57,sFA)])
        pre[G(hh)]+=cx.poll_check(62,57,sFA)
    OWN=R2BASE
    su=[f"v_bfe_u32 v10, v1, 8, 1",f"v_bfe_u32 v11, v1, 9, 1","v_lshl_add_u32 v10, v10, 1, v11","v_and_b32 v11, 0xf0, v1","v_lshl_add_u32 v58, v10, 8, v11",
        "s_mul_i32 s83, s3, 12288",f"s_add_u32 s83, s83, {OWN}","v_add_u32 v59, s83, v58",
        "v_mul_u32_u24 v60, 72, v11","v_lshrrev_b32 v10, 8, v1","v_lshl_add_u32 v60, v10, 4, v60",
        "s_bfe_u32 s83, s2, 0x20001","s_mul_i32 s84, s83, 12288","s_lshl_b32 s83, s3, 10","s_add_u32 s84, s84, s83",f"s_add_u32 s84, s84, {OWN}","v_add_u32 v9, s84, v1",
        f"s_mov_b32 s{sWg}, s{sXP}",f"s_mov_b32 s{sWg+1}, s{sXP+1}",f"s_mov_b32 s{sWg+2}, {XB}",
        f"s_mov_b32 s{sWu}, s{sOP}",f"s_mov_b32 s{sWu+1}, s{sOP+1}",f"s_mov_b32 s{sWu+2}, {XB}",
        "s_bfe_u32 s83, s2, 0x20001","s_cmp_eq_u32 s83, s3",f"s_cselect_b32 s84, {OOB}, 0","v_or_b32 v58, s84, v58"]
    for i in range(1,4): su+=[f"s_add_u32 s84, s83, {i}","s_and_b32 s84, s84, 3",f"s_mul_i32 s84, s84, {XB}",f"s_add_u32 s84, s84, s{sFS}",f"s_add_u32 s{31+i}, s84, {WS_P}"]
    su+=[f"s_add_u32 s35, s{sFS}, {WS_S}",f"s_mov_b32 s36, {F_S}","v_and_b32 v61, 0x30, v1","v_mov_b32 v14, 0"]
    XR=160; SR=172; OR=184
    su+=[f"buffer_load_dwordx4 v[{XR+4*k}:{XR+4*k+3}], v60, s[{sWg}:{sWg+3}], s{sFX} offen offset:{128*k}" for k in range(3)]
    s.streams.append((G(max(gE+11,hlast+1)),G(96),[Ins(x,'xl') for x in su]))
    for cp in range(6):
        ops=[]
        for t in range(2):
            a0=ACC+8*(2*cp)+4*t; a1=a0+8; d=PK+4*((2*cp+t)%4)
            ops+=[f"v_cvt_pk_bf16_f32 v{d}, v{a0}, v{a0+1}",f"v_cvt_pk_bf16_f32 v{d+2}, v{a1}, v{a1+1}",
                  f"v_cvt_pk_bf16_f32 v{d+1}, v{a0+2}, v{a0+3}",f"v_cvt_pk_bf16_f32 v{d+3}, v{a1+2}, v{a1+3}"]
        for t in range(2):
            d=PK+4*((2*cp+t)%4)
            ops+=[f"v_permlane16_swap_b32 v{d}, v{d+2}",f"v_permlane16_swap_b32 v{d+1}, v{d+3}",
                  f"buffer_store_dwordx4 v[{d}:{d+3}], v58, s[{sWS}:{sWS+3}], s{sPO} offen offset:{1024*t} sc1",
                  f"ds_write_b128 v59, v[{d}:{d+3}] offset:{2048*cp+1024*t}"]
        if cp<5: ops.append(f"s_add_u32 s{sPO}, s{sPO}, 4096")
        hd=6*(18-NSEC)+NSEC*(cp+1)
        s.streams.append((G(hd)+3, 99999, [Ins(o,('pst',cp//4)) for o in ops]))
    return XR,SR

def final(cx, XR, SR, opt):
    import k3
    o=[]; I=lambda t,tag=None:o.append(Ins(t,tag))
    o+=stamp(5)
    P=64; OWN=112; T=128
    I("s_mov_b64 exec, 1")
    o.append(WaitVM([('pst',0)])); I(f"buffer_store_dword v15, v14, s[{sWS}:{sWS+3}], s{sFP} offen sc1",'flag')
    o.append(WaitVM([('pst',1)])); I(f"buffer_store_dword v15, v14, s[{sWS}:{sWS+3}], s{sFP} offen offset:64 sc1",'flag')
    I("s_mov_b64 exec, -1")
    o.append(cx.poll_issue(1,57,36))
    I("s_waitcnt lgkmcnt(0)"); I("s_barrier")
    for k in range(3): I(f"ds_read_b128 v[{OWN+4*k}:{OWN+4*k+3}], v9 offset:{4096*k}")
    o+=cx.poll_check(1,57,36)
    for k in range(3):
        I(f"buffer_load_dwordx4 v[{SR+4*k}:{SR+4*k+3}], v1, s[{sWS}:{sWS+3}], s35 offen sc1",('sl',k))
        if k<2: I("s_add_u32 s35, s35, 8192")
    def ploads(k):
        for i in range(3):
            I(f"buffer_load_dwordx4 v[{P+16*k+4*i}:{P+16*k+4*i+3}], v1, s[{sWS}:{sWS+3}], s{32+i} offen sc1",('pl',k))
            if k<2: I(f"s_add_u32 s{32+i}, s{32+i}, 8192")
    def math(k):
        o.append(WaitVM([('pl',k),('sl',k),'xl']))
        q=Prog(); k3.final_math(q,[OWN+4*k,P+16*k,P+16*k+4,P+16*k+8],SR+4*k,XR+4*k,T); o.extend(q.l)
        I(f"buffer_store_dwordx4 v[{XR+4*k}:{XR+4*k+3}], v60, s[{sWu}:{sWu+3}], s{sFX} offen offset:{128*k}",'out')
    o.append(cx.poll_issue(61,57,sFQ)); o+=cx.poll_check(61,57,sFQ)
    o+=stamp(6)
    ploads(0); ploads(1)
    o.append(cx.poll_issue(61,57,sFQ,64)); o+=cx.poll_check(61,57,sFQ,64)
    ploads(2)
    I("s_waitcnt lgkmcnt(0)")
    math(0); math(1); math(2)
    return o
```

```python
from pcommon import *
ROWB=544
KLDS=131072; CNT=163824
B=64

def ln_issue(p):
    p(f"""
    v_and_b32 v{B+2}, 7, v0                  ; n8
    v_lshrrev_b32 v{B+3}, 3, v0              ; j
    v_mul_u32_u24 v{B+4}, 1152, v{B+2}
    v_lshl_add_u32 v{B+4}, v{B+3}, 4, v{B+4}
    s_mul_i32 s80, s2, {8*1152}
    v_add_u32 v{B+4}, s80, v{B+4}
    s_mul_i32 s80, s3, 384
    s_add_u32 s81, s80, 384
    s_cmp_eq_u32 s3, 2
    s_cselect_b32 s81, 0, s81
    s_add_u32 s82, s81, 384
    s_cmp_eq_u32 s3, 1
    s_cselect_b32 s82, 0, s82
    v_add_u32 v{B+5}, s81, v{B+4}
    v_add_u32 v{B+6}, s82, v{B+4}
    v_add_u32 v{B+4}, s80, v{B+4}
    """)
def ln_loads(p):
    for k in range(9):
        p(f"global_load_dwordx4 v[{B+16+4*k}:{B+19+4*k}], v{B+4+k//3}, s[{sXP}:{sXP+1}] offset:{128*(k%3)} nt")
def kgen_addr(p):
    p(f"""
    s_mul_hi_u32 s80, s2, {(2**32+2)//3}
    s_mul_i32 s81, s80, 3
    s_sub_u32 s81, s2, s81
    s_mul_i32 s81, s81, 3
    s_add_u32 s81, s81, s3                   ; slot
    s_lshl_b32 s83, s80, 3
    s_add_u32 s83, s83, s81
    s_add_u32 s82, s80, 512
    s_cmp_eq_u32 s81, 8
    s_cselect_b32 s83, s82, s83              ; channel
    s_lshl_b32 s84, s80, 7
    s_lshl_b32 s81, s81, 3
    s_add_u32 s84, s84, s81
    s_add_u32 s84, s84, {F_K}
    s_lshl_b32 s{sKO}, s83, 12
    s_add_u32 s{sKO}, s{sKO}, {WS_K}
    s_cmp_lt_u32 s2, 192
    s_cselect_b32 s81, s3, 3
    s_cmp_lt_u32 s81, 3
    s_cselect_b32 s84, s84, {OOB}
    s_cselect_b32 s{sKO}, s{sKO}, 0
    s_cselect_b32 s83, s83, 0
    s_lshl_b32 s80, s83, 8
    v_lshl_add_u32 v{B+7}, v0, 2, s80
    s_lshl_b32 s80, s83, 1
    v_mov_b32 v{B+8}, s80
    """)
def kgen_loads(p):
    r=B+56
    p(f"""
    global_load_dword v{r}, v{B+7}, s[60:61] nt
    global_load_ushort v{r+4}, v{B+8}, s[68:69] nt
    global_load_dword v{r+1}, v{B+7}, s[62:63] nt
    global_load_dword v{r+2}, v{B+7}, s[64:65] nt
    global_load_dword v{r+3}, v{B+7}, s[66:67] nt
    """)

def ln_compute(p, nafter):
    R=B+16; U=B+64
    p(f"""
    v_lshrrev_b32 v{B+9}, 2, v{B+3}
    v_lshlrev_b32 v{B+9}, 12, v{B+9}
    v_and_b32 v{B+3}, 3, v{B+3}
    v_lshl_add_u32 v{B+9}, v{B+3}, 8, v{B+9}
    v_lshl_add_u32 v{B+9}, v{B+2}, 4, v{B+9}
    s_lshr_b32 s60, s2, 3
    s_mul_i32 s60, s60, {18*4096}
    s_bfe_u32 s61, s2, 0x20001
    s_lshl_b32 s61, s61, 10
    s_add_u32 s60, s60, s61
    s_and_b32 s61, s2, 1
    s_lshl_b32 s61, s61, 7
    s_add_u32 s60, s60, s61
    s_mul_i32 s61, s3, {3*8192}
    s_add_u32 s60, s60, s61
    s_add_u32 s60, s60, {WS_XN}
    s_add_u32 s61, s60, 8192
    s_add_u32 s62, s60, 16384
    s_mov_b32 s63, 0x3f803f80
    s_mov_b32 s64, {fhex(1.0/576)}
    v_mov_b32 v{B+10}, 0
    v_mov_b32 v{B+11}, 0
    v_mov_b32 v{B+12}, 0
    v_mov_b32 v{B+13}, 0
    """)
    for k in range(9):
        if k%3==0 or k>5: p(f"s_waitcnt vmcnt({nafter+8-(k+2 if k<6 else k)})")
        for j in range(4):
            d=R+4*k+j
            p(f"v_dot2c_f32_bf16 v{B+10+(j&1)}, s63, v{d}\nv_dot2c_f32_bf16 v{B+12+(j&1)}, v{d}, v{d}")
    for d in range(2): p(f"v_lshlrev_b32 v{U+2*d}, 16, v{R+d}\nv_and_b32 v{U+2*d+1}, 0xffff0000, v{R+d}")
    a,b,t,u=B+10,B+12,B+11,B+13
    p(f"v_add_f32 v{a}, v{a}, v{t}\nv_add_f32 v{b}, v{b}, v{u}")
    un=[f"v_lshlrev_b32 v{U+2*d}, 16, v{R+d}\nv_and_b32 v{U+2*d+1}, 0xffff0000, v{R+d}" for d in range(2,12)]
    p(un.pop(0))
    p(f"v_add_f32_dpp v{a}, v{a}, v{a} row_ror:8 row_mask:0xf bank_mask:0xf\nv_add_f32_dpp v{b}, v{b}, v{b} row_ror:8 row_mask:0xf bank_mask:0xf")
    for sw in ('v_permlane16_swap_b32','v_permlane32_swap_b32'):
        p(f"v_mov_b32 v{t}, v{a}\nv_mov_b32 v{u}, v{b}"); p(un.pop(0))
        p(f"{sw} v{t}, v{a}\n{sw} v{u}, v{b}\nv_add_f32 v{a}, v{a}, v{t}\nv_add_f32 v{b}, v{b}, v{u}")
    m=B+14
    p(f"""
    v_mul_f32 v{a}, s64, v{a}                ; mean
    v_mul_f32 v{b}, s64, v{b}
    v_fma_f32 v{b}, -v{a}, v{a}, v{b}        ; var
    v_cvt_pk_bf16_f32 v{m}, v{a}, v{a}
    v_max_f32 v{b}, 0, v{b}
    v_and_b32 v{m}, 0xffff0000, v{m}         ; mb
    v_cvt_pk_bf16_f32 v{b}, v{b}, v{b}
    v_and_b32 v{b}, 0xffff0000, v{b}
    v_add_f32 v{b}, {fhex(1e-5)}, v{b}
    v_cvt_pk_bf16_f32 v{b}, v{b}, v{b}
    v_and_b32 v{b}, 0xffff0000, v{b}
    v_sqrt_f32 v{b}, v{b}
    """)
    p(un.pop(0))
    p(f"v_cvt_pk_bf16_f32 v{b}, v{b}, v{b}\nv_and_b32 v{b}, 0xffff0000, v{b}\nv_rcp_f32 v{a}, v{b}")
    for x in un: p(x)
    for k in range(3):
        for j in range(4):
            d=4*k+j
            p(f"v_pk_add_f32 v[{U+2*d}:{U+2*d+1}], v[{U+2*d}:{U+2*d+1}], v[{m}:{m+1}] op_sel_hi:[1,0] neg_lo:[0,1] neg_hi:[0,1]")
        for j in range(4): d=4*k+j; p(f"v_cvt_pk_bf16_f32 v{R+d}, v{U+2*d}, v{U+2*d+1}")
        for j in range(4): d=4*k+j; p(f"v_lshlrev_b32 v{U+2*d}, 16, v{R+d}\nv_and_b32 v{U+2*d+1}, 0xffff0000, v{R+d}")
        for j in range(4): d=4*k+j; p(f"v_pk_mul_f32 v[{U+2*d}:{U+2*d+1}], v[{U+2*d}:{U+2*d+1}], v[{a}:{a+1}] op_sel_hi:[1,0]")
        for j in range(4): d=4*k+j; p(f"v_cvt_pk_bf16_f32 v{R+d}, v{U+2*d}, v{U+2*d+1}")
        p(f"buffer_store_dwordx4 v[{R+4*k}:{R+4*k+3}], v{B+9}, s[{sWS}:{sWS+3}], s{60+k} offen sc1")

def ln_signal(p, lab):
    p(f"""
    s_waitcnt vmcnt(0)
    s_mov_b64 exec, 1
    v_mov_b32 v10, {CNT}
    v_mov_b32 v11, 1
    ds_add_rtn_u32 v12, v10, v11
    s_lshl_b32 s80, s2, 4
    s_add_u32 s80, s80, {F_LN}
    v_mov_b32 v10, 0
    s_waitcnt lgkmcnt(0)
    v_cmp_eq_u32 vcc, 2, v12
    s_cbranch_vccz {lab}
    buffer_store_dword v15, v10, s[{sWS}:{sWS+3}], s80 offen sc1
    {lab}:
    s_mov_b64 exec, -1
    """)

def kgen(p0, hook_at, hook):
    p=Prog(); marks={}
    p(f"""
    s_mul_i32 s63, s3, {16*ROWB}
    s_add_u32 s63, s63, {KLDS}
    v_lshl_add_u32 v4, v0, 3, s63
    v_and_b32 v2, 15, v0
    v_lshrrev_b32 v3, 4, v0
    v_lshl_add_u32 v12, v3, 4, s63
    v_mov_b32 v13, {ROWB}
    v_mad_u32_u24 v5, v2, v13, v12
    v_lshrrev_b32 v14, 2, v2
    v_and_b32 v15, 3, v2
    v_subrev_u32 v6, 1, v15
    v_max_i32 v6, 0, v6
    v_lshl_add_u32 v6, v14, 1, v6
    v_mad_u32_u24 v6, v6, v13, v12
    v_min_u32 v15, 2, v15
    v_lshrrev_b32 v7, 1, v14
    v_lshl_add_u32 v7, v14, 1, v7
    v_add_u32 v7, v7, v15
    v_mad_u32_u24 v7, v7, v13, v12
    v_mad_u32_u24 v8, v14, 3, v15
    v_mad_u32_u24 v8, v8, v13, v12
    v_lshl_add_u32 v9, v2, 5, s63
    v_lshl_add_u32 v11, v3, 9, v9
    v_lshrrev_b32 v14, 1, v3
    v_lshl_add_u32 v10, v14, 9, v9
    v_and_b32 v14, 1, v3
    v_lshl_add_u32 v10, v14, 4, v10
    v_lshl_add_u32 v9, v3, 3, v9
    v_lshl_add_u32 v1, v0, 4, s63
    s_mov_b32 s64, {fhex(LOG2E_HI)}
    s_mov_b32 s65, {fhex(LOG2E_LO)}
    s_mov_b32 s66, {fhex(math.log(2))}
    s_waitcnt vmcnt(3)
    v_lshlrev_b32 v22, 16, v56
    v_and_b32 v23, 0xffff0000, v56
    v_lshlrev_b32 v24, 16, v60
    """)
    for r in range(3): p(f"v_mul_f32 v{26+r}, s64, v{22+r}")
    for r in range(3): p(f"v_fma_f32 v{30+r}, v{22+r}, s64, -v{26+r}")
    for r in range(3): p(f"v_exp_f32 v{26+r}, v{26+r}")
    for r in range(3): p(f"v_fmac_f32 v{30+r}, s65, v{22+r}")
    for r in range(3): p(f"v_mul_f32 v{30+r}, s66, v{30+r}")
    for r in range(3): p(f"v_fmac_f32 v{26+r}, v{26+r}, v{30+r}")
    p(f"""
    v_cvt_pk_bf16_f32 v26, v26, v27
    v_cvt_pk_bf16_f32 v28, v28, v28
    v_and_b32 v24, 0xffff0000, v28
    v_lshlrev_b32 v22, 16, v26
    v_and_b32 v23, 0xffff0000, v26
    v_lshlrev_b32 v26, 16, v57
    v_and_b32 v27, 0xffff0000, v57
    v_pk_mul_f32 v[22:23], v[22:23], v[24:25] op_sel_hi:[1,0]
    v_pk_mul_f32 v[26:27], v[26:27], v[24:25] op_sel_hi:[1,0]
    v_mul_f32 v22, {fhex(-LOG2E)}, v22
    v_mul_f32 v23, {fhex(-LOG2E)}, v23
    v_mul_f32 v26, 0.15915494, v26
    v_mul_f32 v27, 0.15915494, v27
    v_add_f32 v24, v24, v24
    v_lshlrev_b32 v28, 16, v58
    v_and_b32 v29, 0xffff0000, v58
    v_lshlrev_b32 v30, 16, v59
    v_and_b32 v31, 0xffff0000, v59
    v_pk_mul_f32 v[28:29], v[28:29], v[24:25] op_sel_hi:[1,0]
    v_pk_mul_f32 v[30:31], v[30:31], v[24:25] op_sel_hi:[1,0]
    """)
    W={16:36, 1:32, 256:40}
    for pp,b in W.items():
        if pp==1:
            for k in range(2): p(f"v_exp_f32 v{12+k}, v{22+k}")
            for k in range(2): p(f"v_fract_f32 v{14+k}, v{26+k}")
        else:
            for k in range(2): p(f"v_mul_f32 v{12+k}, {fhex(float(pp))}, v{22+k}")
            for k in range(2): p(f"v_mul_f32 v{14+k}, {fhex(float(pp))}, v{26+k}")
            for k in range(2): p(f"v_exp_f32 v{12+k}, v{12+k}")
            for k in range(2): p(f"v_fract_f32 v{14+k}, v{14+k}")
        for k in range(2): p(f"v_cos_f32 v{b+k}, v{14+k}")
        for k in range(2): p(f"v_sin_f32 v{b+2+k}, v{14+k}")
        p(f"v_pk_mul_f32 v[{b}:{b+1}], v[{b}:{b+1}], v[12:13]\nv_pk_mul_f32 v[{b+2}:{b+3}], v[{b+2}:{b+3}], v[12:13]")
    def cmul(d,a,b):
        assert d!=a and d!=b
        p(f"""
        v_pk_mul_f32 v[{d}:{d+1}], v[{a}:{a+1}], v[{b}:{b+1}]
        v_pk_mul_f32 v[{d+2}:{d+3}], v[{a}:{a+1}], v[{b+2}:{b+3}]
        v_pk_fma_f32 v[{d}:{d+1}], v[{a+2}:{a+3}], v[{b+2}:{b+3}], v[{d}:{d+1}] neg_lo:[1,0,0] neg_hi:[1,0,0]
        v_pk_fma_f32 v[{d+2}:{d+3}], v[{a+2}:{a+3}], v[{b}:{b+1}], v[{d+2}:{d+3}]
        """)
    wcnt=[0]
    def emit(z,row,neg=False):
        t=16+2*(wcnt[0]%3); wcnt[0]+=1
        n='-' if neg else ''
        p(f"v_cvt_pk_bf16_f32 v{t}, v{z}, v{z+1}\nv_cvt_pk_bf16_f32 v{t+1}, {n}v{z+2}, {n}v{z+3}\nds_write_b64 v4, v[{t}:{t+1}] offset:{row*ROWB}")
        marks[wcnt[0]]=len(p.l)
    def reads(dst, areg):
        for s in range(8): p(f"ds_read_b128 v[{dst+4*s}:{dst+4*s+3}], v{areg} offset:{64*s}")
    RB=64; A0=96; A1=128; ACC=160; O=176
    def mm(acc, A):
        for s in range(8):
            c = "0" if s==0 else f"v[{acc}:{acc+3}]"
            p(f"v_mfma_f32_16x16x32_bf16 v[{acc}:{acc+3}], v[{A+4*s}:{A+4*s+3}], v[{RB+4*s}:{RB+4*s+3}], {c}")
    Z=[44,48]; W2,W4,W8,BS=52,56,60,[24,28]
    marks[0]=len(p.l)
    cur=28; emit(cur,0,True)
    for a in range(1,16):
        nx=Z[a&1]; cmul(nx,cur,W[16]); emit(nx,a,True); cur=nx
    reads(RB,5)
    p("v_mov_b32 v22, 0x3f803f80\nv_mov_b32 v23, 0\nds_write_b64 v4, v[22:23]")
    emit(W[1],1); cur=W[1]
    for j in range(2,16):
        nx={2:W2,4:W4,8:W8}.get(j, Z[j&1]); cmul(nx,cur,W[1]); emit(nx,j); cur=nx
    reads(A0,5)
    cur=W[256]; emit(cur,0)
    for q in range(1,9):
        nx=Z[q&1]; cmul(nx,cur,W2); emit(nx,q); cur=nx
        if q==4: p("s_waitcnt lgkmcnt(5)"); mm(ACC,A0)
    reads(A1,6)
    base=W[256]
    for be in range(2):
        nb=BS[be&1]; cmul(nb,base,W[256]); base=nb; emit(base,5*be); cur=base
        for q in range(1,5):
            nx=Z[q&1]; cmul(nx,cur,W4); emit(nx,5*be+q); cur=nx
        if be==0: p("s_waitcnt lgkmcnt(5)"); mm(ACC+4,A1)
    reads(A0,7)
    for be in range(4):
        nb=BS[be&1]; cmul(nb,base,W[256]); base=nb; emit(base,3*be)
        cmul(Z[0],base,W8); emit(Z[0],3*be+1)
        cmul(Z[1],base,W[16]); emit(Z[1],3*be+2)
        if be==1: p("s_waitcnt lgkmcnt(6)"); mm(ACC+8,A0)
    reads(A1,8)
    for k in range(4): p(f"v_cvt_pk_bf16_f32 v{O+k}, v{ACC+2*k}, v{ACC+2*k+1}")
    a=ACC+8
    for k,(x,y) in enumerate(((0,0),(0,1),(1,1),(2,2))): p(f"v_cvt_pk_bf16_f32 v{O+4+k}, v{a+x}, v{a+y}")
    p("s_waitcnt lgkmcnt(0)"); mm(ACC+12,A1)
    p(f"ds_write_b64 v9, v[{O}:{O+1}]\nds_write_b64 v9, v[{O+2}:{O+3}] offset:512\nds_write_b128 v10, v[{O+4}:{O+7}] offset:1024\ns_nop 4")
    a=ACC+12
    for k,(x,y) in enumerate(((0,0),(0,0),(0,1),(1,1),(1,1),(1,1),(2,2),(2,2))): p(f"v_cvt_pk_bf16_f32 v{O+8+k}, v{a+x}, v{a+y}")
    p(f"ds_write_b128 v11, v[{O+8}:{O+11}] offset:2048\nds_write_b128 v11, v[{O+12}:{O+15}] offset:2064")
    l=remap(p.l,B)
    cut=marks[hook_at]
    p0.ext(l[:cut]); hook(p0); p0.ext(l[cut:])
    for k in range(4): p0(f"ds_read_b128 v[{40+4*k}:{43+4*k}], v{B+1} offset:{1024*k}")
    p0("s_waitcnt lgkmcnt(0)")

def service(p, opt):
    p(f"""
    v_subrev_u32 v{B+1}, {2*8*9216}, v2
    v_xor_b32 v{B+2}, 64, v2
    v_subrev_u32 v{B+2}, {8*9216}, v{B+2}     ; piece 2
    v_subrev_u32 v{B}, {2*8*9216}, v{B+2}     ; piece 0
    v_mov_b32 v{B+3}, v2
    s_bfe_u32 s80, s2, 0x20003               ; mt&3
    s_lshl_b32 s80, s80, 2
    s_mov_b32 s83, 0
    Lsvc:
    s_mul_i32 s81, s80, {32*9216}
    s_lshl_b32 s82, s80, 13
    """)
    for pc in range(4):
        p(f"s_add_u32 m0, s82, {2048*pc}")
        p("s_add_u32 s80, s80, 1" if pc==0 else ("s_and_b32 s80, s80, 15" if pc==1 else "s_nop 0"))
        p(f"buffer_load_dwordx4 v{B+pc}, s[{sWg}:{sWg+3}], s81 offen {opt.get('svcf','nt')} lds\nbuffer_load_dwordx4 v{B+pc}, s[{sWu}:{sWu+3}], s81 offen offset:1024 {opt.get('svcf','nt')} lds")
    p(f"""
    s_add_u32 s83, s83, 1
    s_cmp_lt_u32 s83, 4
    s_cbranch_scc1 Lsvc
    s_waitcnt vmcnt({opt.get('svc_thr',8)})
    s_cmp_lt_u32 s83, 16
    s_cbranch_scc1 Lsvc
    """)
```

```python
from pcommon import *
import pg
XR0=8192; XR1=XR0+32768; KB=XR1+32768; KCS=4128; UB=KB+9*KCS; UCS=4624; UDS=1152
assert UB%16==0 and UB+9*UCS<=163840 and UB<=131072
ZL=XR0; ZS=8208
ABUF=[0,64]; BBUF=[128,192]; SETS=[64,96,128,160,192]; UT=224; TT=192; Z0=240
sG0,sG1,sKA,sKX,sKL,sXS,sCH,sDA,sQ=70,71,72,73,74,75,76,77,78
def setup_ssm(p):
    p(f"""
    s_and_b32 s60, s2, 7
    s_lshr_b32 s61, s2, 3
    s_sub_u32 s{sCH}, s61, 24
    s_lshl_b32 s62, s60, 3
    s_add_u32 s{sQ}, s62, s{sCH}             ; q
    s_add_u32 s63, s60, 64
    s_lshr_b32 s64, s{sQ}, 2
    s_lshl_b32 s64, s64, 12
    s_and_b32 s65, s{sQ}, 3
    s_lshl_b32 s65, s65, 8
    s_add_u32 s66, s64, s65
    s_lshr_b32 s64, s63, 2
    s_lshl_b32 s64, s64, 12
    s_and_b32 s65, s63, 3
    s_lshl_b32 s65, s65, 8
    s_add_u32 s67, s64, s65
    s_mul_i32 s64, s3, {8*18*4096}
    s_add_u32 s{sG0}, s66, s64
    s_add_u32 s{sG1}, s67, s64
    s_lshl_b32 s64, s{sQ}, 3
    s_add_u32 s64, s64, s3                   ; chA
    s_lshl_b32 s{sDA}, s64, 1
    s_lshl_b32 s64, s64, 12
    s_add_u32 s{sKA}, s64, {WS_K}
    s_lshl_b32 s64, s{sQ}, 12
    s_lshl_b32 s65, s3, 10
    s_add_u32 s64, s64, s65
    s_add_u32 s{sKX}, s64, {WS_K+512*4096}
    s_mul_i32 s64, s3, {KCS}
    s_add_u32 s{sKL}, s64, {KB+32}
    s_mul_i32 s64, s3, {18*4096}
    s_add_u32 s64, s64, s67
    s_lshl_b32 s65, s{sCH}, 1
    s_add_u32 s64, s64, s65
    s_add_u32 s{sXS}, s64, {WS_S}
    v_lshrrev_b32 v10, 4, v0                 ; g
    v_and_b32 v11, 0xf0, v1
    v_lshl_add_u32 v62, v10, 10, v11         ; tb*1024+n*16
    v_bfe_u32 v11, v0, 2, 2                  ; e
    v_and_b32 v12, 32, v0
    v_lshl_add_u32 v12, v11, 2, v12
    v_and_b32 v10, 1, v10
    v_lshl_add_u32 v12, v10, 1, v12
    v_lshlrev_b32 v12, 4, v12
    v_and_b32 v11, 3, v0
    v_lshl_add_u32 v12, v11, 3, v12
    s_lshl_b32 s64, s3, 13
    v_add_u32 v56, s64, v12
    v_and_b32 v10, 7, v0
    v_bfe_u32 v11, v0, 3, 2
    v_lshrrev_b32 v12, 5, v0
    v_mul_u32_u24 v11, {UDS}, v11
    v_lshl_add_u32 v11, v12, 4, v11
    v_mul_u32_u24 v10, {UCS}, v10
    s_lshl_b32 s64, s3, 8
    s_add_u32 s64, s64, {UB+128}
    v_add3_u32 v61, v10, v11, s64
    """)

def add_ssm(s, cx):
    opt=s.opt; pre,post=s.pre,s.post
    LF='sc1'
    def xr(base,so,tag):
        return [[Ins(f"s_add_u32 m0, s32, {base+1024*k}"), Ins(f"s_add_u32 s81, s{so}, {WS_XN+k*18*4096}")] for k in range(8)], \
               [[Ins(f"buffer_load_dwordx4 v62, s[{sWS}:{sWS+3}], s81 offen {LF} lds",tag)] for k in range(8)]
    def il(a,b): return [x for pr in zip(a,b) for x in pr]
    def kl(m0,so,tag,n=4):
        return [m0]+[[Ins(f"buffer_load_dwordx4 v1, s[{sWS}:{sWS+3}], s{so} offen offset:{1024*k} {LF} lds",tag)] for k in range(n)]
    tr=[[Ins("s_lshl_b32 s32, s3, 13"),Ins("s_lshl_b32 s33, s3, 10")],[Ins(f"s_add_u32 s34, s33, {F_LN}"),Ins(f"s_lshl_b32 s35, s{sQ}, 7")],
        [cx.poll_issue(1,57,34)]]
    c1=cx.poll_check(1,57,34)
    tr+=[[Ins(f"s_add_u32 s35, s35, {F_K}"),Ins("v_min_u32 v58, 8, v0")],[Ins("v_lshlrev_b32 v58, 3, v58"),Ins(f"v_mov_b32 v5, s{sDA}")],[cx.poll_issue(58,59,35)]]
    c2=cx.poll_check(58,59,35)
    tr+=[[Ins(f"v_lshlrev_b32 v6, 1, s{sQ}")]]
    s.place(tr,144,146)
    pre[8*149]+=c1+c2
    g=il(*xr(XR0,sG0,'xr0'))+kl([Ins(f"s_mov_b32 m0, s{sKL}")],sKA,'kA')
    g+=[[Ins(f"global_load_ushort v2, v5, s[{sDP}:{sDP+1}]",'d')],[Ins(f"global_load_ushort v3, v5, s[{sDP}:{sDP+1}] offset:8",'d')],[Ins(f"global_load_ushort v4, v6, s[{sDP}:{sDP+1}] offset:1024",'d')]]
    s.place(g,149,160)
    late=kl([Ins(f"s_add_u32 m0, s33, {KB+32+8*KCS}")],sKX,'kX',1)+il(*xr(XR1,sG1,'xr1'))+kl([Ins(f"s_add_u32 m0, s{sKL}, {4*KCS}"),Ins(f"s_add_u32 s{sKA}, s{sKA}, {4*4096}")],sKA,'kB')
    t=[232+i for i in range(8)]
    g_,i_,e_,cg,a,b,c,d=t
    q=Prog()
    q(f"""
    s_barrier
    v_mov_b32 v{Z0}, 0
    v_mov_b32 v{Z0+1}, 0
    v_mov_b32 v{Z0+2}, 0
    v_mov_b32 v{Z0+3}, 0
    v_lshrrev_b32 v{a}, 3, v0
    v_and_b32 v{b}, 0x70, v1
    s_mul_i32 s36, s3, {UDS}
    s_add_u32 s37, s36, {UB}
    v_add_u32 v{b}, s37, v{b}
    v_mul_u32_u24 v{a}, {UCS}, v{a}
    v_add_u32 v{a}, v{a}, v{b}
    ds_write_b128 v{a}, v[{Z0}:{Z0+3}]
    ds_write_b128 v{b}, v[{Z0}:{Z0+3}] offset:{8*UCS}
    v_lshrrev_b32 v{a}, 1, v0
    v_min_u32 v{a}, 8, v{a}
    v_mul_u32_u24 v{a}, {KCS}, v{a}
    v_and_b32 v{b}, 16, v1
    v_add3_u32 v{a}, v{a}, v{b}, s38
    ds_write_b128 v{a}, v[{Z0}:{Z0+3}]
    """)
    z=q.l; z.insert(1,Ins(f"s_mov_b32 s38, {KB}"))
    q=Prog()
    q(f"""
    v_lshrrev_b32 v{g_}, 4, v0
    v_and_b32 v{i_}, 15, v0
    v_bfe_u32 v{e_}, v0, 2, 2
    v_and_b32 v{cg}, 3, v0
    v_lshl_add_u32 v{a}, v{g_}, 3, v{e_}
    v_sub_u32 v{a}, v{cg}, v{a}
    v_add_u32 v{a}, 24, v{a}
    v_lshlrev_b32 v{a}, 3, v{a}
    v_add_u32 v17, s{sKL}, v{a}
    v_add_u32 v18, {KB+32+8*KCS}, v{a}
    v_lshlrev_b32 v{a}, 3, v{i_}
    v_lshl_add_u32 v{a}, v{g_}, 4, v{a}
    s_mul_i32 s39, s3, {UCS}
    s_add_u32 s39, s39, {UB+8}
    v_add_u32 v19, s39, v{a}
    s_add_u32 s37, s36, {UB+8+8*UCS}
    v_add_u32 v20, s37, v{a}
    """)
    early=q.l
    q=Prog()
    q(f"""
    v_and_b32 v{a}, 7, v0
    v_cmp_eq_u32 s[40:41], s{sCH}, v{a}
    v_cmp_eq_u32 s[42:43], 63, v0
    v_sub_u32 v{a}, 8, v{a}
    v_mul_u32_u24 v{a}, {UCS}, v{a}
    v_add_u32 v16, v61, v{a}
    v_lshl_add_u32 v{a}, v{i_}, 2, v{g_}
    s_add_u32 s39, s39, 120
    v_lshl_add_u32 v24, v{a}, 1, s39
    v_lshl_add_u32 v25, v{a}, 3, s{sKL}
    s_mul_i32 s37, s3, {ZS}
    s_add_u32 s37, s37, {ZL+16}
    v_lshl_add_u32 v26, v{a}, 4, s37
    v_subrev_u32 v{a}, 16, v0
    v_add_u32 v{b}, 47, v0
    v_cmp_gt_u32 vcc, 16, v0
    v_mov_b32 v{c}, 63
    v_lshlrev_b32 v{d}, 6, s3
    v_cndmask_b32 v{a}, v{a}, v{b}, vcc
    v_cmp_eq_u32 vcc, 0, v0
    v_add_u32 v{d}, v{d}, v0
    v_lshlrev_b32 v28, 2, v{d}
    v_cndmask_b32 v{a}, v{a}, v{c}, vcc
    v_lshlrev_b32 v27, 2, v{a}
    v_add_u32 v28, {ZL+4}, v28
    v_and_b32 v{a}, 3, v{d}
    v_mul_u32_u24 v{a}, {UDS}, v{a}
    v_lshrrev_b32 v{b}, 2, v{d}
    v_lshl_add_u32 v{a}, v{b}, 1, v{a}
    v_add_u32 v29, {UB+8*UCS+128}, v{a}
    v_mul_u32_u24 v{a}, {KCS}, v{e_}
    v_lshl_add_u32 v{a}, v{g_}, 5, v{a}
    v_lshl_add_u32 v{a}, v{cg}, 3, v{a}
    s_add_u32 s37, s33, {KB+32}
    v_add_u32 v30, s37, v{a}
    v_lshlrev_b32 v2, 16, v2
    v_lshlrev_b32 v3, 16, v3
    v_lshlrev_b32 v4, 16, v4
    s_add_u32 s{sG0}, s{sG0}, {WS_S}
    """)
    for k in range(8): q(f"v_mov_b32 v{UT+k}, 0")
    shadow=q.l
    def transp(src,wreg):
        rd=[]; wr=[]
        for k in range(8):
            d_=TT+4*k
            rd.append([Ins(f"ds_read_b64_tr_b16 v[{d_}:{d_+1}], v56 offset:{src+1024*k}"),Ins(f"ds_read_b64_tr_b16 v[{d_+2}:{d_+3}], v56 offset:{src+1024*k+256}")])
            wr.append([Ins(f"ds_write_b128 v{wreg}, v[{d_}:{d_+3}] offset:{32*k}")])
        return rd,wr
    def aload(buf,reg,off):
        o=[]
        for s_ in range(16):
            d_=ABUF[buf]+4*s_
            o.append(Ins(f"ds_read_b64_tr_b16 a[{d_}:{d_+1}], v{reg} offset:{off+256*s_+32}"))
            o.append(Ins(f"ds_read_b64_tr_b16 a[{d_+2}:{d_+3}], v{reg} offset:{off+256*s_}"))
        return o
    def bload(buf,reg,off):
        o=[]
        for jj in range(16):
            d_=BBUF[buf]+4*jj
            o.append(Ins(f"ds_read_b64 a[{d_}:{d_+1}], v{reg} offset:{off+64*jj}"))
            o.append(Ins(f"ds_read_b64 a[{d_+2}:{d_+3}], v{reg} offset:{off+64*jj+8}"))
        return o
    def BAR(tags=[]):
        b_=WaitVM(tags,True); b_.drain=True; return b_
    rd,wr=transp(XR0,61)
    pro=stamp(4)+[WaitVM(['xr0','kA','d'])]+sum(rd,[])+z+early+sum(wr,[])+aload(0,17,0)
    pro.append(BAR())
    bl=bload(0,19,0); pro+=bl[:8]
    pro+=[Ins(f"s_mov_b32 s80, {F_EPOCH}"),Ins("s_cmp_eq_u32 s2, 255"),Ins(f"s_cselect_b32 s80, s80, {OOB}"),Ins("v_mov_b32 v31, s80"),Ins(f"buffer_store_dword v15, v31, s[{sWS}:{sWS+3}], 0 offen sc1",'flag')]
    passes=[(0,0,0),(0,1,1),(0,0,2),(0,1,3),(1,0,4),(0,1,0),(0,0,1),(0,1,2),(0,0,3)]
    mf=[]
    for pi,(ab,bb,st) in enumerate(passes):
        for jp in range(8):
            for b_ in range(jp,8):
                d_=SETS[st]+4*b_
                for k in range(2):
                    s_=2*b_-2*jp+1-k; jj=2*jp+k
                    cc="0" if (jp==0 and k==0) else f"v[{d_}:{d_+3}]"
                    mf.append(Ins(f"v_mfma_f32_16x16x32_bf16 v[{d_}:{d_+3}], a[{ABUF[ab]+4*s_}:{ABUF[ab]+4*s_+3}], a[{BBUF[bb]+4*jj}:{BBUF[bb]+4*jj+3}], {cc}"))
    pre={}; post={}
    P=lambda i:72*i
    spread(post,bl[8:],0,24)
    spread(post,shadow,0,48)
    spread(post,late,48,P(1)+10)
    boff=[None,(19,UDS),(19,2*UDS),(19,3*UDS),(20,0),(19,4*UCS),(19,4*UCS+UDS),(19,4*UCS+2*UDS),(19,4*UCS+3*UDS)]
    for pi in range(1,9):
        spread(post,bload(passes[pi][1],*boff[pi]),P(pi-1)+(26 if pi==1 else 4),P(pi)-8)
    rd,wr=transp(XR1,16)
    pre[P(2)+10]=[WaitVM(['xr1','kX','kB'])]
    spread(post,rd,P(2)+10,P(2)+34)
    for k in range(4): post.setdefault(P(2)+44+4*k,[]).extend([Ins("s_mov_b64 exec, s[40:41]")]+wr[2*k]+wr[2*k+1]+[Ins("s_mov_b64 exec, -1")])
    pre[P(3)+2]=[BAR()]
    spread(post,aload(1,18,0),P(3)+4,P(4)-8)
    spread(post,aload(0,17,4*KCS),P(4)+1,P(5)-8)
    def finish(p0,uoff,yoff,dreg,dw):
        S,Z1,Z2,Z3=SETS[:4]
        ops=[]
        for b_ in range(8):
            t_=UT+4*(b_&1)
            ops.append(([Ins(f"ds_read_u16_d16_hi v{t_+f}, v24 offset:{uoff+f*UDS+128*b_}") for f in range(4)],
                        [Ins(f"v_fmac_f32 v{S+4*b_+f}, v{dreg}, v{t_+f}") for f in range(4)]))
        seq=ops[0][0]+ops[1][0]
        for b_ in range(8):
            seq+=ops[b_][1]
            if b_+2<8: seq+=ops[b_+2][0]
        spread(post,seq,*dw)
        f1=[Ins(f"v_add_f32 v{S+4*b_+1+k}, v{S+4*b_+1+k}, v{Z1+4*b_+k}") for b_ in range(8) for k in range(3)]
        f2=[Ins(f"v_add_f32 v{x}, v{x}, v{Z2+4*b_+k}") for b_ in range(8) for k,x in enumerate((S+4*b_+2,S+4*b_+3,Z1+4*b_+3))]
        st1=[]; st2=[]
        for b_ in range(8):
            C=[Z1+4*b_+3,Z2+4*b_+3,Z3+4*b_+3]
            o=[Ins(f"v_add_f32 v{x}, v{x}, v{Z3+4*b_+k}") for k,x in enumerate((S+4*b_+3,C[0],C[1]))]
            for k in range(3):
                prev=f"v{C[k]-4}" if b_ else f"v{Z0}"
                o.append(Ins(f"v_cndmask_b32 v{Z1+4*b_+k}, v{C[k]}, {prev}, s[42:43]"))
            o+=[Ins(f"ds_bpermute_b32 v{Z2+4*b_+k}, v27, v{Z1+4*b_+k}") for k in range(3)]
            st1.append(o)
            o=[Ins(f"v_add_f32 v{S+4*b_+k}, v{S+4*b_+k}, v{Z2+4*b_+k}") for k in range(3)]
            o+=[Ins(f"v_cvt_pk_bf16_f32 v{Z3+4*b_}, v{S+4*b_}, v{S+4*b_+1}"),Ins(f"v_cvt_pk_bf16_f32 v{Z3+4*b_+1}, v{S+4*b_+2}, v{S+4*b_+3}"),
                Ins(f"ds_write_b64 v25, v[{Z3+4*b_}:{Z3+4*b_+1}] offset:{yoff+512*b_}")]
            st2.append(o)
        seq=st1[0]+st1[1]
        for b_ in range(8):
            seq+=st2[b_]
            if b_+2<8: seq+=st1[b_+2]
        return f1,f2,seq,st1
    f1,f2,seqA,_=finish(0,0,0,2,(P(2)+2,P(3)+30))
    spread(post,f1+f2,P(3)+6,P(3)+52)
    spread(post,seqA,P(3)+54,P(5)-1)
    f1,f2,seqB,st1=finish(5,4*UCS,4*KCS,3,(P(6)+6,P(7)-2))
    spread(post,f1,P(7)+6,P(7)+60); spread(post,f2,P(8)+5,P(8)+29)
    ncut=seqB.index(st1[4][0])
    spread(post,seqB[:ncut],P(8)+32,P(9)-1)
    tail=seqB[ncut:]
    ZX=SETS[4]
    post.setdefault(P(5)+4,[]).extend([Ins("s_mov_b64 exec, 1"),Ins(f"v_subrev_u32 v{a}, 16, v26"),Ins(f"ds_write_b128 v{a}, v[{Z0}:{Z0+3}]"),Ins("s_mov_b64 exec, -1")])
    spread(post,[Ins(f"ds_write_b128 v26, v[{ZX+4*b_}:{ZX+4*b_+3}] offset:{1024*b_}") for b_ in range(8)],P(5)+8,P(5)+40)
    pre[P(5)+70]=[BAR()]
    spread(post,[Ins(f"ds_read_b32 v{ZX+4*k+d_}, v28 offset:{d_*ZS+4*(3-d_)+1024*k}") for k in range(8) for d_ in range(4)],P(7)+2,P(7)+40)
    spread(post,[Ins(f"ds_read_u16_d16_hi v{UT+k}, v29 offset:{128*k}") for k in range(8)],P(7)+40,P(7)+50)
    xo=[]
    for k in range(8):
        z_=ZX+4*k
        xo+=[Ins(f"v_add_f32 v{z_}, v{z_}, v{z_+1}"),Ins(f"v_add_f32 v{z_+2}, v{z_+2}, v{z_+3}"),Ins(f"v_fmac_f32 v{z_}, v4, v{UT+k}"),
             Ins(f"v_add_f32 v{z_}, v{z_}, v{z_+2}"),Ins(f"v_cvt_pk_bf16_f32 v{z_}, v{z_}, v{z_}"),
             Ins(f"buffer_store_short v{z_}, v62, s[{sWS}:{sWS+3}], s{sXS} offen sc1",'xs'),Ins(f"s_add_u32 s{sXS}, s{sXS}, {4*18*4096}")]
    spread(post,xo,P(7)+58,P(8)+32)
    fa,fb=pg.flag_store(0x4000)
    post.setdefault(44,[]).append(fb); pre.setdefault(46,[]).append(WaitVM([('hst',3)])); post.setdefault(46,[]).append(fa)
    if opt.get('htouch',1): post.setdefault(47,[]).append(pg.touch(60,sWS,f"s{sHO+2}",''))
    fa,fb=pg.flag_store(0x8000)
    post.setdefault(P(3)+40,[]).append(fb); pre.setdefault(P(3)+42,[]).append(WaitVM([('hst',4)])); post.setdefault(P(3)+42,[]).append(fa)
    pre.setdefault(P(4),[]).extend(stamp(5))
    body=fill(mf,pre,post,[(0,P(2)+30,s.gS)])+stamp(6)+tail
    body.append(BAR())
    fr=[]; fs=[]
    for k in range(8):
        d_=TT+4*k
        fr+=[Ins(f"ds_read_b64_tr_b16 v[{d_}:{d_+1}], v30 offset:{128*k}"),Ins(f"ds_read_b64_tr_b16 v[{d_+2}:{d_+3}], v30 offset:{128*k+4*KCS}")]
        fs+=[Ins(f"buffer_store_dwordx4 v[{d_}:{d_+3}], v62, s[{sWS}:{sWS+3}], s{sG0} offen sc1",'fs'),Ins(f"s_add_u32 s{sG0}, s{sG0}, {18*4096}")]
    body+=fr+fs
    body+=[Ins(f"s_lshl_b32 s80, s{sQ}, 4"),Ins(f"s_add_u32 s80, s80, {F_S}"),Ins("s_cmp_eq_u32 s3, 0"),Ins(f"s_cselect_b32 s80, s80, {OOB}"),Ins("v_mov_b32 v31, s80"),
           WaitVM(['fs'],True),Ins("s_mov_b64 exec, 1"),Ins(f"buffer_store_dword v15, v31, s[{sWS}:{sWS+3}], 0 offen sc1",'flag'),Ins("s_mov_b64 exec, -1")]
    return pro+body
```

```python
import sys, json
from pcommon import *
import pcommon, pp0, pg, pssm
NAME="recurrent_scan__ssm_conv_s4d__geglu_ffn__prompt_kernel"
def gen(opt):
    MODE['stamp']=opt.get('stamp')
    cx=Ctx(); B=pp0.B
    p=Prog()
    p(f"s_cmp_ge_u32 s2, 256\ns_cbranch_scc1 Lend")
    p.ext(stamp(0))
    p(f"""
    s_load_dwordx2 s[{sXP}:{sXP+1}], s[0:1], {KA['x']}
    s_load_dwordx2 s[{sWS}:{sWS+1}], s[0:1], {KA['ws']}
    s_load_dwordx8 s[60:67], s[0:1], {KA['logA']}
    s_load_dwordx2 s[68:69], s[0:1], {KA['logdt']}
    s_load_dwordx2 s[{sWg}:{sWg+1}], s[0:1], {KA['Wg']}
    s_load_dwordx2 s[{sWu}:{sWu+1}], s[0:1], {KA['Wu']}
    s_load_dwordx2 s[{sWd}:{sWd+1}], s[0:1], {KA['Wd']}
    s_load_dwordx2 s[{sOP}:{sOP+1}], s[0:1], {KA['out']}
    s_load_dwordx2 s[{sDP}:{sDP+1}], s[0:1], {KA['Dskip']}
    v_lshrrev_b32 v1, 6, v0
    v_and_b32 v0, 63, v0
    v_readfirstlane_b32 s3, v1
    v_mov_b32 v{B}, v0
    v_mov_b32 v10, {pp0.CNT}
    v_mov_b32 v11, 0
    """)
    pp0.ln_issue(p); pp0.kgen_addr(p)
    p(f"""
    s_lshr_b32 s80, s2, 3
    s_mul_i32 s80, s80, CODE_LINES*128
    v_lshl_add_u32 v13, v0, 7, s80
    s_cmp_eq_u32 s3, 3
    s_waitcnt lgkmcnt(0)
    s_cbranch_scc1 Lnoln
    """)
    pp0.ln_loads(p); pp0.kgen_loads(p)
    p(f"""
    s_branch Lcommon
    Lnoln:
    s_getpc_b64 s[0:1]
    Lpc:
    v_cmp_gt_u32 vcc, CODE_LINES, v0
    s_and_saveexec_b64 s[80:81], vcc
    global_load_dword v63, v13, s[0:1]
    s_mov_b64 exec, -1
    Lcommon:
    s_add_u32 s80, s{sWS}, {F_EPOCH}
    s_addc_u32 s81, s{sWS+1}, 0
    s_load_dword s{sTAG}, s[80:81], 0
    ds_write_b32 v10, v11
    s_bitcmp1_b32 s3, 0
    s_cselect_b32 s{sS}, s{sWu}, s{sWg}
    s_cselect_b32 s{sS+1}, s{sWu+1}, s{sWg+1}
    s_mov_b32 s{sS+2}, {WB}
    s_mov_b32 s{sS+3}, 0x20000
    s_mov_b32 s{sWS+2}, {WSZ}
    s_mov_b32 s{sWS+3}, 0x20000
    s_mov_b32 s{sWg+2}, {WB}
    s_mov_b32 s{sWg+3}, 0x20000
    s_sub_u32 s{sWu}, s{sWu}, 1024
    s_subb_u32 s{sWu+1}, s{sWu+1}, 0
    s_mov_b32 s{sWu+2}, {WB+1024}
    s_mov_b32 s{sWu+3}, 0x20000
    s_sub_u32 s{sWd}, s{sWd}, 2048
    s_subb_u32 s{sWd+1}, s{sWd+1}, 0
    s_mov_b32 s{sWd+2}, {WB+2048}
    s_mov_b32 s{sWd+3}, 0x20000
    """)
    pg.setup(p)
    p("s_cmp_ge_u32 s2, 192\ns_cbranch_scc1 Lsu_ssm")
    pg.setup_g2(p)
    p("s_branch Lsu_done\nLsu_ssm:")
    pssm.setup_ssm(p)
    p(f"""
    Lsu_done:
    s_waitcnt lgkmcnt(0)
    s_mul_i32 s{sTAG}, s{sTAG}, 1664525
    s_add_u32 s{sTAG}, s{sTAG}, 1013904223
    v_mov_b32 v15, s{sTAG}
    s_barrier
    s_cmp_eq_u32 s3, 3
    s_cbranch_scc1 Lservice
    """)
    pp0.ln_compute(p,5)
    p.ext(stamp(1))
    p("s_cmp_ge_u32 s2, 192\ns_cbranch_scc1 Lnok")
    pp0.kgen(p, opt.get('hook',10), lambda q: pp0.ln_signal(q,"Lsig1"))
    p("s_branch Ljoin\nLnok:")
    pp0.ln_signal(p,"Lsig2")
    p(f"s_sleep {opt.get('nokslp',16)}\ns_branch Ljoin\nLservice:")
    pp0.service(p,opt)
    p.ext(stamp(1))
    p(f"Ljoin:\nv_and_b32 v13, 0x70, v1\ns_cmp_eq_u32 s{sKO}, 0\ns_cselect_b32 s80, {OOB}, 0\nv_or_b32 v192, s80, v1")
    errs=[]
    head_=[cx.poll_issue(13,12,31)]+cx.poll_check(13,12,31)+stamp(7)
    n0=cx.n
    gA=pg.G1(opt); XR,SR=pg.add_g2(gA,cx)
    A=head_+gA.pro+fill(gA.mf,gA.pre,gA.post,gA.streams)+pg.final(cx,XR,SR,opt)
    A=auto_nop(resolve_waits(A))
    gB=pg.G1(opt); rest=pssm.add_ssm(gB,cx)
    Bm=fill(gB.mf,gB.pre,gB.post,gB.streams)
    Bs=auto_nop(resolve_waits(head_+gB.pro+Bm+auto_lgkm(rest)))
    def cut(l):
        k=0
        for i,x in enumerate(l):
            if x.kind=='mfma':
                if k==8*144: return i
                k+=1
    ca,cb=cut(A),cut(Bs)
    assert [x.text for x in A[:ca]]==[x.text for x in Bs[:cb]], "prefix differs"
    print("gaps common",gapstats(A[:ca]),"\n g2role",gapstats(A[ca:]),"\n ssmrole",gapstats(Bs[cb:]))
    p.ext(A[:ca]); p("s_cmp_ge_u32 s2, 192\ns_cbranch_scc1 Lrole_ssm")
    p.ext(A[ca:])
    if MODE['stamp']: p("s_waitcnt vmcnt(0)");
    stamp_flush(p,0)
    if MODE['stamp']:
        p(f"{'s_memrealtime' if MODE['stamp']=='rt' else 's_memtime'} s[62:63]\ns_waitcnt lgkmcnt(0)\nv_mov_b32 v1, s62\nbuffer_store_dword v1, v0, s[{sWS}:{sWS+3}], s60 offen offset:32")
    p("s_endpgm\nLrole_ssm:")
    p.ext(Bs[cb:])
    stamp_flush(p,1)
    if MODE['stamp']:
        p(f"{'s_memrealtime' if MODE['stamp']=='rt' else 's_memtime'} s[62:63]\ns_waitcnt lgkmcnt(0)\nv_mov_b32 v1, s62\nbuffer_store_dword v1, v0, s[{sWS}:{sWS+3}], s60 offen offset:32")
    p("Lend:\ns_endpgm")
    for nm,tk in (('g2/ln',()),('g2/svc',('Lnoln','Lservice')),('ssm/ln',('Lsu_ssm','Lnok','Lrole_ssm')),('ssm/svc',('Lnoln','Lsu_ssm','Lservice','Lrole_ssm')),('g2/lnskip',('Lsig1',))):
        errs+=check(follow(p.l,tk),nm)
    for e in errs: print("HAZARD:",e)
    txt=head(NAME)+p.text()+"".join(cx.ool)+"Lcode_end:\n"
    return txt
def build_file(path,opt):
    from build import HEADER
    import subprocess
    txt=gen(opt)
    pre=HEADER+"; @launch grid=(256,1,1) block=(256,1,1) lds=163840\n"+'.amdgcn_target "amdgcn-amd-amdhsa--gfx950"\n'
    open('sz.s','w').write(pre+txt.replace("CODE_LINES*128","2560").replace("CODE_LINES","20")+kd(NAME,512,256))
    subprocess.run(["clang","-x","assembler","-target","amdgcn-amd-amdhsa","-mcpu=gfx950","-c","sz.s","-o","sz.o"],check=True)
    sym=subprocess.run(["llvm-readelf","-s","sz.o"],capture_output=True,text=True).stdout
    ad={l.split()[-1]:int(l.split()[1],16) for l in sym.split('\n') if l.strip().endswith(('Lpc','Lcode_end'))}
    size=ad['Lcode_end']-ad['Lpc']; n=size//128//32
    print("code bytes",size,"lines/wg",n)
    src=pre+txt.replace("CODE_LINES*128",str(n*128)).replace("CODE_LINES",str(n)).replace("Lcode_end:\n","")+kd(NAME,512,256)
    open(path,'w').write(src)
    import mbh
    co=mbh.build(path,NAME,14,lists=True)
    print("srdcheck:",mbh.cl.address_register_problem(co,NAME),"size",len(src))
if __name__=="__main__":
    build_file(sys.argv[1], json.loads(sys.argv[2]) if len(sys.argv)>2 else {})
```

```python
import re
import common
from common import *
from sched import *

WSZ = 0x4000000
WS_F   = 0x2400000
F_EPOCH= WS_F
F_LN   = WS_F+0x1000
F_HA   = WS_F+0x4000
F_HB   = F_HA+0x4000
F_K    = WS_F+0x10000
F_S    = WS_F+0x20000
F_P    = WS_F+0x24000
OOB    = 0x7ff00000
sXP,sOP=4,6
sWS,sWg,sWu,sS,sWd=8,12,16,20,24
sDP=28; sTAG=30
SK=32; sM0=50; sM0S=51; sXO=52; sHO=53; sGK=58; sKO=59
ST0=86
MODE={'stamp':None}
DEFMAP=['start','ln','flag','g1_0','g1_72','p2|g2_0','fin0|ssm_288','fin1|ssm_end']
def stamp(name):
    if not MODE['stamp']: return []
    j=[k for k,n in enumerate(MODE.get('map') or DEFMAP) if name in n.split('|')]
    if not j: return []
    j=j[0]; assert j<8
    op='s_memrealtime' if MODE['stamp']=='rt' else 's_memtime'
    return [Ins(f"{op} s[{ST0+2*j}:{ST0+2*j+1}]",'stamp')]
def stamp_flush(p, kidx):
    if not MODE['stamp']: return
    p(f"s_lshl_b32 s60, s2, 2\ns_add_u32 s60, s60, s3\ns_lshl_b32 s60, s60, 6\ns_add_u32 s60, s60, {0x3000000+kidx*65536}\nv_mov_b32 v0, 0\ns_waitcnt lgkmcnt(0)")
    for j in range(8):
        p(f"v_mov_b32 v1, s{ST0+2*j}\nbuffer_store_dword v1, v0, s[{sWS}:{sWS+3}], s60 offen offset:{4*j}")

def remap(l, vshift=0, smap={}):
    out=[]
    for i in l:
        t=i.text.split(';')[0]
        t=re.sub(r'\bv\[(\d+):(\d+)\]',lambda m:f"v[{int(m.group(1))+vshift}:{int(m.group(2))+vshift}]",t)
        t=re.sub(r'\bv(\d+)\b',lambda m:f"v{int(m.group(1))+vshift}",t)
        t=re.sub(r'\bs(\d+)\b',lambda m:f"s{smap.get(int(m.group(1)),int(m.group(1)))}",t)
        out.append(Ins(t,i.tag))
    return out

class Ctx:
    def __init__(self): self.ool=[]; self.n=0
    def poll_issue(self, areg, dreg, so, off=0):
        return Ins(f"buffer_load_dword v{dreg}, v{areg}, s[{sWS}:{sWS+3}], s{so} offen offset:{off} sc1",('poll',self.n+1))
    def poll_check(self, areg, dreg, so, off=0, vtag=15):
        self.n+=1; k=self.n
        self.ool.append(f"""
Lspin{k}:
    s_mov_b32 s85, 0
Lspin{k}_l:
    s_sleep 4
    buffer_load_dword v{dreg}, v{areg}, s[{sWS}:{sWS+3}], s{so} offen offset:{off} sc1
    s_add_u32 s85, s85, 1
    s_cmp_gt_u32 s85, 0x8000
    s_cbranch_scc1 Lspin{k}_r
    s_waitcnt vmcnt(0)
    v_cmp_ne_u32 vcc, v{dreg}, v{vtag}
    s_cbranch_vccnz Lspin{k}_l
Lspin{k}_r:
    s_waitcnt vmcnt(0)
    s_branch Lback{k}
""")
        return [WaitVM([('poll',k)]), Ins(f"v_cmp_ne_u32 vcc, v{dreg}, v{vtag}"), Ins(f"s_cbranch_vccnz Lspin{k}"), Ins(f"Lback{k}:")]
```

```python
from pcommon import *
K1C = -2*math.sqrt(2/math.pi)*LOG2E
GK0 = K1C; GK1 = K1C*0.044715
RING=16; NR=3; HP=40; ACC=64
F_HC=F_HA+0x8000
sM2=70; sWO=71; sH2=72; sPO=73; sFA=74; sFP=75; sFQ=76; sFS=77; sFX=78; sTW=79
R2BASE=8192
def xreg(b,t):
    i=4*b+t
    return f"a[{4*i}:{4*i+3}]" if i<64 else f"v[{224+4*(i-64)}:{224+4*(i-64)+3}]"
def hreg(b,t,lo=0,n=4):
    i=2*b+t
    return (f"a[{4*i+lo}:{4*i+lo+n-1}]" if i<64 else f"v[{224+4*(i-64)+lo}:{224+4*(i-64)+lo+n-1}]")

def setup(p):
    w=3; g=2
    p(f"""
    s_and_b32 s60, s2, 7                     ; xcd
    s_lshr_b32 s61, s2, 3                    ; idx
    s_and_b32 s62, s60, 1
    s_lshl_b32 s62, s62, 2
    s_and_b32 s63, s61, 3
    s_add_u32 s62, s62, s63                  ; mt
    s_lshl_b32 s62, s62, 2
    s_add_u32 s62, s62, s3                   ; tok64
    s_lshr_b32 s67, s60, 1                   ; ks
    s_lshl_b32 s68, s62, 2
    s_add_u32 s68, s68, s67
    s_lshl_b32 s68, s68, 3
    s_lshr_b32 s69, s61, 2                   ; slice 0..7
    s_add_u32 s68, s68, s69
    s_lshl_b32 s68, s68, 4
    s_add_u32 s68, s68, {F_HA}
    v_mov_b32 v14, {OOB}
    v_writelane_b32 v14, s68, 0
    v_writelane_b32 v14, s84, 1
    s_lshl_b32 s31, s62, 7
    s_add_u32 s31, s31, {F_LN}
    s_lshl_b32 s60, s67, 1
    s_lshr_b32 s63, s61, 4                   ; q
    s_add_u32 s60, s60, s63
    s_bfe_u32 s69, s61, 0x20002              ; i
    s_mul_i32 s{sXO}, s62, {18*4096}
    s_mul_i32 s63, s62, 144
    s_mul_i32 s64, s60, 18
    s_add_u32 s63, s63, s64
    s_add_u32 s63, s63, {WS_H//4096}
    s_lshl_b32 s64, s69, 2
    s_add_u32 s64, s64, s63
    s_lshl_b32 s{sHO}, s64, 12
    s_add_u32 s{sHO+1}, s{sHO}, 4096
    s_add_u32 s{sHO+2}, s{sHO}, 8192
    s_add_u32 s{sHO+3}, s{sHO}, 12288
    s_lshr_b32 s64, s69, 1
    s_add_u32 s64, s64, s63
    s_add_u32 s64, s64, 16
    s_lshl_b32 s64, s64, 12
    s_and_b32 s65, s69, 1
    s_lshl_b32 s65, s65, 10
    s_add_u32 s{sHO+4}, s64, s65
    s_mul_i32 s63, s60, 1152
    s_lshl_b32 s64, s69, 8
    s_add_u32 s64, s64, s63
    s_and_b32 s65, s61, 3
    s_lshl_b32 s65, s65, 1
    s_lshr_b32 s66, s3, 1
    s_add_u32 s65, s65, s66
    s_mul_i32 s68, s65, 72
    v_add_u32 v57, s68, v0
    v_mul_u32_u24 v57, 9216, v57
    s_add_u32 s68, s64, 128
    v_add_u32 v57, s68, v57
    v_add_u32 v58, {64*9216}, v57
    s_lshl_b32 s68, s65, 3
    s_add_u32 s68, s68, {512-8}
    v_add_u32 v59, s68, v0
    v_mul_u32_u24 v59, 9216, v59
    v_add_u32 v59, s64, v59
    v_cmp_gt_u32 vcc, 8, v0
    v_mov_b32 v60, {OOB}
    s_lshl_b32 s68, s69, 3
    v_cndmask_b32 v58, v59, v58, vcc
    v_cmp_gt_u32 vcc, 16, v0
    s_add_u32 s68, s68, s65
    s_mul_i32 s68, s68, 18
    v_cndmask_b32 v58, v60, v58, vcc
    v_add_u32 v59, s68, v0
    v_mul_u32_u24 v59, 9216, v59
    s_add_u32 s68, s63, 1024
    v_add_u32 v59, s68, v59
    v_cmp_gt_u32 vcc, 18, v0
    s_mul_i32 s65, s3, {8*9216}
    s_add_u32 s64, s64, s65
    v_cndmask_b32 v59, v60, v59, vcc
    s_lshl_b32 s65, s69, 5
    s_add_u32 s65, s65, s63
    s_add_u32 s65, s65, 1024
    s_mul_i32 s66, s66, {32*9216}
    s_add_u32 s65, s65, s66
    s_lshl_b32 s{sM0}, s3, 11
    s_lshl_b32 s{sM0S}, s3, 10
    s_and_b32 s66, s3, 1
    s_lshl_b32 s66, s66, 1
    s_mov_b32 s{sGK}, {fhex(GK1)}
    v_mov_b32 v8, {fhex(GK0)}
    v_lshlrev_b32 v1, 4, v0
    v_lshlrev_b32 v60, 7, v0                 ; lane*128
    v_lshrrev_b32 v10, 3, v0                 ; row
    v_bfe_u32 v11, v0, 4, 1
    v_or_b32 v11, s66, v11
    v_bfe_u32 v12, v0, 1, 2
    v_xor_b32 v11, v11, v12
    v_and_b32 v12, 1, v0
    v_lshlrev_b32 v12, 4, v12
    v_mul_u32_u24 v2, 9216, v10
    v_lshl_add_u32 v2, v11, 5, v2
    v_add3_u32 v2, v2, v12, s64
    v_bfe_u32 v10, v0, 1, 2
    v_bfe_u32 v11, v0, 3, 1
    v_lshl_add_u32 v10, v11, 3, v10
    v_bfe_u32 v11, v0, 4, 1
    v_lshl_add_u32 v10, v11, 2, v10
    v_bfe_u32 v11, v0, 5, 1
    v_lshl_add_u32 v10, v11, 4, v10
    v_mul_u32_u24 v3, 9216, v10
    v_add3_u32 v3, v3, v12, s65
    v_lshrrev_b32 v10, 4, v0
    v_bfe_u32 v11, v0, 2, 2
    v_and_b32 v12, 3, v0
    v_lshlrev_b32 v12, 3, v12
    v_lshl_add_u32 v4, v10, 11, v12
    v_lshl_add_u32 v4, v11, 7, v4
    v_bfe_u32 v13, v0, 3, 2
    v_lshl_add_u32 v4, v13, 5, v4
    v_xor_b32 v5, 32, v4
    v_xor_b32 v6, 64, v4
    v_xor_b32 v7, 96, v4
    v_bfe_u32 v11, v0, 2, 3                  ; 4*(g&1)+e
    v_lshl_add_u32 v9, v11, 5, v12
    v_lshrrev_b32 v10, 5, v0
    v_lshl_add_u32 v9, v10, 9, v9
    v_mul_u32_u24 v10, 3072, v10
    v_lshl_add_u32 v10, v11, 7, v10
    v_lshl_add_u32 v10, v13, 5, v10
    v_add_u32 v56, v10, v12
    v_add_u32 v56, {R2BASE}, v56
    s_lshl_b32 s63, s61, 2
    s_add_u32 s63, s63, s3
    s_mul_i32 s63, s63, {81*128}
    s_mul_i32 s{sWO}, s67, {1152*1152}
    s_add_u32 s{sTW}, s63, s{sWO}
    s_add_u32 s{sTW}, s{sTW}, 2048
    """)
    for b in range(18): p(f"s_mov_b32 s{SK+b}, {b*32*9216}")
def setup_g2(p):
    p(f"""
    s_and_b32 s60, s2, 1
    s_lshl_b32 s60, s60, 3
    s_and_b32 s63, s61, 7
    s_add_u32 s60, s60, s63                  ; mt128
    s_lshr_b32 s61, s61, 3                   ; nt
    s_lshl_b32 s62, s60, 1
    s_lshr_b32 s63, s3, 1
    s_add_u32 s62, s62, s63                  ; tok64
    s_lshl_b32 s64, s62, 2
    s_add_u32 s64, s64, s67
    s_lshl_b32 s64, s64, 7
    s_add_u32 s{sFA}, s64, {F_HA}
    s_and_b32 s63, s3, 1
    s_lshl_b32 s63, s63, 11                  ; tb0*1024
    s_mul_i32 s64, s62, 144
    s_mul_i32 s65, s67, 36
    s_add_u32 s64, s64, s65
    s_lshl_b32 s64, s64, 12
    s_add_u32 s64, s64, s63
    s_add_u32 s{sH2}, s64, {WS_H}
    s_lshl_b32 s64, s67, 5
    s_add_u32 s64, s64, s62
    s_mul_i32 s64, s64, 18
    s_mul_i32 s65, s61, 6
    s_add_u32 s64, s64, s65
    s_lshl_b32 s64, s64, 12
    s_add_u32 s64, s64, s63
    s_add_u32 s{sPO}, s64, {WS_P}
    s_mul_i32 s64, s60, 3
    s_add_u32 s64, s64, s61
    s_lshl_b32 s64, s64, 9
    s_add_u32 s64, s64, {F_P}
    s_lshl_b32 s66, s3, 7
    s_lshl_b32 s68, s67, 4
    s_add_u32 s66, s66, s68
    s_add_u32 s{sFP}, s64, s66
    s_lshl_b32 s66, s67, 7
    s_add_u32 s{sFQ}, s64, s66
    s_lshl_b32 s62, s60, 1
    s_lshr_b32 s63, s67, 1
    s_add_u32 s62, s62, s63
    s_mul_i32 s62, s62, 18
    s_add_u32 s62, s62, s65
    s_lshr_b32 s64, s3, 1
    s_add_u32 s62, s62, s64
    s_lshl_b32 s62, s62, 2
    s_and_b32 s63, s67, 1
    s_lshl_b32 s63, s63, 1
    s_and_b32 s66, s3, 1
    s_add_u32 s63, s63, s66
    s_add_u32 s62, s62, s63
    s_lshl_b32 s{sFS}, s62, 10
    s_lshl_b32 s62, s60, 2
    s_add_u32 s62, s62, s67
    s_lshl_b32 s62, s62, 1
    s_add_u32 s62, s62, s66
    s_mul_i32 s62, s62, {16*1152}
    s_add_u32 s65, s65, s64
    s_lshl_b32 s65, s65, 6
    s_add_u32 s{sFX}, s62, s65
    s_mul_i32 s64, s61, 384
    s_mul_i32 s65, s3, {8*1152}
    s_add_u32 s64, s64, s65
    s_add_u32 s64, s64, 2048
    s_mul_i32 s{sM2}, s3, 3072
    s_add_u32 s{sM2}, s{sM2}, {R2BASE}
    v_lshrrev_b32 v10, 3, v0
    v_lshrrev_b32 v11, 4, v0
    v_bfe_u32 v12, v0, 1, 2
    v_xor_b32 v11, v11, v12
    v_and_b32 v12, 1, v0
    v_lshlrev_b32 v12, 4, v12
    v_mul_u32_u24 v10, 1152, v10
    v_lshl_add_u32 v10, v11, 5, v10
    v_add3_u32 v61, v10, v12, s64
    v_and_b32 v62, 0x70, v1
    """)

HST=['sc1']
def gelu_ops(c, aset):
    ops=[]; base=ACC+32*aset
    for t in range(4):
        o=[]
        g=[base+4*t+j for j in range(4)]; u=[base+16+4*t+j for j in range(4)]
        tm=[10+(4*t+j)%4 for j in range(4)]
        for j in range(4):
            o+= [f"v_mul_f32 v{tm[j]}, v{g[j]}, v{g[j]}", f"v_mul_f32 v{u[j]}, v{u[j]}, v{g[j]}",
                 f"v_fma_f32 v{tm[j]}, v{tm[j]}, s{sGK}, v8", f"v_mul_f32 v{g[j]}, v{tm[j]}, v{g[j]}", f"v_exp_f32 v{g[j]}, v{g[j]}"]
        for j in range(4): o+=[f"v_add_f32 v{g[j]}, 1.0, v{g[j]}", f"v_rcp_f32 v{g[j]}, v{g[j]}"]
        for j in range(4): o.append(f"v_mul_f32 v{u[j]}, v{u[j]}, v{g[j]}")
        d=HP+4*t+2*(c&1) if c<8 else HP+2*t
        o+=[f"v_cvt_pk_bf16_f32 v{d}, v{u[0]}, v{u[1]}", f"v_cvt_pk_bf16_f32 v{d+1}, v{u[2]}, v{u[3]}"]
        if c<8 and c&1: o.append(f"buffer_store_dwordx4 v[{HP+4*t}:{HP+4*t+3}], v1, s[{sWS}:{sWS+3}], s{sHO+c//2} offen offset:{1024*t} {HST[0]}")
        if c==8 and t&1: o.append(f"buffer_store_dwordx4 v[{HP+2*t-2}:{HP+2*t+1}], v1, s[{sWS}:{sWS+3}], s{sHO+4} offen offset:{1024*(t-1)} {HST[0]}")
        ops.append([Ins(x,('hst',c//2)) for x in o])
    return ops

def flag_store(off): return Ins(f"buffer_store_dword v15, v14, s[{sWS}:{sWS+3}], s80 offen sc1",'flag'), Ins(f"s_mov_b32 s80, {off}")
def touch(areg, srd_, so, fl, off=0): return Ins(f"buffer_load_dword v63, v{areg}, s[{srd_}:{srd_+3}], {so} offen offset:{off} {fl}",'touch')

class G1:
    def __init__(s, opt):
        s.opt=opt; HST[0]=opt.get('hst','sc1'); TF=opt.get('tf','nt')
        HU=[]
        for j in range(9):
            for c in range(4):
                for m in range(2): HU.append((c,m,j))
        def seg(c,j0,j1):
            for j in range(j0,j1):
                for m in range(2): HU.append((c,m,j))
        seg(4,0,3); seg(5,0,3); seg(4,3,9); seg(6,0,3); seg(7,0,3); seg(5,3,9); seg(6,3,9); seg(7,3,9); seg(8,0,9)
        s.HU=HU; nH=len(HU)
        aset={0:0,1:1,2:2,3:3,4:4,5:0,6:1,7:2,8:3}; s.aset=aset
        def slot_addr(c,m,j,k):
            b=2*j+k
            if c<4: return b*8192+m*1024
            if c<8: return ((18+b)%20)*8192+m*1024
            return ((36+j//2)%20)*8192+(j&1)*4096+k*2048+m*1024
        win={r:0 for r in (4,5,6,7,9)}
        def reads(h):
            c,m,j=HU[h]; r=9 if c==8 else 4+c%4; R=RING+8*(h%NR); o=[]
            w=slot_addr(c,m,j,0)>>16
            if w!=win[r]:
                o.append(Ins(f"v_add_u32 v{r}, {((w-win[r])*65536)&0xffffffff}, v{r}")); win[r]=w
            d2=256 if c==8 else 512
            for k in range(2):
                a=slot_addr(c,m,j,k)-w*65536
                o.append(Ins(f"ds_read_b64_tr_b16 v[{R+4*k}:{R+4*k+1}], v{r} offset:{a}"))
                o.append(Ins(f"ds_read_b64_tr_b16 v[{R+4*k+2}:{R+4*k+3}], v{r} offset:{a+d2}"))
            return o
        XF=opt.get('xf','sc1'); WF=opt.get('wf','')
        def xload(b):
            o=[[Ins(f"buffer_load_dwordx4 {xreg(b,t)}, v1, s[{sWS}:{sWS+3}], s{sXO} offen offset:{1024*t} {XF}",('x',b))] for t in range(4)]
            if b<17: o[3].append(Ins(f"s_add_u32 s{sXO}, s{sXO}, 4096"))
            return o
        def wload(grp,b):
            sl=(18*grp+b)%20
            return [[Ins(f"s_add_u32 m0, s{sM0}, {sl*8192}")],
                    [Ins(f"buffer_load_dwordx4 v2, s[{sWg}:{sWg+3}], s{SK+b} offen {WF} lds",('w',grp,b))],
                    [Ins(f"buffer_load_dwordx4 v2, s[{sWu}:{sWu+3}], s{SK+b} offen offset:1024 {WF} lds",('w',grp,b))]]
        def sload(j):
            return [[Ins(f"s_add_u32 m0, s{sM0S}, {slot_addr(8,0,j,0)}")],
                    [Ins(f"buffer_load_dwordx4 v3, s[{sS}:{sS+3}], s{SK+2*j} offen {WF} lds",('s',j))]]
        NX0=opt.get('nx0',2)
        s.pro=sum((g for b in range(NX0) for g in xload(b)),[])
        s.pro.append(Ins("s_barrier")); s.pro+=reads(0)+reads(1)
        pre={}; post={}; mf=[]
        s.pre,s.post,s.mf=pre,post,mf
        for h,(c,m,j) in enumerate(HU):
            R=RING+8*(h%NR)
            for t in range(4):
                d=ACC+32*aset[c]+16*m+4*t
                for k in range(2):
                    cc="0" if (j==0 and k==0) else f"v[{d}:{d+3}]"
                    mf.append(Ins(f"v_mfma_f32_16x16x32_bf16 v[{d}:{d+3}], v[{R+4*k}:{R+4*k+3}], {xreg(2*j+k,t)}, {cc}"))
            pre.setdefault(8*h,[]).append(Ins(f"s_waitcnt lgkmcnt({4 if h+1<nH else 0})"))
            if h+2<nH:
                r=reads(h+2)
                if len(r)==5: pre[8*h].insert(0,r.pop(0))
                post.setdefault(8*h,[]).extend(r[:2]); post.setdefault(8*h+2,[]).extend(r[2:])
        for j in range(9): pre[64*j].append(WaitVM([('x',2*j),('x',2*j+1)]))
        XE=opt.get('xend',40)
        s.place(sum((xload(b) for b in range(NX0,18)),[]),0,XE)
        ht=opt.get('ht',18)
        post.setdefault(8*ht+7,[]).append(touch(57,sS,0,TF)); post.setdefault(8*ht+15,[]).append(touch(58,sS,0,TF))
        hk=opt.get('hk',33)
        for k in range(4): post.setdefault(8*(hk+k)+7,[]).append(Ins(f"buffer_store_dwordx4 v[{HP+4*k}:{HP+4*k+3}], v192, s[{sWS}:{sWS+3}], s{sKO} offen offset:{1024*k} sc1",'kst'))
        b1,b2=opt.get('bars',(40,62))
        pre[8*b1].append(WaitVM([],True))
        n1=2+2*((b1+1)//8)
        n1=min(n1,opt.get('n1',10))
        s.place(wload(0,16)+wload(0,17)+[[Ins("v_add_u32 v2, 128, v2")]]+sum((wload(1,b) for b in range(n1)),[]),max(XE,b1),b2)
        pre[8*b2].append(WaitVM([('w',0,16),('w',0,17)]+[('w',1,b) for b in range(opt.get('n2',6))],True))
        assert b2==62
        s.place(sum((wload(1,b) for b in range(n1,18)),[]),63,76)
        pre[8*82].append(WaitVM([('w',1,b) for b in range(18)],True))
        post.setdefault(8*83+4,[]).append(touch(59,sS,0,TF))
        post.setdefault(8*84+4,[]).append(touch(60,sWd,f"s{sTW}",TF))
        post.setdefault(8*85+4,[]).append(touch(60,sWd,f"s{sTW}",TF,17*128))
        pre[8*108].append(WaitVM([],True))
        s.place(sum((sload(j) for j in range(9)),[]),108,126)
        hf=opt.get('hfa',128)
        a,b=flag_store(0)
        pre[8*hf]+=[WaitVM([('hst',1)])]; post.setdefault(8*hf-2,[]).append(b); post.setdefault(8*hf+1,[]).append(a)
        if opt.get('htouch',1): post.setdefault(8*hf+4,[]).append(touch(60,sWS,f"s{sHO}",''))
        pre[8*142].append(WaitVM([('s',j) for j in range(9)],True))
        for h in range(nH): pre[8*h]+=stamp(f'g1_{h}')
        G=lambda c:gelu_ops(c,aset[c])
        s.streams=[(8*(66+12*c)+1,8*(78+12*c),sum(G(c),[])) for c in range(6)]
        g6=G(6); s.streams+=[(8*138+1,8*144,g6[0]+g6[1]),(8*144,8*150,g6[2]+g6[3])]
        s.streams.append((8*150,8*162,sum(G(7),[])))
        s.gS=sum(G(8),[])
    def place(s,groups,h0,h1,offs=(1,3,4,5,6)):
        gaps=[8*h+o for h in range(h0,h1) for o in offs if not (s.post.get(8*h+o))]
        assert len(groups)<=len(gaps),(len(groups),len(gaps))
        for i,g in enumerate(groups): s.post.setdefault(gaps[i*len(gaps)//len(groups)],[]).extend(g)

SEQ=[18*Q+4*i for Q in range(2) for i in range(4)]+[18*Q+4*i+2 for Q in range(2) for i in range(4)]+[16,34]
RG=[192,208,16]; AW=[[4,5,6,7],[32,33,34,35],[36,37,38,39]]; PK=40
def add_g2(s, cx):
    opt=s.opt; pre,post,mf=s.pre,s.post,s.mf; H0=162
    NSEC=opt.get('nsec',2)
    HU=[(j,cp) for j in range(18-NSEC) for cp in range(6)]+[(j,cp) for cp in range(6) for j in range(18-NSEC,18)]
    nH=len(HU); blk=lambda n:SEQ[n//2]+(n&1)
    def reads(h):
        j,cp=HU[h]; R=RG[h%3]; o=[]
        for x in range(2):
            ct=2*cp+x
            for k in range(2):
                sl=(2*j+k)%12; r=AW[sl//4][ct&3]; a=(sl%4)*12288+(ct>>2)*1024; d=R+8*x+4*k
                o.append(Ins(f"ds_read_b64_tr_b16 v[{d}:{d+1}], v{r} offset:{a}"))
                o.append(Ins(f"ds_read_b64_tr_b16 v[{d+2}:{d+3}], v{r} offset:{a+6144}"))
        return o
    HF=opt.get('hf','sc1'); WF=opt.get('wf2','')
    DV=[61,2,3]
    def wl(n):
        o=[[Ins(f"s_add_u32 m0, s{sM2}, {(n%12)*12288}"),Ins(f"s_add_u32 s81, s{sWO}, {blk(n)*32*1152}")]]
        for jc in range(3): o.append([Ins(f"buffer_load_dwordx4 v{DV[jc]}, s[{sWd}:{sWd+3}], s81 offen offset:{1024*jc} {WF} lds",('w2',n))])
        return o
    def hl(n):
        o=[[Ins(f"s_add_u32 s82, s{sH2}, {blk(n)*4096}")]]
        if n<32:
            for t in range(2): o.append([Ins(f"buffer_load_dwordx4 {hreg(n,t)}, v1, s[{sWS}:{sWS+3}], s82 offen offset:{1024*t} {HF}",('h2',n))])
        else:
            for sub in range(2):
                for t in range(2): o.append([Ins(f"buffer_load_dwordx2 {hreg(n,t,2*sub,2)}, v1, s[{sWS}:{sWS+3}], s82 offen offset:{1024*sub+8*t}",('h2',n))])
        return o
    G=lambda h:8*(H0+h)
    for h,(j,cp) in enumerate(HU):
        R=RG[h%3]
        for x in range(2):
            for t in range(2):
                d=ACC+8*(2*cp+x)+4*t
                for k in range(2):
                    cc="0" if (j==0 and k==0) else f"v[{d}:{d+3}]"
                    mf.append(Ins(f"v_mfma_f32_16x16x32_bf16 v[{d}:{d+3}], v[{R+8*x+4*k}:{R+8*x+4*k+3}], {hreg(2*j+k,t)}, {cc}"))
        pre.setdefault(G(h),[]).append(Ins(f"s_waitcnt lgkmcnt({8 if h+1<nH else 0})"))
    pre[G(-1)]=[Ins("s_waitcnt lgkmcnt(8)")]
    for h in range(-2,nH-2):
        r=reads(h+2)
        for gi,a in zip((0,1,3,5),(0,2,4,6)): post.setdefault(G(h)+gi,[]).extend(r[a:a+2])
    tr=[[Ins("v_mov_b32 v4, v56"),Ins("v_xor_b32 v5, 32, v56")],[Ins("v_xor_b32 v6, 64, v56"),Ins("v_xor_b32 v7, 96, v56")],
        [Ins("v_subrev_u32 v2, 896, v61"),Ins("v_subrev_u32 v3, 1792, v61")],[cx.poll_issue(62,57,sFA)]]
    s.place(tr,144,146)
    pre[G(-14)]+=cx.poll_check(62,57,sFA)
    NP=opt.get('np2',6)
    s.place(sum((wl(n) for n in range(2)),[]),146,148)
    s.place(hl(0)+hl(1)+sum((wl(n)+hl(n) for n in range(2,NP)),[]),148,158)
    pre[G(-2)].append(WaitVM([(k,n) for n in range(min(NP,4)) for k in('w2','h2')],True))
    aw=[[Ins(f"v_add_u32 v{AW[w][c]}, {49152*w}, v{AW[0][c]}") for c in (c0,c0+1)] for w in (1,2) for c0 in (0,2)]
    for i,g in enumerate(aw): post.setdefault(G(i)+7,[]).extend(g[:1]); post.setdefault(G(i+4)+7,[]).extend(g[1:])
    bars={10:range(4,6),16:range(6,8)}
    for e in range(2,9): bars[12*e-2]=range(4*e,4*e+4)
    if NSEC>2: bars[6*(18-NSEC)+(NSEC-2)-2]=bars.pop(94)
    for h,bl in bars.items(): pre[G(h)].append(WaitVM([(k,n) for n in bl for k in('w2','h2')],True))
    need={n:h for h,bl in bars.items() for n in bl}
    hB=opt.get('hB',22); hC=opt.get('hC',66)
    E=opt.get('e2',86); items=[]
    for n in range(NP,36):
        ew=2 if n>=10 else 0
        if n>=12:
            last=6*((n-12)//2)+5
            ew=min(max(q, last+3 if q<last else q) for q in bars if q>=last-1)
        eh=0 if n<16 else (hB if n<32 else hC)
        items+=[(ew,g,n) for g in wl(n)]+[(eh,g,n) for g in hl(n)]
    gaps=[(h,o) for h in range(0,100) for o in (2,4,6)]
    gi=0; tot=len(items)
    for i,(e,g,n) in enumerate(items):
        gi=max(gi, i*3*E//tot, 3*e)
        h,o=gaps[gi]; assert h<=need[n]-opt.get('margin2',4),(n,h,need[n])
        post.setdefault(G(h)+o,[]).extend(g); gi+=1
    hlast=h
    gE=opt.get('gE',44)
    s.streams.append((G(0)+4,G(gE),s.gS))
    for (hh,tag,off,to) in ((opt.get('hfb',9),('hst',3),0x4000,sHO+2),(gE+9,('hst',4),0x8000,None)):
        a,b=flag_store(off)
        pre[G(hh)]+=[WaitVM([tag])]; post.setdefault(G(hh-1)+7,[]).append(b); post.setdefault(G(hh)+7,[]).append(a)
        if to and opt.get('htouch',1): post.setdefault(G(hh+1)+7,[]).append(touch(60,sWS,f"s{to}",''))
    for hh in (hB,hC):
        post.setdefault(G(hh-5)+7,[]).extend([Ins(f"s_add_u32 s{sFA}, s{sFA}, 0x4000"),cx.poll_issue(62,57,sFA)])
        pre[G(hh)]+=cx.poll_check(62,57,sFA)
    for h in range(nH): pre[G(h)]+=stamp(f'g2_{h}')
    OWN=R2BASE
    su=[f"v_bfe_u32 v10, v1, 8, 1",f"v_bfe_u32 v11, v1, 9, 1","v_lshl_add_u32 v10, v10, 1, v11","v_and_b32 v11, 0xf0, v1","v_lshl_add_u32 v58, v10, 8, v11",
        "s_mul_i32 s83, s3, 12288",f"s_add_u32 s83, s83, {OWN}","v_add_u32 v59, s83, v58",
        "v_mul_u32_u24 v60, 72, v11","v_lshrrev_b32 v10, 8, v1","v_lshl_add_u32 v60, v10, 4, v60",
        "s_bfe_u32 s83, s2, 0x20001","s_mul_i32 s84, s83, 12288","s_lshl_b32 s83, s3, 10","s_add_u32 s84, s84, s83",f"s_add_u32 s84, s84, {OWN}","v_add_u32 v9, s84, v1",
        f"s_mov_b32 s{sWg}, s{sXP}",f"s_mov_b32 s{sWg+1}, s{sXP+1}",f"s_mov_b32 s{sWg+2}, {XB}",
        f"s_mov_b32 s{sWu}, s{sOP}",f"s_mov_b32 s{sWu+1}, s{sOP+1}",f"s_mov_b32 s{sWu+2}, {XB}",
        "s_bfe_u32 s83, s2, 0x20001","s_cmp_eq_u32 s83, s3",f"s_cselect_b32 s84, {OOB}, 0","v_or_b32 v58, s84, v58"]
    for i in range(1,4): su+=[f"s_add_u32 s84, s83, {i}","s_and_b32 s84, s84, 3",f"s_mul_i32 s84, s84, {XB}",f"s_add_u32 s84, s84, s{sFS}",f"s_add_u32 s{31+i}, s84, {WS_P}"]
    su+=[f"s_add_u32 s35, s{sFS}, {WS_S}",f"s_mov_b32 s36, {F_S}","v_and_b32 v61, 0x30, v1","v_mov_b32 v14, 0"]
    XR=160; SR=172; OR=184
    su+=[f"buffer_load_dwordx4 v[{XR+4*k}:{XR+4*k+3}], v60, s[{sWg}:{sWg+3}], s{sFX} offen offset:{128*k}" for k in range(3)]
    s.streams.append((G(max(gE+11,hlast+1)),G(96),[Ins(x,'xl') for x in su]))
    for cp in range(6):
        ops=[]
        for t in range(2):
            a0=ACC+8*(2*cp)+4*t; a1=a0+8; d=PK+4*((2*cp+t)%4)
            ops+=[f"v_cvt_pk_bf16_f32 v{d}, v{a0}, v{a0+1}",f"v_cvt_pk_bf16_f32 v{d+2}, v{a1}, v{a1+1}",
                  f"v_cvt_pk_bf16_f32 v{d+1}, v{a0+2}, v{a0+3}",f"v_cvt_pk_bf16_f32 v{d+3}, v{a1+2}, v{a1+3}"]
        for t in range(2):
            d=PK+4*((2*cp+t)%4)
            ops+=[f"v_permlane16_swap_b32 v{d}, v{d+2}",f"v_permlane16_swap_b32 v{d+1}, v{d+3}",
                  f"buffer_store_dwordx4 v[{d}:{d+3}], v58, s[{sWS}:{sWS+3}], s{sPO} offen offset:{1024*t} sc1",
                  f"ds_write_b128 v59, v[{d}:{d+3}] offset:{2048*cp+1024*t}"]
        if cp<5: ops.append(f"s_add_u32 s{sPO}, s{sPO}, 4096")
        hd=6*(18-NSEC)+NSEC*(cp+1)
        s.streams.append((G(hd)+3, 99999, [Ins(o,('pst',cp//4)) for o in ops]))
    return XR,SR

def final(cx, XR, SR, opt):
    import k3
    o=[]; I=lambda t,tag=None:o.append(Ins(t,tag))
    o+=stamp('fin0')
    P=64; OWN=112; T=128
    I("s_mov_b64 exec, 1")
    o.append(WaitVM([('pst',0)])); I(f"buffer_store_dword v15, v14, s[{sWS}:{sWS+3}], s{sFP} offen sc1",'flag')
    o.append(WaitVM([('pst',1)])); I(f"buffer_store_dword v15, v14, s[{sWS}:{sWS+3}], s{sFP} offen offset:64 sc1",'flag')
    I("s_mov_b64 exec, -1")
    o.append(cx.poll_issue(1,57,36))
    I("s_waitcnt lgkmcnt(0)"); I("s_barrier")
    for k in range(3): I(f"ds_read_b128 v[{OWN+4*k}:{OWN+4*k+3}], v9 offset:{4096*k}")
    o+=cx.poll_check(1,57,36)
    for k in range(3):
        I(f"buffer_load_dwordx4 v[{SR+4*k}:{SR+4*k+3}], v1, s[{sWS}:{sWS+3}], s35 offen sc1",('sl',k))
        if k<2: I("s_add_u32 s35, s35, 8192")
    def ploads(k):
        for i in range(3):
            I(f"buffer_load_dwordx4 v[{P+16*k+4*i}:{P+16*k+4*i+3}], v1, s[{sWS}:{sWS+3}], s{32+i} offen sc1",('pl',k))
            if k<2: I(f"s_add_u32 s{32+i}, s{32+i}, 8192")
    def math(k):
        o.append(WaitVM([('pl',k),('sl',k),'xl']))
        q=Prog(); k3.final_math(q,[OWN+4*k,P+16*k,P+16*k+4,P+16*k+8],SR+4*k,XR+4*k,T); o.extend(q.l)
        I(f"buffer_store_dwordx4 v[{XR+4*k}:{XR+4*k+3}], v60, s[{sWu}:{sWu+3}], s{sFX} offen offset:{128*k}",'out')
    o.append(cx.poll_issue(61,57,sFQ)); o+=cx.poll_check(61,57,sFQ)
    o+=stamp('fin1')
    ploads(0); ploads(1)
    o.append(cx.poll_issue(61,57,sFQ,64)); o+=cx.poll_check(61,57,sFQ,64)
    ploads(2)
    I("s_waitcnt lgkmcnt(0)")
    math(0); math(1); math(2)
    return o
```

```python
from pcommon import *
import pg
XR0=8192; XR1=XR0+32768; KB=XR1+32768; KCS=4128; UB=KB+9*KCS; UCS=4624; UDS=1152
assert UB%16==0 and UB+9*UCS<=163840 and UB<=131072
ZL=XR0; ZS=8208
ABUF=[0,64]; BBUF=[128,192]; SETS=[64,96,128,160,192]; UT=224; TT=192; Z0=240
sG0,sG1,sKA,sKX,sKL,sXS,sCH,sDA,sQ=70,71,72,73,74,75,76,77,78
def setup_ssm(p):
    p(f"""
    s_and_b32 s60, s2, 7
    s_lshr_b32 s61, s2, 3
    s_sub_u32 s{sCH}, s61, 24
    s_lshl_b32 s62, s60, 3
    s_add_u32 s{sQ}, s62, s{sCH}             ; q
    s_add_u32 s63, s60, 64
    s_lshr_b32 s64, s{sQ}, 2
    s_lshl_b32 s64, s64, 12
    s_and_b32 s65, s{sQ}, 3
    s_lshl_b32 s65, s65, 8
    s_add_u32 s66, s64, s65
    s_lshr_b32 s64, s63, 2
    s_lshl_b32 s64, s64, 12
    s_and_b32 s65, s63, 3
    s_lshl_b32 s65, s65, 8
    s_add_u32 s67, s64, s65
    s_mul_i32 s64, s3, {8*18*4096}
    s_add_u32 s{sG0}, s66, s64
    s_add_u32 s{sG1}, s67, s64
    s_lshl_b32 s64, s{sQ}, 3
    s_add_u32 s64, s64, s3                   ; chA
    s_lshl_b32 s{sDA}, s64, 1
    s_lshl_b32 s64, s64, 12
    s_add_u32 s{sKA}, s64, {WS_K}
    s_lshl_b32 s64, s{sQ}, 12
    s_lshl_b32 s65, s3, 10
    s_add_u32 s64, s64, s65
    s_add_u32 s{sKX}, s64, {WS_K+512*4096}
    s_mul_i32 s64, s3, {KCS}
    s_add_u32 s{sKL}, s64, {KB+32}
    s_mul_i32 s64, s3, {18*4096}
    s_add_u32 s64, s64, s67
    s_lshl_b32 s65, s{sCH}, 1
    s_add_u32 s64, s64, s65
    s_add_u32 s{sXS}, s64, {WS_S}
    v_lshrrev_b32 v10, 4, v0                 ; g
    v_and_b32 v11, 0xf0, v1
    v_lshl_add_u32 v62, v10, 10, v11         ; tb*1024+n*16
    v_bfe_u32 v11, v0, 2, 2                  ; e
    v_and_b32 v12, 32, v0
    v_lshl_add_u32 v12, v11, 2, v12
    v_and_b32 v10, 1, v10
    v_lshl_add_u32 v12, v10, 1, v12
    v_lshlrev_b32 v12, 4, v12
    v_and_b32 v11, 3, v0
    v_lshl_add_u32 v12, v11, 3, v12
    s_lshl_b32 s64, s3, 13
    v_add_u32 v56, s64, v12
    v_and_b32 v10, 7, v0
    v_bfe_u32 v11, v0, 3, 2
    v_lshrrev_b32 v12, 5, v0
    v_mul_u32_u24 v11, {UDS}, v11
    v_lshl_add_u32 v11, v12, 4, v11
    v_mul_u32_u24 v10, {UCS}, v10
    s_lshl_b32 s64, s3, 8
    s_add_u32 s64, s64, {UB+128}
    v_add3_u32 v61, v10, v11, s64
    """)

def add_ssm(s, cx):
    opt=s.opt; pre,post=s.pre,s.post
    LF='sc1'
    def xr(base,so,tag):
        return [[Ins(f"s_add_u32 m0, s32, {base+1024*k}"), Ins(f"s_add_u32 s81, s{so}, {WS_XN+k*18*4096}")] for k in range(8)], \
               [[Ins(f"buffer_load_dwordx4 v62, s[{sWS}:{sWS+3}], s81 offen {LF} lds",tag)] for k in range(8)]
    def il(a,b): return [x for pr in zip(a,b) for x in pr]
    def kl(m0,so,tag,n=4):
        return [m0]+[[Ins(f"buffer_load_dwordx4 v1, s[{sWS}:{sWS+3}], s{so} offen offset:{1024*k} {LF} lds",tag)] for k in range(n)]
    tr=[[Ins("s_lshl_b32 s32, s3, 13"),Ins("s_lshl_b32 s33, s3, 10")],[Ins(f"s_add_u32 s34, s33, {F_LN}"),Ins(f"s_lshl_b32 s35, s{sQ}, 7")],
        [cx.poll_issue(1,57,34)]]
    c1=cx.poll_check(1,57,34)
    tr+=[[Ins(f"s_add_u32 s35, s35, {F_K}"),Ins("v_min_u32 v58, 8, v0")],[Ins("v_lshlrev_b32 v58, 3, v58"),Ins(f"v_mov_b32 v5, s{sDA}")],[cx.poll_issue(58,59,35)]]
    c2=cx.poll_check(58,59,35)
    tr+=[[Ins(f"v_lshlrev_b32 v6, 1, s{sQ}")]]
    s.place(tr,144,146)
    pre[8*149]+=c1+c2
    g=il(*xr(XR0,sG0,'xr0'))+kl([Ins(f"s_mov_b32 m0, s{sKL}")],sKA,'kA')
    g+=[[Ins(f"global_load_ushort v2, v5, s[{sDP}:{sDP+1}]",'d')],[Ins(f"global_load_ushort v3, v5, s[{sDP}:{sDP+1}] offset:8",'d')],[Ins(f"global_load_ushort v4, v6, s[{sDP}:{sDP+1}] offset:1024",'d')]]
    s.place(g,149,160)
    late=kl([Ins(f"s_add_u32 m0, s33, {KB+32+8*KCS}")],sKX,'kX',1)+il(*xr(XR1,sG1,'xr1'))+kl([Ins(f"s_add_u32 m0, s{sKL}, {4*KCS}"),Ins(f"s_add_u32 s{sKA}, s{sKA}, {4*4096}")],sKA,'kB')
    t=[232+i for i in range(8)]
    g_,i_,e_,cg,a,b,c,d=t
    q=Prog()
    q(f"""
    s_barrier
    v_mov_b32 v{Z0}, 0
    v_mov_b32 v{Z0+1}, 0
    v_mov_b32 v{Z0+2}, 0
    v_mov_b32 v{Z0+3}, 0
    v_lshrrev_b32 v{a}, 3, v0
    v_and_b32 v{b}, 0x70, v1
    s_mul_i32 s36, s3, {UDS}
    s_add_u32 s37, s36, {UB}
    v_add_u32 v{b}, s37, v{b}
    v_mul_u32_u24 v{a}, {UCS}, v{a}
    v_add_u32 v{a}, v{a}, v{b}
    ds_write_b128 v{a}, v[{Z0}:{Z0+3}]
    ds_write_b128 v{b}, v[{Z0}:{Z0+3}] offset:{8*UCS}
    v_lshrrev_b32 v{a}, 1, v0
    v_min_u32 v{a}, 8, v{a}
    v_mul_u32_u24 v{a}, {KCS}, v{a}
    v_and_b32 v{b}, 16, v1
    v_add3_u32 v{a}, v{a}, v{b}, s38
    ds_write_b128 v{a}, v[{Z0}:{Z0+3}]
    """)
    z=q.l; z.insert(1,Ins(f"s_mov_b32 s38, {KB}"))
    q=Prog()
    q(f"""
    v_lshrrev_b32 v{g_}, 4, v0
    v_and_b32 v{i_}, 15, v0
    v_bfe_u32 v{e_}, v0, 2, 2
    v_and_b32 v{cg}, 3, v0
    v_lshl_add_u32 v{a}, v{g_}, 3, v{e_}
    v_sub_u32 v{a}, v{cg}, v{a}
    v_add_u32 v{a}, 24, v{a}
    v_lshlrev_b32 v{a}, 3, v{a}
    v_add_u32 v17, s{sKL}, v{a}
    v_add_u32 v18, {KB+32+8*KCS}, v{a}
    v_lshlrev_b32 v{a}, 3, v{i_}
    v_lshl_add_u32 v{a}, v{g_}, 4, v{a}
    s_mul_i32 s39, s3, {UCS}
    s_add_u32 s39, s39, {UB+8}
    v_add_u32 v19, s39, v{a}
    s_add_u32 s37, s36, {UB+8+8*UCS}
    v_add_u32 v20, s37, v{a}
    """)
    early=q.l
    q=Prog()
    q(f"""
    v_and_b32 v{a}, 7, v0
    v_cmp_eq_u32 s[40:41], s{sCH}, v{a}
    v_cmp_eq_u32 s[42:43], 63, v0
    v_sub_u32 v{a}, 8, v{a}
    v_mul_u32_u24 v{a}, {UCS}, v{a}
    v_add_u32 v16, v61, v{a}
    v_lshl_add_u32 v{a}, v{i_}, 2, v{g_}
    s_add_u32 s39, s39, 120
    v_lshl_add_u32 v24, v{a}, 1, s39
    v_lshl_add_u32 v25, v{a}, 3, s{sKL}
    s_mul_i32 s37, s3, {ZS}
    s_add_u32 s37, s37, {ZL+16}
    v_lshl_add_u32 v26, v{a}, 4, s37
    v_subrev_u32 v{a}, 16, v0
    v_add_u32 v{b}, 47, v0
    v_cmp_gt_u32 vcc, 16, v0
    v_mov_b32 v{c}, 63
    v_lshlrev_b32 v{d}, 6, s3
    v_cndmask_b32 v{a}, v{a}, v{b}, vcc
    v_cmp_eq_u32 vcc, 0, v0
    v_add_u32 v{d}, v{d}, v0
    v_lshlrev_b32 v28, 2, v{d}
    v_cndmask_b32 v{a}, v{a}, v{c}, vcc
    v_lshlrev_b32 v27, 2, v{a}
    v_add_u32 v28, {ZL+4}, v28
    v_and_b32 v{a}, 3, v{d}
    v_mul_u32_u24 v{a}, {UDS}, v{a}
    v_lshrrev_b32 v{b}, 2, v{d}
    v_lshl_add_u32 v{a}, v{b}, 1, v{a}
    v_add_u32 v29, {UB+8*UCS+128}, v{a}
    v_mul_u32_u24 v{a}, {KCS}, v{e_}
    v_lshl_add_u32 v{a}, v{g_}, 5, v{a}
    v_lshl_add_u32 v{a}, v{cg}, 3, v{a}
    s_add_u32 s37, s33, {KB+32}
    v_add_u32 v30, s37, v{a}
    v_lshlrev_b32 v2, 16, v2
    v_lshlrev_b32 v3, 16, v3
    v_lshlrev_b32 v4, 16, v4
    s_add_u32 s{sG0}, s{sG0}, {WS_S}
    """)
    for k in range(8): q(f"v_mov_b32 v{UT+k}, 0")
    shadow=q.l
    def transp(src,wreg):
        rd=[]; wr=[]
        for k in range(8):
            d_=TT+4*k
            rd.append([Ins(f"ds_read_b64_tr_b16 v[{d_}:{d_+1}], v56 offset:{src+1024*k}"),Ins(f"ds_read_b64_tr_b16 v[{d_+2}:{d_+3}], v56 offset:{src+1024*k+256}")])
            wr.append([Ins(f"ds_write_b128 v{wreg}, v[{d_}:{d_+3}] offset:{32*k}")])
        return rd,wr
    def aload(buf,reg,off):
        o=[]
        for s_ in range(16):
            d_=ABUF[buf]+4*s_
            o.append(Ins(f"ds_read_b64_tr_b16 a[{d_}:{d_+1}], v{reg} offset:{off+256*s_+32}"))
            o.append(Ins(f"ds_read_b64_tr_b16 a[{d_+2}:{d_+3}], v{reg} offset:{off+256*s_}"))
        return o
    def bload(buf,reg,off):
        o=[]
        for jj in range(16):
            d_=BBUF[buf]+4*jj
            o.append(Ins(f"ds_read_b64 a[{d_}:{d_+1}], v{reg} offset:{off+64*jj}"))
            o.append(Ins(f"ds_read_b64 a[{d_+2}:{d_+3}], v{reg} offset:{off+64*jj+8}"))
        return o
    def BAR(tags=[]):
        b_=WaitVM(tags,True); b_.drain=True; return b_
    rd,wr=transp(XR0,61)
    pro=stamp('p2')+[WaitVM(['xr0','kA','d'])]+sum(rd,[])+z+early+sum(wr,[])+aload(0,17,0)
    pro.append(BAR())
    bl=bload(0,19,0); pro+=bl[:8]
    pro+=[Ins(f"s_mov_b32 s80, {F_EPOCH}"),Ins("s_cmp_eq_u32 s2, 255"),Ins(f"s_cselect_b32 s80, s80, {OOB}"),Ins("v_mov_b32 v31, s80"),Ins(f"buffer_store_dword v15, v31, s[{sWS}:{sWS+3}], 0 offen sc1",'flag')]
    passes=[(0,0,0),(0,1,1),(0,0,2),(0,1,3),(1,0,4),(0,1,0),(0,0,1),(0,1,2),(0,0,3)]
    mf=[]
    for pi,(ab,bb,st) in enumerate(passes):
        for jp in range(8):
            for b_ in range(jp,8):
                d_=SETS[st]+4*b_
                for k in range(2):
                    s_=2*b_-2*jp+1-k; jj=2*jp+k
                    cc="0" if (jp==0 and k==0) else f"v[{d_}:{d_+3}]"
                    mf.append(Ins(f"v_mfma_f32_16x16x32_bf16 v[{d_}:{d_+3}], a[{ABUF[ab]+4*s_}:{ABUF[ab]+4*s_+3}], a[{BBUF[bb]+4*jj}:{BBUF[bb]+4*jj+3}], {cc}"))
    pre={}; post={}
    P=lambda i:72*i
    spread(post,bl[8:],0,24)
    spread(post,shadow,0,48)
    spread(post,late,48,P(1)+10)
    boff=[None,(19,UDS),(19,2*UDS),(19,3*UDS),(20,0),(19,4*UCS),(19,4*UCS+UDS),(19,4*UCS+2*UDS),(19,4*UCS+3*UDS)]
    for pi in range(1,9):
        spread(post,bload(passes[pi][1],*boff[pi]),P(pi-1)+(26 if pi==1 else 4),P(pi)-8)
    rd,wr=transp(XR1,16)
    pre[P(2)+10]=[WaitVM(['xr1','kX','kB'])]
    spread(post,rd,P(2)+10,P(2)+34)
    for k in range(4): post.setdefault(P(2)+44+4*k,[]).extend([Ins("s_mov_b64 exec, s[40:41]")]+wr[2*k]+wr[2*k+1]+[Ins("s_mov_b64 exec, -1")])
    pre[P(3)+2]=[BAR()]
    spread(post,aload(1,18,0),P(3)+4,P(4)-8)
    spread(post,aload(0,17,4*KCS),P(4)+1,P(5)-8)
    def finish(p0,uoff,yoff,dreg,dw):
        S,Z1,Z2,Z3=SETS[:4]
        ops=[]
        for b_ in range(8):
            t_=UT+4*(b_&1)
            ops.append(([Ins(f"ds_read_u16_d16_hi v{t_+f}, v24 offset:{uoff+f*UDS+128*b_}") for f in range(4)],
                        [Ins(f"v_fmac_f32 v{S+4*b_+f}, v{dreg}, v{t_+f}") for f in range(4)]))
        seq=ops[0][0]+ops[1][0]
        for b_ in range(8):
            seq+=ops[b_][1]
            if b_+2<8: seq+=ops[b_+2][0]
        spread(post,seq,*dw)
        f1=[Ins(f"v_add_f32 v{S+4*b_+1+k}, v{S+4*b_+1+k}, v{Z1+4*b_+k}") for b_ in range(8) for k in range(3)]
        f2=[Ins(f"v_add_f32 v{x}, v{x}, v{Z2+4*b_+k}") for b_ in range(8) for k,x in enumerate((S+4*b_+2,S+4*b_+3,Z1+4*b_+3))]
        st1=[]; st2=[]
        for b_ in range(8):
            C=[Z1+4*b_+3,Z2+4*b_+3,Z3+4*b_+3]
            o=[Ins(f"v_add_f32 v{x}, v{x}, v{Z3+4*b_+k}") for k,x in enumerate((S+4*b_+3,C[0],C[1]))]
            for k in range(3):
                prev=f"v{C[k]-4}" if b_ else f"v{Z0}"
                o.append(Ins(f"v_cndmask_b32 v{Z1+4*b_+k}, v{C[k]}, {prev}, s[42:43]"))
            o+=[Ins(f"ds_bpermute_b32 v{Z2+4*b_+k}, v27, v{Z1+4*b_+k}") for k in range(3)]
            st1.append(o)
            o=[Ins(f"v_add_f32 v{S+4*b_+k}, v{S+4*b_+k}, v{Z2+4*b_+k}") for k in range(3)]
            o+=[Ins(f"v_cvt_pk_bf16_f32 v{Z3+4*b_}, v{S+4*b_}, v{S+4*b_+1}"),Ins(f"v_cvt_pk_bf16_f32 v{Z3+4*b_+1}, v{S+4*b_+2}, v{S+4*b_+3}"),
                Ins(f"ds_write_b64 v25, v[{Z3+4*b_}:{Z3+4*b_+1}] offset:{yoff+512*b_}")]
            st2.append(o)
        seq=st1[0]+st1[1]
        for b_ in range(8):
            seq+=st2[b_]
            if b_+2<8: seq+=st1[b_+2]
        return f1,f2,seq,st1
    f1,f2,seqA,_=finish(0,0,0,2,(P(2)+2,P(3)+30))
    spread(post,f1+f2,P(3)+6,P(3)+52)
    spread(post,seqA,P(3)+54,P(5)-1)
    f1,f2,seqB,st1=finish(5,4*UCS,4*KCS,3,(P(6)+6,P(7)-2))
    spread(post,f1,P(7)+6,P(7)+60); spread(post,f2,P(8)+5,P(8)+29)
    ncut=seqB.index(st1[4][0])
    spread(post,seqB[:ncut],P(8)+32,P(9)-1)
    tail=seqB[ncut:]
    ZX=SETS[4]
    post.setdefault(P(5)+4,[]).extend([Ins("s_mov_b64 exec, 1"),Ins(f"v_subrev_u32 v{a}, 16, v26"),Ins(f"ds_write_b128 v{a}, v[{Z0}:{Z0+3}]"),Ins("s_mov_b64 exec, -1")])
    spread(post,[Ins(f"ds_write_b128 v26, v[{ZX+4*b_}:{ZX+4*b_+3}] offset:{1024*b_}") for b_ in range(8)],P(5)+8,P(5)+40)
    pre[P(5)+70]=[BAR()]
    spread(post,[Ins(f"ds_read_b32 v{ZX+4*k+d_}, v28 offset:{d_*ZS+4*(3-d_)+1024*k}") for k in range(8) for d_ in range(4)],P(7)+2,P(7)+40)
    spread(post,[Ins(f"ds_read_u16_d16_hi v{UT+k}, v29 offset:{128*k}") for k in range(8)],P(7)+40,P(7)+50)
    xo=[]
    for k in range(8):
        z_=ZX+4*k
        xo+=[Ins(f"v_add_f32 v{z_}, v{z_}, v{z_+1}"),Ins(f"v_add_f32 v{z_+2}, v{z_+2}, v{z_+3}"),Ins(f"v_fmac_f32 v{z_}, v4, v{UT+k}"),
             Ins(f"v_add_f32 v{z_}, v{z_}, v{z_+2}"),Ins(f"v_cvt_pk_bf16_f32 v{z_}, v{z_}, v{z_}"),
             Ins(f"buffer_store_short v{z_}, v62, s[{sWS}:{sWS+3}], s{sXS} offen sc1",'xs'),Ins(f"s_add_u32 s{sXS}, s{sXS}, {4*18*4096}")]
    spread(post,xo,P(7)+58,P(8)+32)
    fa,fb=pg.flag_store(0x4000)
    post.setdefault(44,[]).append(fb); pre.setdefault(46,[]).append(WaitVM([('hst',3)])); post.setdefault(46,[]).append(fa)
    if opt.get('htouch',1): post.setdefault(47,[]).append(pg.touch(60,sWS,f"s{sHO+2}",''))
    fa,fb=pg.flag_store(0x8000)
    post.setdefault(P(3)+40,[]).append(fb); pre.setdefault(P(3)+42,[]).append(WaitVM([('hst',4)])); post.setdefault(P(3)+42,[]).append(fa)
    for k in range(0,648,8):
        if stamp(f'ssm_{k}'): pre.setdefault(k,[]).extend(stamp(f'ssm_{k}'))
    body=fill(mf,pre,post,[(0,P(2)+30,s.gS)])+stamp('ssm_end')+tail
    body.append(BAR())
    fr=[]; fs=[]
    for k in range(8):
        d_=TT+4*k
        fr+=[Ins(f"ds_read_b64_tr_b16 v[{d_}:{d_+1}], v30 offset:{128*k}"),Ins(f"ds_read_b64_tr_b16 v[{d_+2}:{d_+3}], v30 offset:{128*k+4*KCS}")]
        fs+=[Ins(f"buffer_store_dwordx4 v[{d_}:{d_+3}], v62, s[{sWS}:{sWS+3}], s{sG0} offen sc1",'fs'),Ins(f"s_add_u32 s{sG0}, s{sG0}, {18*4096}")]
    body+=fr+fs
    body+=[Ins(f"s_lshl_b32 s80, s{sQ}, 4"),Ins(f"s_add_u32 s80, s80, {F_S}"),Ins("s_cmp_eq_u32 s3, 0"),Ins(f"s_cselect_b32 s80, s80, {OOB}"),Ins("v_mov_b32 v31, s80"),
           WaitVM(['fs'],True),Ins("s_mov_b64 exec, 1"),Ins(f"buffer_store_dword v15, v31, s[{sWS}:{sWS+3}], 0 offen sc1",'flag'),Ins("s_mov_b64 exec, -1")]
    return pro+body
```

```python
import sys, json
from pcommon import *
import pcommon, pp0, pg, pssm
NAME="recurrent_scan__ssm_conv_s4d__geglu_ffn__prompt_kernel"
def span(p,opt):
    if not opt.get('span'): return
    p('''
    s_waitcnt vmcnt(0)
    s_memrealtime s[90:91]
    s_waitcnt lgkmcnt(0)
    s_not_b32 s92, s86
    s_mov_b64 exec, 1
    v_mov_b32 v0, 0
    v_mov_b32 v1, s92
    v_mov_b32 v2, s90
    v_mov_b32 v3, s86
    global_atomic_umax v0, v1, s[88:89]
    global_atomic_umax v0, v2, s[88:89] offset:4
    global_atomic_umax v0, v3, s[88:89] offset:8
    ''')
def gen(opt):
    MODE['stamp']=opt.get('stamp'); MODE['map']=opt.get('map')
    cx=Ctx(); B=pp0.B
    p=Prog()
    p(f"s_cmp_ge_u32 s2, 256\ns_cbranch_scc1 Lend")
    p.ext(stamp('start'))
    if opt.get('span'): p(f"s_memrealtime s[86:87]\ns_load_dwordx2 s[88:89], s[0:1], {KA['dbg']}")
    p(f"""
    s_load_dwordx2 s[{sXP}:{sXP+1}], s[0:1], {KA['x']}
    s_load_dwordx2 s[{sWS}:{sWS+1}], s[0:1], {KA['ws']}
    s_load_dwordx8 s[60:67], s[0:1], {KA['logA']}
    s_load_dwordx2 s[68:69], s[0:1], {KA['logdt']}
    s_load_dwordx2 s[{sWg}:{sWg+1}], s[0:1], {KA['Wg']}
    s_load_dwordx2 s[{sWu}:{sWu+1}], s[0:1], {KA['Wu']}
    s_load_dwordx2 s[{sWd}:{sWd+1}], s[0:1], {KA['Wd']}
    s_load_dwordx2 s[{sOP}:{sOP+1}], s[0:1], {KA['out']}
    s_load_dwordx2 s[{sDP}:{sDP+1}], s[0:1], {KA['Dskip']}
    v_lshrrev_b32 v1, 6, v0
    v_and_b32 v0, 63, v0
    v_readfirstlane_b32 s3, v1
    v_mov_b32 v{B}, v0
    v_mov_b32 v10, {pp0.CNT}
    v_mov_b32 v11, 0
    """)
    pp0.ln_issue(p); pp0.kgen_addr(p)
    p(f"""
    s_lshr_b32 s80, s2, 3
    s_mul_i32 s80, s80, CODE_LINES*128
    v_lshl_add_u32 v13, v0, 7, s80
    s_cmp_eq_u32 s3, 3
    s_waitcnt lgkmcnt(0)
    s_cbranch_scc1 Lnoln
    """)
    pp0.ln_loads(p); pp0.kgen_loads(p)
    p(f"""
    s_branch Lcommon
    Lnoln:
    s_getpc_b64 s[0:1]
    Lpc:
    v_cmp_gt_u32 vcc, CODE_LINES, v0
    s_and_saveexec_b64 s[80:81], vcc
    global_load_dword v63, v13, s[0:1]
    s_mov_b64 exec, -1
    Lcommon:
    s_add_u32 s80, s{sWS}, {F_EPOCH}
    s_addc_u32 s81, s{sWS+1}, 0
    s_load_dword s{sTAG}, s[80:81], 0
    ds_write_b32 v10, v11
    s_bitcmp1_b32 s3, 0
    s_cselect_b32 s{sS}, s{sWu}, s{sWg}
    s_cselect_b32 s{sS+1}, s{sWu+1}, s{sWg+1}
    s_mov_b32 s{sS+2}, {WB}
    s_mov_b32 s{sS+3}, 0x20000
    s_mov_b32 s{sWS+2}, {WSZ}
    s_mov_b32 s{sWS+3}, 0x20000
    s_mov_b32 s{sWg+2}, {WB}
    s_mov_b32 s{sWg+3}, 0x20000
    s_sub_u32 s{sWu}, s{sWu}, 1024
    s_subb_u32 s{sWu+1}, s{sWu+1}, 0
    s_mov_b32 s{sWu+2}, {WB+1024}
    s_mov_b32 s{sWu+3}, 0x20000
    s_sub_u32 s{sWd}, s{sWd}, 2048
    s_subb_u32 s{sWd+1}, s{sWd+1}, 0
    s_mov_b32 s{sWd+2}, {WB+2048}
    s_mov_b32 s{sWd+3}, 0x20000
    """)
    pg.setup(p)
    p("s_cmp_ge_u32 s2, 192\ns_cbranch_scc1 Lsu_ssm")
    pg.setup_g2(p)
    p("s_branch Lsu_done\nLsu_ssm:")
    pssm.setup_ssm(p)
    p(f"""
    Lsu_done:
    s_waitcnt lgkmcnt(0)
    s_mul_i32 s{sTAG}, s{sTAG}, 1664525
    s_add_u32 s{sTAG}, s{sTAG}, 1013904223
    v_mov_b32 v15, s{sTAG}
    s_barrier
    s_cmp_eq_u32 s3, 3
    s_cbranch_scc1 Lservice
    """)
    pp0.ln_compute(p,5)
    p.ext(stamp('ln'))
    p("s_cmp_ge_u32 s2, 192\ns_cbranch_scc1 Lnok")
    pp0.kgen(p, opt.get('hook',10), lambda q: pp0.ln_signal(q,"Lsig1"))
    p("s_branch Ljoin\nLnok:")
    pp0.ln_signal(p,"Lsig2")
    p(f"s_sleep {opt.get('nokslp',16)}\ns_branch Ljoin\nLservice:")
    pp0.service(p,opt)
    p.ext(stamp('ln'))
    p(f"Ljoin:\nv_and_b32 v13, 0x70, v1\ns_cmp_eq_u32 s{sKO}, 0\ns_cselect_b32 s80, {OOB}, 0\nv_or_b32 v192, s80, v1")
    errs=[]
    head_=[cx.poll_issue(13,12,31)]+cx.poll_check(13,12,31)+stamp('flag')
    n0=cx.n
    gA=pg.G1(opt); XR,SR=pg.add_g2(gA,cx)
    A=head_+gA.pro+fill(gA.mf,gA.pre,gA.post,gA.streams)+pg.final(cx,XR,SR,opt)
    A=auto_nop(resolve_waits(A))
    gB=pg.G1(opt); rest=pssm.add_ssm(gB,cx)
    Bm=fill(gB.mf,gB.pre,gB.post,gB.streams)
    Bs=auto_nop(resolve_waits(head_+gB.pro+Bm+auto_lgkm(rest)))
    def cut(l):
        k=0
        for i,x in enumerate(l):
            if x.kind=='mfma':
                if k==8*144: return i
                k+=1
    ca,cb=cut(A),cut(Bs)
    assert [x.text for x in A[:ca]]==[x.text for x in Bs[:cb]], "prefix differs"
    print("gaps common",gapstats(A[:ca]),"\n g2role",gapstats(A[ca:]),"\n ssmrole",gapstats(Bs[cb:]))
    p.ext(A[:ca]); p("s_cmp_ge_u32 s2, 192\ns_cbranch_scc1 Lrole_ssm")
    p.ext(A[ca:])
    if MODE['stamp']: p("s_waitcnt vmcnt(0)");
    stamp_flush(p,0)
    if MODE['stamp']:
        p(f"{'s_memrealtime' if MODE['stamp']=='rt' else 's_memtime'} s[62:63]\ns_waitcnt lgkmcnt(0)\nv_mov_b32 v1, s62\nbuffer_store_dword v1, v0, s[{sWS}:{sWS+3}], s60 offen offset:32")
    span(p,opt)
    p("s_endpgm\nLrole_ssm:")
    p.ext(Bs[cb:])
    stamp_flush(p,1)
    if MODE['stamp']:
        p(f"{'s_memrealtime' if MODE['stamp']=='rt' else 's_memtime'} s[62:63]\ns_waitcnt lgkmcnt(0)\nv_mov_b32 v1, s62\nbuffer_store_dword v1, v0, s[{sWS}:{sWS+3}], s60 offen offset:32")
    span(p,opt)
    p("Lend:\ns_endpgm")
    for nm,tk in (('g2/ln',()),('g2/svc',('Lnoln','Lservice')),('ssm/ln',('Lsu_ssm','Lnok','Lrole_ssm')),('ssm/svc',('Lnoln','Lsu_ssm','Lservice','Lrole_ssm')),('g2/lnskip',('Lsig1',))):
        errs+=check(follow(p.l,tk),nm)
    for e in errs: print("HAZARD:",e)
    txt=head(NAME)+p.text()+"".join(cx.ool)+"Lcode_end:\n"
    return txt
def build_file(path,opt):
    from build import HEADER
    import subprocess
    txt=gen(opt)
    pre=HEADER+"; @launch grid=(256,1,1) block=(256,1,1) lds=163840\n"+'.amdgcn_target "amdgcn-amd-amdhsa--gfx950"\n'
    open('sz.s','w').write(pre+txt.replace("CODE_LINES*128","2560").replace("CODE_LINES","20")+kd(NAME,512,256))
    subprocess.run(["clang","-x","assembler","-target","amdgcn-amd-amdhsa","-mcpu=gfx950","-c","sz.s","-o","sz.o"],check=True)
    sym=subprocess.run(["llvm-readelf","-s","sz.o"],capture_output=True,text=True).stdout
    ad={l.split()[-1]:int(l.split()[1],16) for l in sym.split('\n') if l.strip().endswith(('Lpc','Lcode_end'))}
    size=ad['Lcode_end']-ad['Lpc']; n=size//128//32
    print("code bytes",size,"lines/wg",n)
    src=pre+txt.replace("CODE_LINES*128",str(n*128)).replace("CODE_LINES",str(n)).replace("Lcode_end:\n","")+kd(NAME,512,256)
    open(path,'w').write(src)
    import mbh
    co=mbh.build(path,NAME,14,lists=True)
    print("srdcheck:",mbh.cl.address_register_problem(co,NAME),"size",len(src))
if __name__=="__main__":
    build_file(sys.argv[1], json.loads(sys.argv[2]) if len(sys.argv)>2 else {})
```

```python
import sys, json
from pcommon import *
import pcommon, pp0, pg, pssm
NAME="recurrent_scan__ssm_conv_s4d__geglu_ffn__prompt_kernel"
def span(p,opt):
    if not opt.get('span'): return
    p('''
    s_waitcnt vmcnt(0)
    s_memrealtime s[90:91]
    s_waitcnt lgkmcnt(0)
    s_not_b32 s92, s86
    s_mov_b64 exec, 1
    v_mov_b32 v0, 0
    v_mov_b32 v1, s92
    v_mov_b32 v2, s90
    v_mov_b32 v3, s86
    global_atomic_umax v0, v1, s[88:89]
    global_atomic_umax v0, v2, s[88:89] offset:4
    global_atomic_umax v0, v3, s[88:89] offset:8
    ''')
def probe_pub(p,opt):
    if not opt.get('probe'): return
    p(f'''
    s_getreg_b32 s80, hwreg(HW_REG_XCC_ID, 0, 4)
    s_sub_u32 s80, s80, s2
    s_and_b32 s80, s80, 7
    v_mov_b32 v10, s80
    s_lshl_b32 s81, s2, 2
    s_add_u32 s81, s81, {WS_F+0x30000}
    v_mov_b32 v11, s81
    buffer_store_dword v10, v11, s[{sWS}:{sWS+3}], 0 offen sc1
    s_waitcnt vmcnt(0)
    ''')
def probe_chk(p,opt):
    if not opt.get('probe'): return
    p(f'''
    s_cmp_lg_u32 s2, 255
    s_cbranch_scc1 Lend
    s_mov_b32 s80, {WS_F+0x30000}
    v_lshrrev_b32 v1, 2, v1
    buffer_load_dword v2, v1, s[{sWS}:{sWS+3}], s80 offen sc1
    s_waitcnt vmcnt(0)
    v_readfirstlane_b32 s81, v2
    s_nop 1
    v_cmp_ne_u32 vcc, s81, v2
    s_cbranch_vccz Lend
    s_mov_b32 s80, 0
    Lprobe:
    s_sleep 64
    s_add_u32 s80, s80, 1
    s_cmp_lt_u32 s80, 60
    s_cbranch_scc1 Lprobe
    ''')
def amp(p,opt):
    if opt.get('amp') is None: return
    p(f'''
    s_cmp_lg_u32 s2, {opt['amp']}
    s_cbranch_scc1 Lend
    s_waitcnt vmcnt(0)
    s_memrealtime s[62:63]
    s_waitcnt lgkmcnt(0)
    s_sub_u32 s64, {'s62' if len(opt['map'])==1 else f's{ST0+2}'}, s{ST0}
    s_min_u32 s64, s64, 10000
    s_mul_i32 s64, s64, 10
    s_add_u32 s64, s64, s62
    Lamp:
    s_sleep 8
    s_memrealtime s[62:63]
    s_waitcnt lgkmcnt(0)
    s_sub_u32 s65, s62, s64
    s_cmp_lt_i32 s65, 0
    s_cbranch_scc1 Lamp
    ''')
def gen(opt):
    MODE['stamp']=opt.get('stamp'); MODE['map']=opt.get('map')
    cx=Ctx(); B=pp0.B
    p=Prog()
    p(f"s_cmp_ge_u32 s2, 256\ns_cbranch_scc1 Lend")
    p.ext(stamp('start'))
    if opt.get('span'): p(f"s_memrealtime s[86:87]\ns_load_dwordx2 s[88:89], s[0:1], {KA['dbg']}")
    p(f"""
    s_load_dwordx2 s[{sXP}:{sXP+1}], s[0:1], {KA['x']}
    s_load_dwordx2 s[{sWS}:{sWS+1}], s[0:1], {KA['ws']}
    s_load_dwordx8 s[60:67], s[0:1], {KA['logA']}
    s_load_dwordx2 s[68:69], s[0:1], {KA['logdt']}
    s_load_dwordx2 s[{sWg}:{sWg+1}], s[0:1], {KA['Wg']}
    s_load_dwordx2 s[{sWu}:{sWu+1}], s[0:1], {KA['Wu']}
    s_load_dwordx2 s[{sWd}:{sWd+1}], s[0:1], {KA['Wd']}
    s_load_dwordx2 s[{sOP}:{sOP+1}], s[0:1], {KA['out']}
    s_load_dwordx2 s[{sDP}:{sDP+1}], s[0:1], {KA['Dskip']}
    v_lshrrev_b32 v1, 6, v0
    v_and_b32 v0, 63, v0
    v_readfirstlane_b32 s3, v1
    v_mov_b32 v{B}, v0
    v_mov_b32 v10, {pp0.CNT}
    v_mov_b32 v11, 0
    """)
    pp0.ln_issue(p); pp0.kgen_addr(p)
    p(f"""
    s_lshr_b32 s80, s2, 3
    s_mul_i32 s80, s80, CODE_LINES*128
    v_lshl_add_u32 v13, v0, 7, s80
    s_cmp_eq_u32 s3, 3
    s_waitcnt lgkmcnt(0)
    s_cbranch_scc1 Lnoln
    """)
    pp0.ln_loads(p); pp0.kgen_loads(p)
    p(f"""
    s_branch Lcommon
    Lnoln:
    s_getpc_b64 s[0:1]
    Lpc:
    v_cmp_gt_u32 vcc, CODE_LINES, v0
    s_and_saveexec_b64 s[80:81], vcc
    global_load_dword v63, v13, s[0:1]
    s_mov_b64 exec, -1
    Lcommon:
    s_add_u32 s80, s{sWS}, {F_EPOCH}
    s_addc_u32 s81, s{sWS+1}, 0
    s_load_dword s{sTAG}, s[80:81], 0
    ds_write_b32 v10, v11
    s_bitcmp1_b32 s3, 0
    s_cselect_b32 s{sS}, s{sWu}, s{sWg}
    s_cselect_b32 s{sS+1}, s{sWu+1}, s{sWg+1}
    s_mov_b32 s{sS+2}, {WB}
    s_mov_b32 s{sS+3}, 0x20000
    s_mov_b32 s{sWS+2}, {WSZ}
    s_mov_b32 s{sWS+3}, 0x20000
    s_mov_b32 s{sWg+2}, {WB}
    s_mov_b32 s{sWg+3}, 0x20000
    s_sub_u32 s{sWu}, s{sWu}, 1024
    s_subb_u32 s{sWu+1}, s{sWu+1}, 0
    s_mov_b32 s{sWu+2}, {WB+1024}
    s_mov_b32 s{sWu+3}, 0x20000
    s_sub_u32 s{sWd}, s{sWd}, 2048
    s_subb_u32 s{sWd+1}, s{sWd+1}, 0
    s_mov_b32 s{sWd+2}, {WB+2048}
    s_mov_b32 s{sWd+3}, 0x20000
    """)
    pg.setup(p)
    p("s_cmp_ge_u32 s2, 192\ns_cbranch_scc1 Lsu_ssm")
    pg.setup_g2(p)
    p("s_branch Lsu_done\nLsu_ssm:")
    pssm.setup_ssm(p)
    p(f"""
    Lsu_done:
    s_waitcnt lgkmcnt(0)
    s_mul_i32 s{sTAG}, s{sTAG}, 1664525
    s_add_u32 s{sTAG}, s{sTAG}, 1013904223
    v_mov_b32 v15, s{sTAG}
    s_barrier
    s_cmp_eq_u32 s3, 3
    s_cbranch_scc1 Lservice
    """)
    pp0.ln_compute(p,5)
    p.ext(stamp('ln'))
    p("s_cmp_ge_u32 s2, 192\ns_cbranch_scc1 Lnok")
    pp0.kgen(p, opt.get('hook',10), lambda q: pp0.ln_signal(q,"Lsig1"))
    p("s_branch Ljoin\nLnok:")
    pp0.ln_signal(p,"Lsig2")
    p(f"s_sleep {opt.get('nokslp',16)}\ns_branch Ljoin\nLservice:")
    probe_pub(p,opt)
    pp0.service(p,opt)
    p.ext(stamp('ln'))
    p(f"Ljoin:\nv_and_b32 v13, 0x70, v1\ns_cmp_eq_u32 s{sKO}, 0\ns_cselect_b32 s80, {OOB}, 0\nv_or_b32 v192, s80, v1")
    errs=[]
    head_=[cx.poll_issue(13,12,31)]+cx.poll_check(13,12,31)+stamp('flag')
    n0=cx.n
    gA=pg.G1(opt); XR,SR=pg.add_g2(gA,cx)
    A=head_+gA.pro+fill(gA.mf,gA.pre,gA.post,gA.streams)+pg.final(cx,XR,SR,opt)
    A=auto_nop(resolve_waits(A))
    gB=pg.G1(opt); rest=pssm.add_ssm(gB,cx)
    Bm=fill(gB.mf,gB.pre,gB.post,gB.streams)
    Bs=auto_nop(resolve_waits(head_+gB.pro+Bm+auto_lgkm(rest)))
    def cut(l):
        k=0
        for i,x in enumerate(l):
            if x.kind=='mfma':
                if k==8*144: return i
                k+=1
    ca,cb=cut(A),cut(Bs)
    assert [x.text for x in A[:ca]]==[x.text for x in Bs[:cb]], "prefix differs"
    print("gaps common",gapstats(A[:ca]),"\n g2role",gapstats(A[ca:]),"\n ssmrole",gapstats(Bs[cb:]))
    p.ext(A[:ca]); p("s_cmp_ge_u32 s2, 192\ns_cbranch_scc1 Lrole_ssm")
    p.ext(A[ca:])
    amp(p,opt)
    if opt.get('amp') is not None: MODE['stamp']=None
    if MODE['stamp']: p("s_waitcnt vmcnt(0)");
    stamp_flush(p,0)
    if MODE['stamp']:
        p(f"{'s_memrealtime' if MODE['stamp']=='rt' else 's_memtime'} s[62:63]\ns_waitcnt lgkmcnt(0)\nv_mov_b32 v1, s62\nbuffer_store_dword v1, v0, s[{sWS}:{sWS+3}], s60 offen offset:32")
    span(p,opt)
    p("s_endpgm\nLrole_ssm:")
    p.ext(Bs[cb:])
    stamp_flush(p,1)
    if MODE['stamp']:
        p(f"{'s_memrealtime' if MODE['stamp']=='rt' else 's_memtime'} s[62:63]\ns_waitcnt lgkmcnt(0)\nv_mov_b32 v1, s62\nbuffer_store_dword v1, v0, s[{sWS}:{sWS+3}], s60 offen offset:32")
    span(p,opt); probe_chk(p,opt)
    p("Lend:\ns_endpgm")
    for nm,tk in (('g2/ln',()),('g2/svc',('Lnoln','Lservice')),('ssm/ln',('Lsu_ssm','Lnok','Lrole_ssm')),('ssm/svc',('Lnoln','Lsu_ssm','Lservice','Lrole_ssm')),('g2/lnskip',('Lsig1',))):
        errs+=check(follow(p.l,tk),nm)
    for e in errs: print("HAZARD:",e)
    txt=head(NAME)+p.text()+"".join(cx.ool)+"Lcode_end:\n"
    return txt
def build_file(path,opt):
    from build import HEADER
    import subprocess
    txt=gen(opt)
    pre=HEADER+"; @launch grid=(256,1,1) block=(256,1,1) lds=163840\n"+'.amdgcn_target "amdgcn-amd-amdhsa--gfx950"\n'
    open('sz.s','w').write(pre+txt.replace("CODE_LINES*128","2560").replace("CODE_LINES","20")+kd(NAME,512,256))
    subprocess.run(["clang","-x","assembler","-target","amdgcn-amd-amdhsa","-mcpu=gfx950","-c","sz.s","-o","sz.o"],check=True)
    sym=subprocess.run(["llvm-readelf","-s","sz.o"],capture_output=True,text=True).stdout
    ad={l.split()[-1]:int(l.split()[1],16) for l in sym.split('\n') if l.strip().endswith(('Lpc','Lcode_end'))}
    size=ad['Lcode_end']-ad['Lpc']; n=size//128//32
    print("code bytes",size,"lines/wg",n)
    src=pre+txt.replace("CODE_LINES*128",str(n*128)).replace("CODE_LINES",str(n)).replace("Lcode_end:\n","")+kd(NAME,512,256)
    open(path,'w').write(src)
    import mbh
    co=mbh.build(path,NAME,14,lists=True)
    print("srdcheck:",mbh.cl.address_register_problem(co,NAME),"size",len(src))
if __name__=="__main__":
    build_file(sys.argv[1], json.loads(sys.argv[2]) if len(sys.argv)>2 else {})
```

```python
from pcommon import *
K1C = -2*math.sqrt(2/math.pi)*LOG2E
GK0 = K1C; GK1 = K1C*0.044715
RING=16; NR=3; HP=40; ACC=64
F_HC=F_HA+0x8000
sM2=70; sWO=71; sH2=72; sPO=73; sFA=74; sFP=75; sFQ=76; sFS=77; sFX=78; sTW=79
R2BASE=8192
def xreg(b,t):
    i=4*b+t
    return f"a[{4*i}:{4*i+3}]" if i<64 else f"v[{224+4*(i-64)}:{224+4*(i-64)+3}]"
def hreg(b,t,lo=0,n=4):
    i=2*b+t
    return (f"a[{4*i+lo}:{4*i+lo+n-1}]" if i<64 else f"v[{224+4*(i-64)+lo}:{224+4*(i-64)+lo+n-1}]")

def setup_min(p):
    p(f"""
    s_and_b32 s80, s2, 7                     ; quad
    s_mul_i32 s80, s80, 1152
    s_lshr_b32 s81, s2, 6                    ; i
    s_lshl_b32 s81, s81, 8
    s_add_u32 s80, s80, s81
    s_mul_i32 s81, s3, {8*9216}
    s_add_u32 s80, s80, s81
    s_and_b32 s81, s3, 1
    s_lshl_b32 s81, s81, 1
    s_lshl_b32 s{sM0}, s3, 11
    v_lshrrev_b32 v10, 3, v0
    v_bfe_u32 v11, v0, 4, 1
    v_or_b32 v11, s81, v11
    v_bfe_u32 v12, v0, 1, 2
    v_xor_b32 v11, v11, v12
    v_lshlrev_b32 v1, 4, v0
    v_and_b32 v12, 16, v1
    v_mul_u32_u24 v2, 9216, v10
    v_lshl_add_u32 v2, v11, 5, v2
    v_add3_u32 v2, v2, v12, s80
    """)
def setup_min2(p):
    p(f"""
    s_bfe_u32 s80, s2, 0x30003               ; mt
    s_lshl_b32 s80, s80, 2
    s_add_u32 s80, s80, s3                   ; tok64
    s_lshl_b32 s31, s80, 7
    s_add_u32 s31, s31, {F_LN}
    s_mul_i32 s{sXO}, s80, {18*4096}
    v_lshrrev_b32 v10, 4, v0
    v_bfe_u32 v11, v0, 2, 2
    v_and_b32 v12, 3, v0
    v_lshlrev_b32 v12, 3, v12
    v_lshl_add_u32 v4, v10, 11, v12
    v_lshl_add_u32 v4, v11, 7, v4
    v_bfe_u32 v13, v0, 3, 2
    v_lshl_add_u32 v4, v13, 5, v4
    v_xor_b32 v5, 32, v4
    v_xor_b32 v6, 64, v4
    v_xor_b32 v7, 96, v4
    v_and_b32 v13, 0x1f0, v1
    """)
def setup_late(p):
    p(f"""
    s_and_b32 s60, s2, 7
    s_lshr_b32 s61, s2, 3                    ; idx
    s_lshr_b32 s67, s60, 1                   ; ks
    s_lshr_b32 s69, s2, 6                    ; i
    s_mul_i32 s63, s60, 1152
    s_lshl_b32 s64, s69, 8
    s_add_u32 s64, s64, s63
    s_and_b32 s65, s61, 7
    s_lshl_b32 s65, s65, 1
    s_lshr_b32 s66, s3, 1
    s_add_u32 s65, s65, s66
    s_mul_i32 s68, s65, 36
    v_add_u32 v57, s68, v0
    v_mul_u32_u24 v57, 9216, v57
    s_add_u32 s68, s64, 128
    v_add_u32 v57, s68, v57
    v_cmp_gt_u32 vcc, 36, v0
    v_mov_b32 v60, {OOB}
    s_lshl_b32 s68, s69, 4
    s_add_u32 s68, s68, s65
    s_mul_i32 s68, s68, 9
    v_cndmask_b32 v57, v60, v57, vcc
    v_add_u32 v59, s68, v0
    v_mul_u32_u24 v59, 9216, v59
    s_add_u32 s68, s63, 1024
    v_add_u32 v59, s68, v59
    v_cmp_gt_u32 vcc, 9, v0
    s_lshl_b32 s65, s69, 5
    s_add_u32 s65, s65, s63
    v_cndmask_b32 v59, v60, v59, vcc
    v_cmp_gt_u32 vcc, 27, v0
    v_lshlrev_b32 v58, 7, v0
    s_nop 0
    v_cndmask_b32 v58, v60, v58, vcc
    s_bitcmp1_b32 s3, 0
    s_cselect_b32 s{sS}, s{sS}, s{sWg}
    s_cselect_b32 s{sS+1}, s{sS+1}, s{sWg+1}
    s_mov_b32 s{sS+2}, {WB}
    s_mov_b32 s{sS+3}, 0x20000
    """)
    for b in range(18): p(f"s_mov_b32 s{SK+b}, {b*32*9216}")
    n1=len(p.l)
    p(f"""
    s_add_u32 s65, s65, 1024
    s_mul_i32 s66, s66, {32*9216}
    s_add_u32 s65, s65, s66
    s_lshl_b32 s{sM0S}, s3, 10
    s_mov_b32 s{sGK}, {fhex(GK1)}
    v_mov_b32 v8, {fhex(GK0)}
    v_lshlrev_b32 v60, 7, v0                 ; lane*128
    v_and_b32 v12, 16, v1
    v_bfe_u32 v10, v0, 1, 2
    v_bfe_u32 v11, v0, 3, 1
    v_lshl_add_u32 v10, v11, 3, v10
    v_bfe_u32 v11, v0, 4, 1
    v_lshl_add_u32 v10, v11, 2, v10
    v_bfe_u32 v11, v0, 5, 1
    v_lshl_add_u32 v10, v11, 4, v10
    v_mul_u32_u24 v3, 9216, v10
    v_add3_u32 v3, v3, v12, s65
    v_and_b32 v12, 3, v0
    v_lshlrev_b32 v12, 3, v12
    v_bfe_u32 v13, v0, 3, 2
    v_bfe_u32 v11, v0, 2, 3                  ; 4*(g&1)+e
    v_lshl_add_u32 v9, v11, 5, v12
    v_lshrrev_b32 v10, 5, v0
    v_lshl_add_u32 v9, v10, 9, v9
    v_mul_u32_u24 v10, 3072, v10
    v_lshl_add_u32 v10, v11, 7, v10
    v_lshl_add_u32 v10, v13, 5, v10
    v_add_u32 v56, v10, v12
    v_add_u32 v56, {R2BASE}, v56
    s_sub_u32 s62, s31, {F_LN}
    s_lshr_b32 s62, s62, 7                   ; tok64
    s_lshl_b32 s68, s62, 3
    s_add_u32 s68, s68, s60
    s_lshl_b32 s68, s68, 2
    s_add_u32 s68, s68, s69
    s_lshl_b32 s68, s68, 4
    s_add_u32 s68, s68, {F_HA}
    v_mov_b32 v14, {OOB}
    v_writelane_b32 v14, s68, 0
    v_writelane_b32 v14, s84, 1
    s_mul_i32 s63, s62, 144
    s_mul_i32 s64, s60, 18
    s_add_u32 s63, s63, s64
    s_add_u32 s63, s63, {WS_H//4096}
    s_lshl_b32 s64, s69, 2
    s_add_u32 s64, s64, s63
    s_lshl_b32 s{sHO}, s64, 12
    s_add_u32 s{sHO+1}, s{sHO}, 4096
    s_add_u32 s{sHO+2}, s{sHO}, 8192
    s_add_u32 s{sHO+3}, s{sHO}, 12288
    s_lshr_b32 s64, s69, 1
    s_add_u32 s64, s64, s63
    s_add_u32 s64, s64, 16
    s_lshl_b32 s64, s64, 12
    s_and_b32 s65, s69, 1
    s_lshl_b32 s65, s65, 10
    s_add_u32 s{sHO+4}, s64, s65
    s_sub_u32 s{sWd}, s{sWd}, 2048
    s_subb_u32 s{sWd+1}, s{sWd+1}, 0
    s_mov_b32 s{sWd+2}, {WB+2048}
    s_mov_b32 s{sWd+3}, 0x20000
    s_lshl_b32 s63, s61, 2
    s_add_u32 s63, s63, s3
    s_mul_i32 s63, s63, {81*128}
    s_mul_i32 s{sWO}, s67, {1152*1152}
    s_add_u32 s{sTW}, s63, s{sWO}
    s_add_u32 s{sTW}, s{sTW}, 2048
    """)
    return n1
def setup_g2(p):
    p(f"""
    s_and_b32 s60, s2, 1
    s_lshl_b32 s60, s60, 3
    s_and_b32 s63, s61, 7
    s_add_u32 s60, s60, s63                  ; mt128
    s_lshr_b32 s61, s61, 3                   ; nt
    s_lshl_b32 s62, s60, 1
    s_lshr_b32 s63, s3, 1
    s_add_u32 s62, s62, s63                  ; tok64
    s_lshl_b32 s64, s62, 2
    s_add_u32 s64, s64, s67
    s_lshl_b32 s64, s64, 7
    s_add_u32 s{sFA}, s64, {F_HA}
    s_and_b32 s63, s3, 1
    s_lshl_b32 s63, s63, 11                  ; tb0*1024
    s_mul_i32 s64, s62, 144
    s_mul_i32 s65, s67, 36
    s_add_u32 s64, s64, s65
    s_lshl_b32 s64, s64, 12
    s_add_u32 s64, s64, s63
    s_add_u32 s{sH2}, s64, {WS_H}
    s_lshl_b32 s64, s67, 5
    s_add_u32 s64, s64, s62
    s_mul_i32 s64, s64, 18
    s_mul_i32 s65, s61, 6
    s_add_u32 s64, s64, s65
    s_lshl_b32 s64, s64, 12
    s_add_u32 s64, s64, s63
    s_add_u32 s{sPO}, s64, {WS_P}
    s_mul_i32 s64, s60, 3
    s_add_u32 s64, s64, s61
    s_lshl_b32 s64, s64, 9
    s_add_u32 s64, s64, {F_P}
    s_lshl_b32 s66, s3, 7
    s_lshl_b32 s68, s67, 4
    s_add_u32 s66, s66, s68
    s_add_u32 s{sFP}, s64, s66
    s_lshl_b32 s66, s67, 7
    s_add_u32 s{sFQ}, s64, s66
    s_lshl_b32 s62, s60, 1
    s_lshr_b32 s63, s67, 1
    s_add_u32 s62, s62, s63
    s_mul_i32 s62, s62, 18
    s_add_u32 s62, s62, s65
    s_lshr_b32 s64, s3, 1
    s_add_u32 s62, s62, s64
    s_lshl_b32 s62, s62, 2
    s_and_b32 s63, s67, 1
    s_lshl_b32 s63, s63, 1
    s_and_b32 s66, s3, 1
    s_add_u32 s63, s63, s66
    s_add_u32 s62, s62, s63
    s_lshl_b32 s{sFS}, s62, 10
    s_lshl_b32 s62, s60, 2
    s_add_u32 s62, s62, s67
    s_lshl_b32 s62, s62, 1
    s_add_u32 s62, s62, s66
    s_mul_i32 s62, s62, {16*1152}
    s_add_u32 s65, s65, s64
    s_lshl_b32 s65, s65, 6
    s_add_u32 s{sFX}, s62, s65
    s_mul_i32 s64, s61, 384
    s_mul_i32 s65, s3, {8*1152}
    s_add_u32 s64, s64, s65
    s_add_u32 s64, s64, 2048
    s_mul_i32 s{sM2}, s3, 3072
    s_add_u32 s{sM2}, s{sM2}, {R2BASE}
    v_lshrrev_b32 v10, 3, v0
    v_lshrrev_b32 v11, 4, v0
    v_bfe_u32 v12, v0, 1, 2
    v_xor_b32 v11, v11, v12
    v_and_b32 v12, 1, v0
    v_lshlrev_b32 v12, 4, v12
    v_mul_u32_u24 v10, 1152, v10
    v_lshl_add_u32 v10, v11, 5, v10
    v_add3_u32 v61, v10, v12, s64
    v_and_b32 v62, 0x70, v1
    """)

HST=['sc1']
def gelu_ops(c, aset):
    ops=[]; base=ACC+32*aset
    for t in range(4):
        o=[]
        g=[base+4*t+j for j in range(4)]; u=[base+16+4*t+j for j in range(4)]
        tm=[10+(4*t+j)%4 for j in range(4)]
        for j in range(4):
            o+= [f"v_mul_f32 v{tm[j]}, v{g[j]}, v{g[j]}", f"v_mul_f32 v{u[j]}, v{u[j]}, v{g[j]}",
                 f"v_fma_f32 v{tm[j]}, v{tm[j]}, s{sGK}, v8", f"v_mul_f32 v{g[j]}, v{tm[j]}, v{g[j]}", f"v_exp_f32 v{g[j]}, v{g[j]}"]
        for j in range(4): o+=[f"v_add_f32 v{g[j]}, 1.0, v{g[j]}", f"v_rcp_f32 v{g[j]}, v{g[j]}"]
        for j in range(4): o.append(f"v_mul_f32 v{u[j]}, v{u[j]}, v{g[j]}")
        d=HP+4*t+2*(c&1) if c<8 else HP+2*t
        o+=[f"v_cvt_pk_bf16_f32 v{d}, v{u[0]}, v{u[1]}", f"v_cvt_pk_bf16_f32 v{d+1}, v{u[2]}, v{u[3]}"]
        if c<8 and c&1: o.append(f"buffer_store_dwordx4 v[{HP+4*t}:{HP+4*t+3}], v1, s[{sWS}:{sWS+3}], s{sHO+c//2} offen offset:{1024*t} {HST[0]}")
        if c==8 and t&1: o.append(f"buffer_store_dwordx4 v[{HP+2*t-2}:{HP+2*t+1}], v1, s[{sWS}:{sWS+3}], s{sHO+4} offen offset:{1024*(t-1)} {HST[0]}")
        ops.append([Ins(x,('hst',c//2)) for x in o])
    return ops

def flag_store(off): return Ins(f"buffer_store_dword v15, v14, s[{sWS}:{sWS+3}], s80 offen sc1",'flag'), Ins(f"s_mov_b32 s80, {off}")
def touch(areg, srd_, so, fl, off=0): return Ins(f"buffer_load_dword v63, v{areg}, s[{srd_}:{srd_+3}], {so} offen offset:{off} {fl}",'touch')

class G1:
    def __init__(s, opt):
        s.opt=opt; HST[0]=opt.get('hst','sc1'); TF=opt.get('tf','')
        HU=[]
        for j in range(9):
            for c in range(4):
                for m in range(2): HU.append((c,m,j))
        def seg(c,j0,j1):
            for j in range(j0,j1):
                for m in range(2): HU.append((c,m,j))
        seg(4,0,3); seg(5,0,3); seg(4,3,9); seg(6,0,3); seg(7,0,3); seg(5,3,9); seg(6,3,9); seg(7,3,9); seg(8,0,9)
        s.HU=HU; nH=len(HU)
        aset={0:0,1:1,2:2,3:3,4:4,5:0,6:1,7:2,8:3}; s.aset=aset
        def slot_addr(c,m,j,k):
            b=2*j+k
            if c<4: return b*8192+m*1024
            if c<8: return ((18+b)%20)*8192+m*1024
            return ((36+j//2)%20)*8192+(j&1)*4096+k*2048+m*1024
        win={r:0 for r in (4,5,6,7,9)}
        def reads(h):
            c,m,j=HU[h]; r=9 if c==8 else 4+c%4; R=RING+8*(h%NR); o=[]
            w=slot_addr(c,m,j,0)>>16
            if w!=win[r]:
                o.append(Ins(f"v_add_u32 v{r}, {((w-win[r])*65536)&0xffffffff}, v{r}")); win[r]=w
            d2=256 if c==8 else 512
            for k in range(2):
                a=slot_addr(c,m,j,k)-w*65536
                o.append(Ins(f"ds_read_b64_tr_b16 v[{R+4*k}:{R+4*k+1}], v{r} offset:{a}"))
                o.append(Ins(f"ds_read_b64_tr_b16 v[{R+4*k+2}:{R+4*k+3}], v{r} offset:{a+d2}"))
            return o
        XF=opt.get('xf','sc1'); WF=opt.get('wf','')
        def xload(b):
            o=[[Ins(f"buffer_load_dwordx4 {xreg(b,t)}, v1, s[{sWS}:{sWS+3}], s{sXO} offen offset:{1024*t} {XF}",('x',b))] for t in range(4)]
            if b<17: o[3].append(Ins(f"s_add_u32 s{sXO}, s{sXO}, 4096"))
            return o
        def wload(grp,b):
            sl=(18*grp+b)%20
            return [[Ins(f"s_add_u32 m0, s{sM0}, {sl*8192}")],
                    [Ins(f"buffer_load_dwordx4 v2, s[{sWg}:{sWg+3}], s{SK+b} offen {WF} lds",('w',grp,b))],
                    [Ins(f"buffer_load_dwordx4 v2, s[{sWu}:{sWu+3}], s{SK+b} offen offset:1024 {WF} lds",('w',grp,b))]]
        def sload(j):
            return [[Ins(f"s_add_u32 m0, s{sM0S}, {slot_addr(8,0,j,0)}")],
                    [Ins(f"buffer_load_dwordx4 v3, s[{sS}:{sS+3}], s{SK+2*j} offen {WF} lds",('s',j))]]
        NX0=opt.get('nx0',2)
        s.pro=sum((g for b in range(NX0) for g in xload(b)),[])
        s.pro+=reads(0)+reads(1)
        pre={}; post={}; mf=[]
        s.pre,s.post,s.mf=pre,post,mf
        for h,(c,m,j) in enumerate(HU):
            R=RING+8*(h%NR)
            for t in range(4):
                d=ACC+32*aset[c]+16*m+4*t
                for k in range(2):
                    cc="0" if (j==0 and k==0) else f"v[{d}:{d+3}]"
                    mf.append(Ins(f"v_mfma_f32_16x16x32_bf16 v[{d}:{d+3}], v[{R+4*k}:{R+4*k+3}], {xreg(2*j+k,t)}, {cc}"))
            pre.setdefault(8*h,[]).append(Ins(f"s_waitcnt lgkmcnt({4 if h+1<nH else 0})"))
            if h+2<nH:
                r=reads(h+2)
                if len(r)==5: pre[8*h].insert(0,r.pop(0))
                post.setdefault(8*h,[]).extend(r[:2]); post.setdefault(8*h+2,[]).extend(r[2:])
        for j in range(9): pre[64*j].append(WaitVM([('x',2*j),('x',2*j+1)]))
        XE=opt.get('xend',38)
        xs=[xload(b) for b in range(NX0,18)]
        kp=opt.get('p8at',8)
        s.place(sum(xs[:kp],[])+wload(0,16)+xs[kp]+wload(0,17)+[[Ins("v_add_u32 v2, 128, v2")]]+sum(xs[kp+1:],[]),0,XE)
        ht=opt.get('ht',XE-1)
        post.setdefault(8*ht+7,[]).append(touch(57,sS,0,opt.get('tf1','')))
        if opt.get('ht2') is not None: post.setdefault(8*opt['ht2']+7,[]).append(touch(57,sS,0,'sc1'))
        b1=opt.get('b1',48)
        pre[8*b1].append(WaitVM([('w',0,16),('w',0,17)],True))
        n1=min(2+2*((b1+1)//8),opt.get('n1',12))
        s.place(sum((wload(1,b) for b in range(n1)),[]),max(b1,opt.get('hd',52)),70)
        pre[8*70].append(WaitVM([('w',1,b) for b in range(6)],True))
        s.place(sum((wload(1,b) for b in range(n1,18)),[]),70,76)
        pre[8*82].append(WaitVM([('w',1,b) for b in range(18)],True))
        post.setdefault(8*83+4,[]).append(touch(59,sS,0,TF))
        for k,hh in enumerate(opt.get('hwd',(84,88,92))):
            post.setdefault(8*hh+4,[]).append(touch(58,sWd,f"s{sTW}",TF))
            if k<2: post.setdefault(8*hh+6,[]).append(Ins(f"s_add_u32 s{sTW}, s{sTW}, {27*128}"))
        pre[8*108].append(WaitVM([],True))
        s0,s1=opt.get('srange',(100,132))
        s.place(sum((sload(j) for j in range(9)),[]),s0,s1); assert s0+(s1-s0)*4//9>=108
        hf=opt.get('hfa',128)
        a,b=flag_store(0)
        pre[8*hf]+=[WaitVM([('hst',1)])]; post.setdefault(8*hf-2,[]).append(b); post.setdefault(8*hf+1,[]).append(a)
        if opt.get('htouch',0): post.setdefault(8*hf+4,[]).append(touch(60,sWS,f"s{sHO}",''))
        pre[8*142].append(WaitVM([('s',j) for j in range(9)],True))
        for h in range(nH): pre[8*h]+=stamp(f'g1_{h}')
        G=lambda c:gelu_ops(c,aset[c])
        import pssm
        q=Prog(); n1_=setup_late(q); setup_g2(q); sel=pssm.setup_ssm_sel()
        s.streams=[(0,8*opt.get('su1',14),glue_scc(q.l[:n1_])),(0,8*64,glue_scc(q.l[n1_:]+sel))]
        s.streams+=[(8*(66+12*c)+1,8*(78+12*c),sum(G(c),[])) for c in range(6)]
        g6=G(6); s.streams+=[(8*138+1,8*144,g6[0]+g6[1]),(8*144,8*150,g6[2]+g6[3])]
        s.streams.append((8*150,8*162,sum(G(7),[])))
        s.gS=sum(G(8),[])
    def place(s,groups,h0,h1,offs=(1,3,4,5,6)):
        gaps=[8*h+o for h in range(h0,h1) for o in offs if not (s.post.get(8*h+o))]
        assert len(groups)<=len(gaps),(len(groups),len(gaps))
        for i,g in enumerate(groups): s.post.setdefault(gaps[i*len(gaps)//len(groups)],[]).extend(g)

SEQ=[18*Q+4*i for Q in range(2) for i in range(4)]+[18*Q+4*i+2 for Q in range(2) for i in range(4)]+[16,34]
RG=[192,208,16]; AW=[[4,5,6,7],[32,33,34,35],[36,37,38,39]]; PK=40
def add_g2(s, cx):
    opt=s.opt; pre,post,mf=s.pre,s.post,s.mf; H0=162
    NSEC=opt.get('nsec',2)
    HU=[(j,cp) for j in range(18-NSEC) for cp in range(6)]+[(j,cp) for cp in range(6) for j in range(18-NSEC,18)]
    nH=len(HU); blk=lambda n:SEQ[n//2]+(n&1)
    def reads(h):
        j,cp=HU[h]; R=RG[h%3]; o=[]
        for x in range(2):
            ct=2*cp+x
            for k in range(2):
                sl=(2*j+k)%12; r=AW[sl//4][ct&3]; a=(sl%4)*12288+(ct>>2)*1024; d=R+8*x+4*k
                o.append(Ins(f"ds_read_b64_tr_b16 v[{d}:{d+1}], v{r} offset:{a}"))
                o.append(Ins(f"ds_read_b64_tr_b16 v[{d+2}:{d+3}], v{r} offset:{a+6144}"))
        return o
    HF=opt.get('hf','sc1'); WF=opt.get('wf2','')
    DV=[61,2,3]
    def wl(n):
        o=[[Ins(f"s_add_u32 m0, s{sM2}, {(n%12)*12288}"),Ins(f"s_add_u32 s81, s{sWO}, {blk(n)*32*1152}")]]
        for jc in range(3): o.append([Ins(f"buffer_load_dwordx4 v{DV[jc]}, s[{sWd}:{sWd+3}], s81 offen offset:{1024*jc} {WF} lds",('w2',n))])
        return o
    def hl(n):
        o=[[Ins(f"s_add_u32 s82, s{sH2}, {blk(n)*4096}")]]
        if n<32:
            for t in range(2): o.append([Ins(f"buffer_load_dwordx4 {hreg(n,t)}, v1, s[{sWS}:{sWS+3}], s82 offen offset:{1024*t} {HF}",('h2',n))])
        else:
            for sub in range(2):
                for t in range(2): o.append([Ins(f"buffer_load_dwordx2 {hreg(n,t,2*sub,2)}, v1, s[{sWS}:{sWS+3}], s82 offen offset:{1024*sub+8*t}",('h2',n))])
        return o
    G=lambda h:8*(H0+h)
    for h,(j,cp) in enumerate(HU):
        R=RG[h%3]
        for x in range(2):
            for t in range(2):
                d=ACC+8*(2*cp+x)+4*t
                for k in range(2):
                    cc="0" if (j==0 and k==0) else f"v[{d}:{d+3}]"
                    mf.append(Ins(f"v_mfma_f32_16x16x32_bf16 v[{d}:{d+3}], v[{R+8*x+4*k}:{R+8*x+4*k+3}], {hreg(2*j+k,t)}, {cc}"))
        pre.setdefault(G(h),[]).append(Ins(f"s_waitcnt lgkmcnt({8 if h+1<nH else 0})"))
    pre[G(-1)]=[Ins("s_waitcnt lgkmcnt(8)")]
    for h in range(-2,nH-2):
        r=reads(h+2)
        for gi,a in zip((0,1,3,5),(0,2,4,6)): post.setdefault(G(h)+gi,[]).extend(r[a:a+2])
    tr=[[Ins("v_mov_b32 v4, v56"),Ins("v_xor_b32 v5, 32, v56")],[Ins("v_xor_b32 v6, 64, v56"),Ins("v_xor_b32 v7, 96, v56")],
        [Ins("v_subrev_u32 v2, 896, v61"),Ins("v_subrev_u32 v3, 1792, v61")],[cx.poll_issue(62,57,sFA)]]
    s.place(tr,144,146)
    pre[G(-14)]+=cx.poll_check(62,57,sFA)
    NP=opt.get('np2',6)
    s.place(sum((wl(n) for n in range(2)),[]),146,148)
    s.place(hl(0)+hl(1)+sum((wl(n)+hl(n) for n in range(2,NP)),[]),148,158)
    pre[G(-2)].append(WaitVM([(k,n) for n in range(min(NP,4)) for k in('w2','h2')],True))
    aw=[[Ins(f"v_add_u32 v{AW[w][c]}, {49152*w}, v{AW[0][c]}") for c in (c0,c0+1)] for w in (1,2) for c0 in (0,2)]
    for i,g in enumerate(aw): post.setdefault(G(i)+7,[]).extend(g[:1]); post.setdefault(G(i+4)+7,[]).extend(g[1:])
    bars={10:range(4,6),16:range(6,8)}
    for e in range(2,9): bars[12*e-2]=range(4*e,4*e+4)
    if NSEC>2: bars[6*(18-NSEC)+(NSEC-2)-2]=bars.pop(94)
    for h,bl in bars.items(): pre[G(h)].append(WaitVM([(k,n) for n in bl for k in('w2','h2')],True))
    need={n:h for h,bl in bars.items() for n in bl}
    hB=opt.get('hB',22); hC=opt.get('hC',66)
    E=opt.get('e2',86); items=[]
    for n in range(NP,36):
        ew=2 if n>=10 else 0
        if n>=12:
            last=6*((n-12)//2)+5
            ew=min(max(q, last+3 if q<last else q) for q in bars if q>=last-1)
        eh=0 if n<16 else (hB if n<32 else hC)
        items+=[(ew,g,n) for g in wl(n)]+[(eh,g,n) for g in hl(n)]
    gaps=[(h,o) for h in range(0,100) for o in (2,4,6)]
    gi=0; tot=len(items)
    for i,(e,g,n) in enumerate(items):
        gi=max(gi, i*3*E//tot, 3*e)
        h,o=gaps[gi]; assert h<=need[n]-opt.get('margin2',4),(n,h,need[n])
        post.setdefault(G(h)+o,[]).extend(g); gi+=1
    hlast=h
    gE=opt.get('gE',44)
    s.streams.append((G(0)+4,G(gE),s.gS))
    for (hh,tag,off,to) in ((opt.get('hfb',9),('hst',3),0x4000,sHO+2),(gE+9,('hst',4),0x8000,None)):
        a,b=flag_store(off)
        pre[G(hh)]+=[WaitVM([tag])]; post.setdefault(G(hh-1)+7,[]).append(b); post.setdefault(G(hh)+7,[]).append(a)
        if to and opt.get('htouch',0): post.setdefault(G(hh+1)+7,[]).append(touch(60,sWS,f"s{to}",''))
    for hh in (hB,hC):
        post.setdefault(G(hh-5)+7,[]).extend([Ins(f"s_add_u32 s{sFA}, s{sFA}, 0x4000"),cx.poll_issue(62,57,sFA)])
        pre[G(hh)]+=cx.poll_check(62,57,sFA)
    for h in range(nH): pre[G(h)]+=stamp(f'g2_{h}')
    OWN=R2BASE
    su=[f"v_bfe_u32 v10, v1, 8, 1",f"v_bfe_u32 v11, v1, 9, 1","v_lshl_add_u32 v10, v10, 1, v11","v_and_b32 v11, 0xf0, v1","v_lshl_add_u32 v58, v10, 8, v11",
        "s_mul_i32 s83, s3, 12288",f"s_add_u32 s83, s83, {OWN}","v_add_u32 v59, s83, v58",
        "v_mul_u32_u24 v60, 72, v11","v_lshrrev_b32 v10, 8, v1","v_lshl_add_u32 v60, v10, 4, v60",
        "s_bfe_u32 s83, s2, 0x20001","s_mul_i32 s84, s83, 12288","s_lshl_b32 s83, s3, 10","s_add_u32 s84, s84, s83",f"s_add_u32 s84, s84, {OWN}","v_add_u32 v9, s84, v1",
        f"s_mov_b32 s{sWg}, s{sXP}",f"s_mov_b32 s{sWg+1}, s{sXP+1}",f"s_mov_b32 s{sWg+2}, {XB}",
        f"s_mov_b32 s{sWu}, s{sOP}",f"s_mov_b32 s{sWu+1}, s{sOP+1}",f"s_mov_b32 s{sWu+2}, {XB}",
        "s_bfe_u32 s83, s2, 0x20001","s_cmp_eq_u32 s83, s3",f"s_cselect_b32 s84, {OOB}, 0","v_or_b32 v58, s84, v58"]
    for i in range(1,4): su+=[f"s_add_u32 s84, s83, {i}","s_and_b32 s84, s84, 3",f"s_mul_i32 s84, s84, {XB}",f"s_add_u32 s84, s84, s{sFS}",f"s_add_u32 s{31+i}, s84, {WS_P}"]
    su+=[f"s_add_u32 s35, s{sFS}, {WS_S}",f"s_mov_b32 s36, {F_S}","v_and_b32 v61, 0x30, v1","v_mov_b32 v14, 0"]
    XR=160; SR=172; OR=184
    su+=[f"buffer_load_dwordx4 v[{XR+4*k}:{XR+4*k+3}], v60, s[{sWg}:{sWg+3}], s{sFX} offen offset:{128*k}" for k in range(3)]
    s.streams.append((G(max(gE+11,hlast+1)),G(96),[Ins(x,'xl') for x in su]))
    for cp in range(6):
        ops=[]
        for t in range(2):
            a0=ACC+8*(2*cp)+4*t; a1=a0+8; d=PK+4*((2*cp+t)%4)
            ops+=[f"v_cvt_pk_bf16_f32 v{d}, v{a0}, v{a0+1}",f"v_cvt_pk_bf16_f32 v{d+2}, v{a1}, v{a1+1}",
                  f"v_cvt_pk_bf16_f32 v{d+1}, v{a0+2}, v{a0+3}",f"v_cvt_pk_bf16_f32 v{d+3}, v{a1+2}, v{a1+3}"]
        for t in range(2):
            d=PK+4*((2*cp+t)%4)
            ops+=[f"v_permlane16_swap_b32 v{d}, v{d+2}",f"v_permlane16_swap_b32 v{d+1}, v{d+3}",
                  f"buffer_store_dwordx4 v[{d}:{d+3}], v58, s[{sWS}:{sWS+3}], s{sPO} offen offset:{1024*t} sc1",
                  f"ds_write_b128 v59, v[{d}:{d+3}] offset:{2048*cp+1024*t}"]
        if cp<5: ops.append(f"s_add_u32 s{sPO}, s{sPO}, 4096")
        hd=6*(18-NSEC)+NSEC*(cp+1)
        s.streams.append((G(hd)+3, 99999, [Ins(o,('pst',cp//4)) for o in ops]))
    return XR,SR

def final(cx, XR, SR, opt):
    import k3
    k3.EPS[0]=opt.get('eps',0)
    o=[]; I=lambda t,tag=None:o.append(Ins(t,tag))
    o+=stamp('fin0')
    P=64; OWN=112; T=128
    I("s_mov_b64 exec, 1")
    o.append(WaitVM([('pst',0)])); I(f"buffer_store_dword v15, v14, s[{sWS}:{sWS+3}], s{sFP} offen sc1",'flag')
    o.append(WaitVM([('pst',1)])); I(f"buffer_store_dword v15, v14, s[{sWS}:{sWS+3}], s{sFP} offen offset:64 sc1",'flag')
    I("s_mov_b64 exec, -1")
    o.append(cx.poll_issue(1,57,36))
    I("s_waitcnt lgkmcnt(0)"); I("s_barrier")
    for k in range(3): I(f"ds_read_b128 v[{OWN+4*k}:{OWN+4*k+3}], v9 offset:{4096*k}")
    o+=cx.poll_check(1,57,36)
    I(f"s_mov_b32 s80, {F_EPOCH}"); I("s_cmp_eq_u32 s2, 0"); I(f"s_cselect_b32 s80, s80, {OOB}"); I("v_mov_b32 v13, s80")
    for k in range(3):
        I(f"buffer_load_dwordx4 v[{SR+4*k}:{SR+4*k+3}], v1, s[{sWS}:{sWS+3}], s35 offen sc1",('sl',k))
        if k<2: I("s_add_u32 s35, s35, 8192")
    def ploads(k):
        for i in range(3):
            I(f"buffer_load_dwordx4 v[{P+16*k+4*i}:{P+16*k+4*i+3}], v1, s[{sWS}:{sWS+3}], s{32+i} offen sc1",('pl',k))
            if k<2: I(f"s_add_u32 s{32+i}, s{32+i}, 8192")
    def math(k):
        o.append(WaitVM([('pl',k),('sl',k),'xl']))
        q=Prog(); k3.final_math(q,[OWN+4*k,P+16*k,P+16*k+4,P+16*k+8],SR+4*k,XR+4*k,T); o.extend(q.l)
        I(f"buffer_store_dwordx4 v[{XR+4*k}:{XR+4*k+3}], v60, s[{sWu}:{sWu+3}], s{sFX} offen offset:{128*k}",'out')
    o.append(cx.poll_issue(61,57,sFQ)); o+=cx.poll_check(61,57,sFQ)
    o+=stamp('fin1')
    ploads(0); ploads(1)
    o.append(cx.poll_issue(61,57,sFQ,64)); o+=cx.poll_check(61,57,sFQ,64)
    ploads(2)
    I("s_waitcnt lgkmcnt(0)")
    math(0); math(1); math(2)
    I(f"buffer_store_dword v15, v13, s[{sWS}:{sWS+3}], 0 offen sc1",'flag')
    return o
```

```python
from pcommon import *
ROWB=544
KLDS=131072; CNT=163824
B=64

def ln_issue(p):
    p(f"""
    v_and_b32 v{B+2}, 7, v0                  ; n8
    v_lshrrev_b32 v{B+3}, 3, v0              ; j
    v_mul_u32_u24 v{B+4}, 1152, v{B+2}
    v_lshl_add_u32 v{B+4}, v{B+3}, 4, v{B+4}
    s_mul_i32 s80, s2, {8*1152}
    v_add_u32 v{B+4}, s80, v{B+4}
    """)
def ln_loads(p):
    for k in range(9):
        p(f"global_load_dwordx4 v[{B+16+4*k}:{B+19+4*k}], v{B+4}, s[{sXP}:{sXP+1}] offset:{128*k} nt")
def kgen_addr(p):
    p(f"""
    s_mul_hi_u32 s80, s2, {(2**32+2)//3}
    s_mul_i32 s81, s80, 3
    s_sub_u32 s81, s2, s81
    s_mul_i32 s81, s81, 3
    s_add_u32 s81, s81, s3                   ; slot
    s_lshl_b32 s83, s80, 3
    s_add_u32 s83, s83, s81
    s_add_u32 s82, s80, 512
    s_cmp_eq_u32 s81, 8
    s_cselect_b32 s83, s82, s83              ; channel
    s_lshl_b32 s84, s80, 7
    s_lshl_b32 s81, s81, 3
    s_add_u32 s84, s84, s81
    s_add_u32 s84, s84, {F_K}
    s_lshl_b32 s{sKO}, s83, 12
    s_add_u32 s{sKO}, s{sKO}, {WS_K}
    s_cmp_lt_u32 s2, 192
    s_cselect_b32 s81, s3, 3
    s_cmp_lt_u32 s81, 3
    s_cselect_b32 s84, s84, {OOB}
    s_cselect_b32 s{sKO}, s{sKO}, 0
    s_cselect_b32 s83, s83, 0
    s_lshl_b32 s80, s83, 8
    v_lshl_add_u32 v{B+7}, v0, 2, s80
    s_lshl_b32 s80, s83, 1
    v_mov_b32 v{B+8}, s80
    """)
def kgen_loads(p):
    r=B+56
    p(f"""
    global_load_dword v{r}, v{B+7}, s[60:61] nt
    global_load_ushort v{r+4}, v{B+8}, s[68:69] nt
    global_load_dword v{r+1}, v{B+7}, s[62:63] nt
    global_load_dword v{r+2}, v{B+7}, s[64:65] nt
    global_load_dword v{r+3}, v{B+7}, s[66:67] nt
    """)

def ln_compute(p, nafter, cold):
    R=B+16; U=B+64
    p(f"""
    v_lshrrev_b32 v{B+9}, 2, v{B+3}
    v_lshlrev_b32 v{B+9}, 12, v{B+9}
    v_and_b32 v{B+3}, 3, v{B+3}
    v_lshl_add_u32 v{B+9}, v{B+3}, 8, v{B+9}
    v_lshl_add_u32 v{B+9}, v{B+2}, 4, v{B+9}
    s_lshr_b32 s60, s2, 3
    s_mul_i32 s60, s60, {18*4096}
    s_bfe_u32 s61, s2, 0x20001
    s_lshl_b32 s61, s61, 10
    s_add_u32 s60, s60, s61
    s_and_b32 s61, s2, 1
    s_lshl_b32 s61, s61, 7
    s_add_u32 s60, s60, s61
    s_mov_b32 s63, 0x3f803f80
    s_mov_b32 s64, {fhex(1.0/576)}
    s_mov_b32 s65, 0x00003f80
    s_mov_b32 s66, 0x3f800000
    v_mov_b32 v{B+10}, 0
    v_mov_b32 v{B+11}, 0
    v_mov_b32 v{B+12}, 0
    v_mov_b32 v{B+13}, 0
    """)
    assert WS_XN==0
    for k in range(9):
        if k%3==0 or k>5: p(f"s_waitcnt vmcnt({nafter+8-(k+2 if k<6 else k)})")
        if k==0 and cold: p.ext(cold); nafter+=6
        for j in range(4):
            d=R+4*k+j
            p(f"v_dot2c_f32_bf16 v{B+10+(j&1)}, s63, v{d}\nv_dot2c_f32_bf16 v{B+12+(j&1)}, v{d}, v{d}")
    a,b,t,u=B+10,B+12,B+11,B+13
    p(f"s_nop 1\nv_add_f32 v{a}, v{a}, v{t}\nv_add_f32 v{b}, v{b}, v{u}\ns_nop 0")
    p(f"v_add_f32_dpp v{a}, v{a}, v{a} row_ror:8 row_mask:0xf bank_mask:0xf\nv_add_f32_dpp v{b}, v{b}, v{b} row_ror:8 row_mask:0xf bank_mask:0xf")
    for sw in ('v_permlane16_swap_b32','v_permlane32_swap_b32'):
        p(f"v_mov_b32 v{t}, v{a}\nv_mov_b32 v{u}, v{b}\ns_nop 0")
        p(f"{sw} v{t}, v{a}\n{sw} v{u}, v{b}\nv_add_f32 v{a}, v{a}, v{t}\nv_add_f32 v{b}, v{b}, v{u}")
    m=B+14
    p(f"""
    v_mul_f32 v{a}, s64, v{a}                ; mean
    v_mul_f32 v{b}, s64, v{b}
    v_cvt_pk_bf16_f32 v{m}, 0, -v{a}         ; -bf16(mean)
    v_fma_f32 v{b}, -v{a}, v{a}, v{b}        ; var
    v_max_f32 v{b}, 0, v{b}
    v_cvt_pk_bf16_f32 v{b}, 0, v{b}
    v_add_f32 v{b}, {fhex(1e-5)}, v{b}
    v_cvt_pk_bf16_f32 v{b}, 0, v{b}
    v_sqrt_f32 v{b}, v{b}
    """)
    for k in range(9):
        for j in range(4):
            d=R+4*k+j
            p(f"v_dot2_f32_bf16 v{U+2*j}, v{d}, s65, v{m}\nv_dot2_f32_bf16 v{U+2*j+1}, v{d}, s66, v{m}")
        if k==0: p(f"v_cvt_pk_bf16_f32 v{b}, 0, v{b}\nv_rcp_f32 v{a}, v{b}")
        for j in range(8): p(f"v_cvt_pk_bf16_f32 v{U+j}, 0, v{U+j}")
        for j in range(4): p(f"v_pk_mul_f32 v[{U+2*j}:{U+2*j+1}], v[{U+2*j}:{U+2*j+1}], v[{a}:{a+1}] op_sel_hi:[1,0]")
        for j in range(4): p(f"v_cvt_pk_bf16_f32 v{R+4*k+j}, v{U+2*j}, v{U+2*j+1}")
        p(f"buffer_store_dwordx4 v[{R+4*k}:{R+4*k+3}], v{B+9}, s[{sWS}:{sWS+3}], s60 offen sc1")
        if k<8: p("s_add_u32 s60, s60, 8192")

def kgen(p0, nafter, cold):
    p=Prog(); marks={}
    p(f"""
    s_mul_i32 s63, s3, {16*ROWB}
    s_add_u32 s63, s63, {KLDS}
    v_lshl_add_u32 v4, v0, 3, s63
    v_and_b32 v2, 15, v0
    v_lshrrev_b32 v3, 4, v0
    v_lshl_add_u32 v12, v3, 4, s63
    v_mov_b32 v13, {ROWB}
    v_mad_u32_u24 v5, v2, v13, v12
    v_lshrrev_b32 v14, 2, v2
    v_and_b32 v15, 3, v2
    v_subrev_u32 v6, 1, v15
    v_max_i32 v6, 0, v6
    v_lshl_add_u32 v6, v14, 1, v6
    v_mad_u32_u24 v6, v6, v13, v12
    v_min_u32 v15, 2, v15
    v_lshrrev_b32 v7, 1, v14
    v_lshl_add_u32 v7, v14, 1, v7
    v_add_u32 v7, v7, v15
    v_mad_u32_u24 v7, v7, v13, v12
    v_mad_u32_u24 v8, v14, 3, v15
    v_mad_u32_u24 v8, v8, v13, v12
    v_lshl_add_u32 v9, v2, 5, s63
    v_lshl_add_u32 v11, v3, 9, v9
    v_lshrrev_b32 v14, 1, v3
    v_lshl_add_u32 v10, v14, 9, v9
    v_and_b32 v14, 1, v3
    v_lshl_add_u32 v10, v14, 4, v10
    v_lshl_add_u32 v9, v3, 3, v9
    v_lshl_add_u32 v1, v0, 4, s63
    s_mov_b32 s64, {fhex(LOG2E_HI)}
    s_mov_b32 s65, {fhex(LOG2E_LO)}
    s_mov_b32 s66, {fhex(math.log(2))}
    s_waitcnt vmcnt({nafter})
    v_lshlrev_b32 v22, 16, v56
    v_and_b32 v23, 0xffff0000, v56
    v_lshlrev_b32 v24, 16, v60
    """)
    for r in range(3): p(f"v_mul_f32 v{26+r}, s64, v{22+r}")
    for r in range(3): p(f"v_fma_f32 v{30+r}, v{22+r}, s64, -v{26+r}")
    for r in range(3): p(f"v_exp_f32 v{26+r}, v{26+r}")
    for r in range(3): p(f"v_fmac_f32 v{30+r}, s65, v{22+r}")
    for r in range(3): p(f"v_mul_f32 v{30+r}, s66, v{30+r}")
    for r in range(3): p(f"v_fmac_f32 v{26+r}, v{26+r}, v{30+r}")
    p(f"""
    v_cvt_pk_bf16_f32 v26, v26, v27
    v_cvt_pk_bf16_f32 v28, v28, v28
    v_and_b32 v24, 0xffff0000, v28
    v_lshlrev_b32 v22, 16, v26
    v_and_b32 v23, 0xffff0000, v26
    v_lshlrev_b32 v26, 16, v57
    v_and_b32 v27, 0xffff0000, v57
    v_pk_mul_f32 v[22:23], v[22:23], v[24:25] op_sel_hi:[1,0]
    v_pk_mul_f32 v[26:27], v[26:27], v[24:25] op_sel_hi:[1,0]
    v_mul_f32 v22, {fhex(-LOG2E)}, v22
    v_mul_f32 v23, {fhex(-LOG2E)}, v23
    v_mul_f32 v26, 0.15915494, v26
    v_mul_f32 v27, 0.15915494, v27
    v_add_f32 v24, v24, v24
    v_lshlrev_b32 v28, 16, v58
    v_and_b32 v29, 0xffff0000, v58
    v_lshlrev_b32 v30, 16, v59
    v_and_b32 v31, 0xffff0000, v59
    v_pk_mul_f32 v[28:29], v[28:29], v[24:25] op_sel_hi:[1,0]
    v_pk_mul_f32 v[30:31], v[30:31], v[24:25] op_sel_hi:[1,0]
    """)
    W={16:36, 1:32, 256:40}
    for pp,b in W.items():
        if pp==1:
            for k in range(2): p(f"v_exp_f32 v{12+k}, v{22+k}")
            for k in range(2): p(f"v_fract_f32 v{14+k}, v{26+k}")
        else:
            for k in range(2): p(f"v_mul_f32 v{12+k}, {fhex(float(pp))}, v{22+k}")
            for k in range(2): p(f"v_mul_f32 v{14+k}, {fhex(float(pp))}, v{26+k}")
            for k in range(2): p(f"v_exp_f32 v{12+k}, v{12+k}")
            for k in range(2): p(f"v_fract_f32 v{14+k}, v{14+k}")
        for k in range(2): p(f"v_cos_f32 v{b+k}, v{14+k}")
        for k in range(2): p(f"v_sin_f32 v{b+2+k}, v{14+k}")
        p(f"v_pk_mul_f32 v[{b}:{b+1}], v[{b}:{b+1}], v[12:13]\nv_pk_mul_f32 v[{b+2}:{b+3}], v[{b+2}:{b+3}], v[12:13]")
    def cmul(d,a,b):
        assert d!=a and d!=b
        p(f"""
        v_pk_mul_f32 v[{d}:{d+1}], v[{a}:{a+1}], v[{b}:{b+1}]
        v_pk_mul_f32 v[{d+2}:{d+3}], v[{a}:{a+1}], v[{b+2}:{b+3}]
        v_pk_fma_f32 v[{d}:{d+1}], v[{a+2}:{a+3}], v[{b+2}:{b+3}], v[{d}:{d+1}] neg_lo:[1,0,0] neg_hi:[1,0,0]
        v_pk_fma_f32 v[{d+2}:{d+3}], v[{a+2}:{a+3}], v[{b}:{b+1}], v[{d+2}:{d+3}]
        """)
    wcnt=[0]; tb=[0]
    def emit(z,row,neg=False):
        t=16+2*(wcnt[0]%3); wcnt[0]+=1
        n='-' if neg else ''
        if side: p(side.pop(0))
        p(f"v_cvt_pk_bf16_f32 v{t}, v{z}, v{z+1}\nv_cvt_pk_bf16_f32 v{t+1}, {n}v{z+2}, {n}v{z+3}")
        if side: p(side.pop(0))
        p(f"ds_write_b64 v4, v[{t}:{t+1}] offset:{row*ROWB}")
    RB=64; A0=96; A1=128; ACC=160; O=176
    side=[]
    def reads(dst, areg):
        for s_ in range(8): p(f"ds_read_b128 v[{dst+4*s_}:{dst+4*s_+3}], v{areg} offset:{64*s_+tb[0]}")
    def mm(acc, A):
        return [f"v_mfma_f32_16x16x32_bf16 v[{acc}:{acc+3}], v[{A+4*s_}:{A+4*s_+3}], v[{RB+4*s_}:{RB+4*s_+3}], "+("0" if s_==0 else f"v[{acc}:{acc+3}]") for s_ in range(8)]
    Z=[44,48]; W2,W4,W8,BS=52,56,60,[24,28]
    cur=28; emit(cur,0,True)
    for a in range(1,16):
        nx=Z[a&1]; cmul(nx,cur,W[16]); emit(nx,a,True); cur=nx
    reads(RB,5)
    p("v_mov_b32 v22, 0x3f803f80\nv_mov_b32 v23, 0\nds_write_b64 v4, v[22:23]")
    emit(W[1],1); cur=W[1]
    for j in range(2,16):
        nx={2:W2,4:W4,8:W8}.get(j, Z[j&1]); cmul(nx,cur,W[1]); emit(nx,j); cur=nx
    reads(A0,5)
    cur=W[256]; emit(cur,0)
    for q in range(1,9):
        if q==3: p("s_waitcnt lgkmcnt(3)"); side+=mm(ACC,A0)
        nx=Z[q&1]; cmul(nx,cur,W2); emit(nx,q); cur=nx
    reads(A1,6)
    base=W[256]
    for be in range(2):
        nb=BS[be&1]; cmul(nb,base,W[256]); base=nb; emit(base,5*be); cur=base
        for q in range(1,5):
            if be==0 and q==3: p("s_waitcnt lgkmcnt(3)"); side+=mm(ACC+4,A1)
            nx=Z[q&1]; cmul(nx,cur,W4); emit(nx,5*be+q); cur=nx
    reads(A0,7)
    for be in range(4):
        if be==1: p("s_waitcnt lgkmcnt(3)"); side+=mm(ACC+8,A0)
        nb=BS[be&1]; cmul(nb,base,W[256]); base=nb; emit(base,3*be)
        cmul(Z[0],base,W8); emit(Z[0],3*be+1)
        cmul(Z[1],base,W[16]); emit(Z[1],3*be+2)
    assert not side
    reads(A1,8)
    cv=[f"v_cvt_pk_bf16_f32 v{O+k}, v{ACC+2*k}, v{ACC+2*k+1}" for k in range(4)]
    cv+=[f"v_cvt_pk_bf16_f32 v{O+4+k}, v{ACC+8+x}, v{ACC+8+y}" for k,(x,y) in enumerate(((0,0),(0,1),(1,1),(2,2)))]
    for x in cv: p(x)
    p(f"ds_write_b64 v9, v[{O}:{O+1}]\nds_write_b64 v9, v[{O+2}:{O+3}] offset:512\nds_write_b128 v10, v[{O+4}:{O+7}] offset:1024")
    p("s_waitcnt lgkmcnt(3)")
    for x in mm(ACC+12,A1): p(x)
    p(f"ds_read_b128 v[{A0}:{A0+3}], v1\nds_read_b128 v[{A0+4}:{A0+7}], v1 offset:1024\ns_nop 5")
    a=ACC+12
    for k,(x,y) in enumerate(((0,0),(0,0),(0,1),(1,1),(1,1),(1,1),(2,2),(2,2))): p(f"v_cvt_pk_bf16_f32 v{O+8+k}, v{a+x}, v{a+y}")
    p(f"ds_write_b128 v11, v[{O+8}:{O+11}] offset:2048\nds_write_b128 v11, v[{O+12}:{O+15}] offset:2064")
    p(f"ds_read_b128 v[{A0+8}:{A0+11}], v1 offset:2048\nds_read_b128 v[{A0+12}:{A0+15}], v1 offset:3072")
    l=remap(p.l,B)
    cut=[i for i,x in enumerate(l) if x.kind=='wait'][0]+1
    p0.ext(l[:cut]); p0.ext(cold); p0.ext(l[cut:])
    p0("s_waitcnt vmcnt(0) lgkmcnt(4)")
    for k in range(4):
        if k>=2: p0(f"s_waitcnt lgkmcnt({3-k})")
        p0(f"buffer_store_dwordx4 v[{B+A0+4*k}:{B+A0+4*k+3}], v1, s[{sWS}:{sWS+3}], s{sKO} offen offset:{1024*k} sc1")

def cold_addr(p):
    p(f"""
    s_bfe_u32 s83, s2, 0x30003
    s_lshl_b32 s83, s83, 1
    s_mul_i32 s81, s83, {32*9216}
    s_lshl_b32 s82, s83, 13
    s_add_u32 m0, s82, s{sM0}
    s_add_u32 s83, s83, 2
    s_bfe_u32 s82, s2, 0x10005
    s_add_u32 s82, s82, 16
    s_mul_i32 s82, s82, {32*9216}
    s_bfe_u32 s80, s2, 0x20003
    s_cmp_eq_u32 s80, s3
    s_cselect_b32 s80, 0, {OOB}
    v_or_b32 v62, s80, v2
    """)
def cold_part(opt):
    F=opt.get('svcf','nt'); p=Prog()
    for k in range(2):
        if k: p(f"s_add_u32 m0, m0, 8192\ns_add_u32 s81, s81, {32*9216}")
        p(f"buffer_load_dwordx4 v2, s[{sWg}:{sWg+3}], s81 offen {F} lds\nbuffer_load_dwordx4 v2, s[{sWu}:{sWu+3}], s81 offen offset:1024 {F} lds")
    p.l+=[Ins(f"buffer_load_dword v63, v62, s[{sWg}:{sWg+3}], s82 offen",'touch'),Ins(f"buffer_load_dword v63, v62, s[{sWu}:{sWu+3}], s82 offen offset:1024",'touch')]
    return p.l

def service_addr(p):
    V=B+52
    p(f"""
    v_subrev_u32 v{V+1}, {2*8*9216}, v2
    v_xor_b32 v{V+2}, 64, v2
    v_subrev_u32 v{V+2}, {8*9216}, v{V+2}
    v_subrev_u32 v{V}, {2*8*9216}, v{V+2}
    v_mov_b32 v{V+3}, v2
    s_lshl_b32 s80, s2, 4
    s_add_u32 s80, s80, {F_LN}
    v_mov_b32 v{V+4}, {OOB}
    v_writelane_b32 v{V+4}, s80, 0
    """)

def service(p, opt):
    V=B+52; F=opt.get('svcf2',''); n1=opt.get('svc_n1',5)
    def loop(lab,n,thr):
        p(f"s_mov_b32 s80, 0\n{lab}:\ns_and_b32 s83, s83, 15\ns_mul_i32 s81, s83, {32*9216}\ns_lshl_b32 s82, s83, 13")
        for pc in range(4):
            p(f"s_add_u32 m0, s82, {2048*pc}")
            p("s_add_u32 s83, s83, 1" if pc==0 else ("s_add_u32 s80, s80, 1" if pc==1 else "s_nop 0"))
            p(f"buffer_load_dwordx4 v{V+pc}, s[{sWg}:{sWg+3}], s81 offen {F} lds\nbuffer_load_dwordx4 v{V+pc}, s[{sWu}:{sWu+3}], s81 offen offset:1024 {F} lds")
        if thr is not None: p(f"s_waitcnt vmcnt({thr})")
        p(f"s_cmp_lt_u32 s80, {n}\ns_cbranch_scc1 {lab}")
    assert 6+9+8*n1<=63
    loop("Lsvc1",n1,None)
    p(f"s_waitcnt vmcnt({8*n1})\nbuffer_store_dword v15, v{V+4}, s[{sWS}:{sWS+3}], 0 offen sc1")
    p.ext(stamp('lnf'))
    loop("Lsvc2",14-n1,opt.get('svc_thr',24))
```

```python
from pcommon import *
import pg
XR0=8192; XR1=XR0+32768; KB=XR1+32768; KCS=4128; UB=KB+9*KCS; UCS=4624; UDS=1152
assert UB%16==0 and UB+9*UCS<=163840 and UB<=131072
ZL=XR0; ZS=8208
ABUF=[0,64]; BBUF=[128,192]; SETS=[64,96,128,160,192]; UT=224; TT=192; Z0=240
sG0,sG1,sKA,sKX,sKL,sXS,sCH,sDA,sQ=70,71,72,73,74,75,76,77,78
def setup_ssm(p):
    p(f"""
    s_and_b32 s60, s2, 7
    s_lshr_b32 s61, s2, 3
    s_sub_u32 s{sCH}, s61, 24
    s_lshl_b32 s62, s60, 3
    s_add_u32 s{sQ}, s62, s{sCH}             ; q
    s_add_u32 s63, s60, 64
    s_lshr_b32 s64, s{sQ}, 2
    s_lshl_b32 s64, s64, 12
    s_and_b32 s65, s{sQ}, 3
    s_lshl_b32 s65, s65, 8
    s_add_u32 s66, s64, s65
    s_lshr_b32 s64, s63, 2
    s_lshl_b32 s64, s64, 12
    s_and_b32 s65, s63, 3
    s_lshl_b32 s65, s65, 8
    s_add_u32 s67, s64, s65
    s_mul_i32 s64, s3, {8*18*4096}
    s_add_u32 s{sG0}, s66, s64
    s_add_u32 s{sG1}, s67, s64
    s_lshl_b32 s64, s{sQ}, 3
    s_add_u32 s64, s64, s3                   ; chA
    s_lshl_b32 s{sDA}, s64, 1
    s_lshl_b32 s64, s64, 12
    s_add_u32 s{sKA}, s64, {WS_K}
    s_lshl_b32 s64, s{sQ}, 12
    s_lshl_b32 s65, s3, 10
    s_add_u32 s64, s64, s65
    s_add_u32 s{sKX}, s64, {WS_K+512*4096}
    s_mul_i32 s64, s3, {KCS}
    s_add_u32 s{sKL}, s64, {KB+32}
    s_mul_i32 s64, s3, {18*4096}
    s_add_u32 s64, s64, s67
    s_lshl_b32 s65, s{sCH}, 1
    s_add_u32 s64, s64, s65
    s_add_u32 s{sXS}, s64, {WS_S}
    v_lshrrev_b32 v10, 4, v0                 ; g
    v_and_b32 v11, 0xf0, v1
    v_lshl_add_u32 v62, v10, 10, v11         ; tb*1024+n*16
    v_bfe_u32 v11, v0, 2, 2                  ; e
    v_and_b32 v12, 32, v0
    v_lshl_add_u32 v12, v11, 2, v12
    v_and_b32 v10, 1, v10
    v_lshl_add_u32 v12, v10, 1, v12
    v_lshlrev_b32 v12, 4, v12
    v_and_b32 v11, 3, v0
    v_lshl_add_u32 v12, v11, 3, v12
    s_lshl_b32 s64, s3, 13
    v_add_u32 v56, s64, v12
    v_and_b32 v10, 7, v0
    v_bfe_u32 v11, v0, 3, 2
    v_lshrrev_b32 v12, 5, v0
    v_mul_u32_u24 v11, {UDS}, v11
    v_lshl_add_u32 v11, v12, 4, v11
    v_mul_u32_u24 v10, {UCS}, v10
    s_lshl_b32 s64, s3, 8
    s_add_u32 s64, s64, {UB+128}
    v_add3_u32 v61, v10, v11, s64
    """)

def setup_ssm_sel():
    p=Prog(); setup_ssm(p); out=[Ins("s_cmp_ge_u32 s2, 192"),Ins("s_cselect_b64 s[68:69], -1, 0")]
    for x in p.l:
        d=x.ops[0]; t=x.text.split(';')[0]
        if d in [f"s{k}" for k in range(70,79)]:
            out+=[Ins(t.replace(d+",","s85,",1)),Ins("s_cmp_ge_u32 s2, 192"),Ins(f"s_cselect_b32 {d}, s85, {d}")]
        elif d in ('v56','v61','v62'):
            out+=[Ins(t.replace(d+",","v13,",1)),Ins(f"v_cndmask_b32 {d}, {d}, v13, s[68:69]")]
        else: out.append(x)
    return out

def add_ssm(s, cx):
    opt=s.opt; pre,post=s.pre,s.post
    LF='sc1'
    def xr(base,so,tag):
        return [[Ins(f"s_add_u32 m0, s32, {base+1024*k}"), Ins(f"s_add_u32 s81, s{so}, {WS_XN+k*18*4096}")] for k in range(8)], \
               [[Ins(f"buffer_load_dwordx4 v62, s[{sWS}:{sWS+3}], s81 offen {LF} lds",tag)] for k in range(8)]
    def il(a,b): return [x for pr in zip(a,b) for x in pr]
    def kl(m0,so,tag,n=4):
        return [m0]+[[Ins(f"buffer_load_dwordx4 v1, s[{sWS}:{sWS+3}], s{so} offen offset:{1024*k} {LF} lds",tag)] for k in range(n)]
    tr=[[Ins("s_lshl_b32 s32, s3, 13"),Ins("s_lshl_b32 s33, s3, 10")],[Ins(f"s_add_u32 s34, s33, {F_LN}"),Ins(f"s_lshl_b32 s35, s{sQ}, 7")],
        [cx.poll_issue(1,57,34)]]
    c1=cx.poll_check(1,57,34)
    tr+=[[Ins(f"s_add_u32 s35, s35, {F_K}"),Ins("v_min_u32 v58, 8, v0")],[Ins("v_lshlrev_b32 v58, 3, v58"),Ins(f"v_mov_b32 v5, s{sDA}")],[cx.poll_issue(58,59,35)]]
    c2=cx.poll_check(58,59,35)
    tr+=[[Ins(f"v_lshlrev_b32 v6, 1, s{sQ}")]]
    s.place(tr,144,146)
    pre[8*149]+=c1+c2
    g=il(*xr(XR0,sG0,'xr0'))+kl([Ins(f"s_mov_b32 m0, s{sKL}")],sKA,'kA')
    g+=[[Ins(f"global_load_ushort v2, v5, s[{sDP}:{sDP+1}]",'d')],[Ins(f"global_load_ushort v3, v5, s[{sDP}:{sDP+1}] offset:8",'d')],[Ins(f"global_load_ushort v4, v6, s[{sDP}:{sDP+1}] offset:1024",'d')]]
    s.place(g,149,160)
    late=kl([Ins(f"s_add_u32 m0, s33, {KB+32+8*KCS}")],sKX,'kX',1)+il(*xr(XR1,sG1,'xr1'))+kl([Ins(f"s_add_u32 m0, s{sKL}, {4*KCS}"),Ins(f"s_add_u32 s{sKA}, s{sKA}, {4*4096}")],sKA,'kB')
    t=[232+i for i in range(8)]
    g_,i_,e_,cg,a,b,c,d=t
    q=Prog()
    q(f"""
    s_barrier
    v_mov_b32 v{Z0}, 0
    v_mov_b32 v{Z0+1}, 0
    v_mov_b32 v{Z0+2}, 0
    v_mov_b32 v{Z0+3}, 0
    v_lshrrev_b32 v{a}, 3, v0
    v_and_b32 v{b}, 0x70, v1
    s_mul_i32 s36, s3, {UDS}
    s_add_u32 s37, s36, {UB}
    v_add_u32 v{b}, s37, v{b}
    v_mul_u32_u24 v{a}, {UCS}, v{a}
    v_add_u32 v{a}, v{a}, v{b}
    ds_write_b128 v{a}, v[{Z0}:{Z0+3}]
    ds_write_b128 v{b}, v[{Z0}:{Z0+3}] offset:{8*UCS}
    v_lshrrev_b32 v{a}, 1, v0
    v_min_u32 v{a}, 8, v{a}
    v_mul_u32_u24 v{a}, {KCS}, v{a}
    v_and_b32 v{b}, 16, v1
    v_add3_u32 v{a}, v{a}, v{b}, s38
    ds_write_b128 v{a}, v[{Z0}:{Z0+3}]
    """)
    z=q.l; z.insert(1,Ins(f"s_mov_b32 s38, {KB}"))
    q=Prog()
    q(f"""
    v_lshrrev_b32 v{g_}, 4, v0
    v_and_b32 v{i_}, 15, v0
    v_bfe_u32 v{e_}, v0, 2, 2
    v_and_b32 v{cg}, 3, v0
    v_lshl_add_u32 v{a}, v{g_}, 3, v{e_}
    v_sub_u32 v{a}, v{cg}, v{a}
    v_add_u32 v{a}, 24, v{a}
    v_lshlrev_b32 v{a}, 3, v{a}
    v_add_u32 v17, s{sKL}, v{a}
    v_add_u32 v18, {KB+32+8*KCS}, v{a}
    v_lshlrev_b32 v{a}, 3, v{i_}
    v_lshl_add_u32 v{a}, v{g_}, 4, v{a}
    s_mul_i32 s39, s3, {UCS}
    s_add_u32 s39, s39, {UB+8}
    v_add_u32 v19, s39, v{a}
    s_add_u32 s37, s36, {UB+8+8*UCS}
    v_add_u32 v20, s37, v{a}
    """)
    early=q.l
    q=Prog()
    q(f"""
    v_and_b32 v{a}, 7, v0
    v_cmp_eq_u32 s[40:41], s{sCH}, v{a}
    v_cmp_eq_u32 s[42:43], 63, v0
    v_sub_u32 v{a}, 8, v{a}
    v_mul_u32_u24 v{a}, {UCS}, v{a}
    v_add_u32 v16, v61, v{a}
    v_lshl_add_u32 v{a}, v{i_}, 2, v{g_}
    s_add_u32 s39, s39, 120
    v_lshl_add_u32 v24, v{a}, 1, s39
    v_lshl_add_u32 v25, v{a}, 3, s{sKL}
    s_mul_i32 s37, s3, {ZS}
    s_add_u32 s37, s37, {ZL+16}
    v_lshl_add_u32 v26, v{a}, 4, s37
    v_subrev_u32 v{a}, 16, v0
    v_add_u32 v{b}, 47, v0
    v_cmp_gt_u32 vcc, 16, v0
    v_mov_b32 v{c}, 63
    v_lshlrev_b32 v{d}, 6, s3
    v_cndmask_b32 v{a}, v{a}, v{b}, vcc
    v_cmp_eq_u32 vcc, 0, v0
    v_add_u32 v{d}, v{d}, v0
    v_lshlrev_b32 v28, 2, v{d}
    v_cndmask_b32 v{a}, v{a}, v{c}, vcc
    v_lshlrev_b32 v27, 2, v{a}
    v_add_u32 v28, {ZL+4}, v28
    v_and_b32 v{a}, 3, v{d}
    v_mul_u32_u24 v{a}, {UDS}, v{a}
    v_lshrrev_b32 v{b}, 2, v{d}
    v_lshl_add_u32 v{a}, v{b}, 1, v{a}
    v_add_u32 v29, {UB+8*UCS+128}, v{a}
    v_mul_u32_u24 v{a}, {KCS}, v{e_}
    v_lshl_add_u32 v{a}, v{g_}, 5, v{a}
    v_lshl_add_u32 v{a}, v{cg}, 3, v{a}
    s_add_u32 s37, s33, {KB+32}
    v_add_u32 v30, s37, v{a}
    v_lshlrev_b32 v2, 16, v2
    v_lshlrev_b32 v3, 16, v3
    v_lshlrev_b32 v4, 16, v4
    s_add_u32 s{sG0}, s{sG0}, {WS_S}
    """)
    for k in range(8): q(f"v_mov_b32 v{UT+k}, 0")
    shadow=q.l
    def transp(src,wreg):
        rd=[]; wr=[]
        for k in range(8):
            d_=TT+4*k
            rd.append([Ins(f"ds_read_b64_tr_b16 v[{d_}:{d_+1}], v56 offset:{src+1024*k}"),Ins(f"ds_read_b64_tr_b16 v[{d_+2}:{d_+3}], v56 offset:{src+1024*k+256}")])
            wr.append([Ins(f"ds_write_b128 v{wreg}, v[{d_}:{d_+3}] offset:{32*k}")])
        return rd,wr
    def aload(buf,reg,off):
        o=[]
        for s_ in range(16):
            d_=ABUF[buf]+4*s_
            o.append(Ins(f"ds_read_b64_tr_b16 a[{d_}:{d_+1}], v{reg} offset:{off+256*s_+32}"))
            o.append(Ins(f"ds_read_b64_tr_b16 a[{d_+2}:{d_+3}], v{reg} offset:{off+256*s_}"))
        return o
    def bload(buf,reg,off):
        o=[]
        for jj in range(16):
            d_=BBUF[buf]+4*jj
            o.append(Ins(f"ds_read_b64 a[{d_}:{d_+1}], v{reg} offset:{off+64*jj}"))
            o.append(Ins(f"ds_read_b64 a[{d_+2}:{d_+3}], v{reg} offset:{off+64*jj+8}"))
        return o
    def BAR(tags=[]):
        b_=WaitVM(tags,True); b_.drain=True; return b_
    rd,wr=transp(XR0,61)
    pro=stamp('p2')+[WaitVM(['xr0','kA','d'])]+sum(rd,[])+z+early+sum(wr,[])+aload(0,17,0)
    pro.append(BAR())
    bl=bload(0,19,0); pro+=bl[:8]
    passes=[(0,0,0),(0,1,1),(0,0,2),(0,1,3),(1,0,4),(0,1,0),(0,0,1),(0,1,2),(0,0,3)]
    mf=[]
    for pi,(ab,bb,st) in enumerate(passes):
        for jp in range(8):
            for b_ in range(jp,8):
                d_=SETS[st]+4*b_
                for k in range(2):
                    s_=2*b_-2*jp+1-k; jj=2*jp+k
                    cc="0" if (jp==0 and k==0) else f"v[{d_}:{d_+3}]"
                    mf.append(Ins(f"v_mfma_f32_16x16x32_bf16 v[{d_}:{d_+3}], a[{ABUF[ab]+4*s_}:{ABUF[ab]+4*s_+3}], a[{BBUF[bb]+4*jj}:{BBUF[bb]+4*jj+3}], {cc}"))
    pre={}; post={}
    P=lambda i:72*i
    spread(post,bl[8:],0,24)
    spread(post,shadow,0,48)
    spread(post,late,48,P(1)+10)
    boff=[None,(19,UDS),(19,2*UDS),(19,3*UDS),(20,0),(19,4*UCS),(19,4*UCS+UDS),(19,4*UCS+2*UDS),(19,4*UCS+3*UDS)]
    for pi in range(1,9):
        spread(post,bload(passes[pi][1],*boff[pi]),P(pi-1)+(26 if pi==1 else 4),P(pi)-8)
    rd,wr=transp(XR1,16)
    pre[P(2)+10]=[WaitVM(['xr1','kX','kB'])]
    spread(post,rd,P(2)+10,P(2)+34)
    for k in range(4): post.setdefault(P(2)+44+4*k,[]).extend([Ins("s_mov_b64 exec, s[40:41]")]+wr[2*k]+wr[2*k+1]+[Ins("s_mov_b64 exec, -1")])
    pre[P(3)+2]=[BAR()]
    spread(post,aload(1,18,0),P(3)+4,P(4)-8)
    spread(post,aload(0,17,4*KCS),P(4)+1,P(5)-8)
    def finish(p0,uoff,yoff,dreg,dw):
        S,Z1,Z2,Z3=SETS[:4]
        ops=[]
        for b_ in range(8):
            t_=UT+4*(b_&1)
            ops.append(([Ins(f"ds_read_u16_d16_hi v{t_+f}, v24 offset:{uoff+f*UDS+128*b_}") for f in range(4)],
                        [Ins(f"v_fmac_f32 v{S+4*b_+f}, v{dreg}, v{t_+f}") for f in range(4)]))
        seq=ops[0][0]+ops[1][0]
        for b_ in range(8):
            seq+=ops[b_][1]
            if b_+2<8: seq+=ops[b_+2][0]
        spread(post,seq,*dw)
        f1=[Ins(f"v_add_f32 v{S+4*b_+1+k}, v{S+4*b_+1+k}, v{Z1+4*b_+k}") for b_ in range(8) for k in range(3)]
        f2=[Ins(f"v_add_f32 v{x}, v{x}, v{Z2+4*b_+k}") for b_ in range(8) for k,x in enumerate((S+4*b_+2,S+4*b_+3,Z1+4*b_+3))]
        st1=[]; st2=[]
        for b_ in range(8):
            C=[Z1+4*b_+3,Z2+4*b_+3,Z3+4*b_+3]
            o=[Ins(f"v_add_f32 v{x}, v{x}, v{Z3+4*b_+k}") for k,x in enumerate((S+4*b_+3,C[0],C[1]))]
            for k in range(3):
                prev=f"v{C[k]-4}" if b_ else f"v{Z0}"
                o.append(Ins(f"v_cndmask_b32 v{Z1+4*b_+k}, v{C[k]}, {prev}, s[42:43]"))
            o+=[Ins(f"ds_bpermute_b32 v{Z2+4*b_+k}, v27, v{Z1+4*b_+k}") for k in range(3)]
            st1.append(o)
            o=[Ins(f"v_add_f32 v{S+4*b_+k}, v{S+4*b_+k}, v{Z2+4*b_+k}") for k in range(3)]
            o+=[Ins(f"v_cvt_pk_bf16_f32 v{Z3+4*b_}, v{S+4*b_}, v{S+4*b_+1}"),Ins(f"v_cvt_pk_bf16_f32 v{Z3+4*b_+1}, v{S+4*b_+2}, v{S+4*b_+3}"),
                Ins(f"ds_write_b64 v25, v[{Z3+4*b_}:{Z3+4*b_+1}] offset:{yoff+512*b_}")]
            st2.append(o)
        seq=st1[0]+st1[1]
        for b_ in range(8):
            seq+=st2[b_]
            if b_+2<8: seq+=st1[b_+2]
        return f1,f2,seq,st1
    f1,f2,seqA,_=finish(0,0,0,2,(P(2)+2,P(3)+30))
    spread(post,f1+f2,P(3)+6,P(3)+52)
    spread(post,seqA,P(3)+54,P(5)-1)
    f1,f2,seqB,st1=finish(5,4*UCS,4*KCS,3,(P(6)+6,P(7)-2))
    spread(post,f1,P(7)+6,P(7)+60); spread(post,f2,P(8)+5,P(8)+29)
    ncut=seqB.index(st1[4][0])
    spread(post,seqB[:ncut],P(8)+32,P(9)-1)
    tail=seqB[ncut:]
    ZX=SETS[4]
    post.setdefault(P(5)+4,[]).extend([Ins("s_mov_b64 exec, 1"),Ins(f"v_subrev_u32 v{a}, 16, v26"),Ins(f"ds_write_b128 v{a}, v[{Z0}:{Z0+3}]"),Ins("s_mov_b64 exec, -1")])
    spread(post,[Ins(f"ds_write_b128 v26, v[{ZX+4*b_}:{ZX+4*b_+3}] offset:{1024*b_}") for b_ in range(8)],P(5)+8,P(5)+40)
    pre[P(5)+70]=[BAR()]
    spread(post,[Ins(f"ds_read_b32 v{ZX+4*k+d_}, v28 offset:{d_*ZS+4*(3-d_)+1024*k}") for k in range(8) for d_ in range(4)],P(7)+2,P(7)+40)
    spread(post,[Ins(f"ds_read_u16_d16_hi v{UT+k}, v29 offset:{128*k}") for k in range(8)],P(7)+40,P(7)+50)
    xo=[]
    for k in range(8):
        z_=ZX+4*k
        xo+=[Ins(f"v_add_f32 v{z_}, v{z_}, v{z_+1}"),Ins(f"v_add_f32 v{z_+2}, v{z_+2}, v{z_+3}"),Ins(f"v_fmac_f32 v{z_}, v4, v{UT+k}"),
             Ins(f"v_add_f32 v{z_}, v{z_}, v{z_+2}"),Ins(f"v_cvt_pk_bf16_f32 v{z_}, v{z_}, v{z_}"),
             Ins(f"buffer_store_short v{z_}, v62, s[{sWS}:{sWS+3}], s{sXS} offen sc1",'xs'),Ins(f"s_add_u32 s{sXS}, s{sXS}, {4*18*4096}")]
    spread(post,xo,P(7)+58,P(8)+32)
    fa,fb=pg.flag_store(0x4000)
    post.setdefault(44,[]).append(fb); pre.setdefault(46,[]).append(WaitVM([('hst',3)])); post.setdefault(46,[]).append(fa)
    if opt.get('htouch',0): post.setdefault(47,[]).append(pg.touch(60,sWS,f"s{sHO+2}",''))
    fa,fb=pg.flag_store(0x8000)
    post.setdefault(P(3)+40,[]).append(fb); pre.setdefault(P(3)+42,[]).append(WaitVM([('hst',4)])); post.setdefault(P(3)+42,[]).append(fa)
    for k in range(0,648,8):
        if stamp(f'ssm_{k}'): pre.setdefault(k,[]).extend(stamp(f'ssm_{k}'))
    body=fill(mf,pre,post,[(0,P(2)+30,s.gS)])+stamp('ssm_end')+tail
    body.append(BAR())
    fr=[]; fs=[]
    for k in range(8):
        d_=TT+4*k
        fr+=[Ins(f"ds_read_b64_tr_b16 v[{d_}:{d_+1}], v30 offset:{128*k}"),Ins(f"ds_read_b64_tr_b16 v[{d_+2}:{d_+3}], v30 offset:{128*k+4*KCS}")]
        fs+=[Ins(f"buffer_store_dwordx4 v[{d_}:{d_+3}], v62, s[{sWS}:{sWS+3}], s{sG0} offen sc1",'fs'),Ins(f"s_add_u32 s{sG0}, s{sG0}, {18*4096}")]
    body+=fr+fs
    body+=[Ins(f"s_lshl_b32 s80, s{sQ}, 4"),Ins(f"s_add_u32 s80, s80, {F_S}"),Ins("s_cmp_eq_u32 s3, 0"),Ins(f"s_cselect_b32 s80, s80, {OOB}"),Ins("v_mov_b32 v31, s80"),
           WaitVM(['fs'],True),Ins("s_mov_b64 exec, 1"),Ins(f"buffer_store_dword v15, v31, s[{sWS}:{sWS+3}], 0 offen sc1",'flag'),Ins("s_mov_b64 exec, -1")]
    return pro+body
```

```python
from asmlib import *

class WaitVM:
    def __init__(self, tags, barrier=False): self.tags=set(tags); self.barrier=barrier; self.kind='pseudo'; self.cost=1+(1 if barrier else 0)

def resolve_waits(items):
    out=[]; issued=[]; done=0
    for it in items:
        if isinstance(it,WaitVM):
            last=-1
            for tg in it.tags:
                idx=[i for i,t in enumerate(issued) if t==tg]
                assert idx, f"wait for unissued tag {tg}"
                last=max(last,idx[-1])
            if last+1>done:
                n=len(issued)-(last+1)
                assert n<=63
                if out and out[-1].kind=='wait' and out[-1].vm is None:
                    out[-1]=Ins(f"s_waitcnt vmcnt({n}) lgkmcnt({out[-1].lgkm})")
                else: out.append(Ins(f"s_waitcnt vmcnt({n})"))
                done=last+1
            if it.barrier: out.append(Ins("s_barrier"))
        else:
            if it.kind in('vm_load','vm_dma','vm_store'): issued.append(it.tag)
            if it.kind=='wait' and it.vm is not None: done=max(done,len(issued)-it.vm)
            out.append(it)
    return out

class Glue:
    def __init__(self, l):
        self.l=l; self.kind='glue'; self.base='glue'; self.op='glue'; self.data=[]; self.tag=None
        self.rd=set().union(*[x.rd for x in l]); self.wr=set().union(*[x.wr for x in l]); self.cost=sum(cost(x) for x in l)
def glue_scc(l):
    out=[]; i=0
    while i<len(l):
        x=l[i]; j=i
        if 'scc' in x.wr:
            k=i+1
            while k<len(l):
                if 'scc' in l[k].rd: j=k
                if 'scc' in l[k].wr: break
                k+=1
        out.append(x if j==i else Glue(l[i:j+1])); i=j+1
    return out
VMCOST=2
DSW={'ds_write_b32':2,'ds_write_b64':3,'ds_write_b128':5,'ds_bpermute_b32':2}
def cost(i):
    if i.kind in('vm_load','vm_dma','vm_store'): return VMCOST
    if i.kind in('ds_write','ds_read') and i.op in DSW: return DSW[i.op]
    return i.cost

def fill(mfmas, pre, post, streams, cap=2, window=10, lat_trans=2):
    n=len(mfmas); out=[]
    fixed=[sum(cost(x) for x in post.get(i,[]))+sum(cost(x) for x in pre.get(i+1,[])) for i in range(n)]
    si=0; pend=[]; cur_end=None
    recent=[]
    def ready(k):
        o=pend[k]
        for e in pend[:k]:
            if (e.wr&(o.rd|o.wr)) or (e.rd&o.wr): return False
        for d,e in enumerate(reversed(recent[-lat_trans:])):
            if e.kind=='trans' and e.wr&o.rd: return False
        if o.kind in('valu','trans'):
            for e in recent[-2:]:
                if e.kind=='vm_store' and len(e.data)>=3 and set(e.data)&o.wr: return False
                if e.kind=='valu' and any(r[0]=='s' or r=='vcc' for r in e.wr&o.rd): return False
                if o.base.startswith('v_permlane') and e.kind in('valu','trans') and e.wr&o.rd: return False
        return True
    def emit(x):
        if x.kind=='glue':
            for y in x.l: emit(y)
            return
        out.append(x)
        if x.kind!='pseudo': recent.append(x)
    carry=0.0
    for i in range(n):
        for x in pre.get(i,[]): emit(x)
        emit(mfmas[i])
        for x in post.get(i,[]): emit(x)
        room=cap-fixed[i]
        while True:
            if not pend:
                if si<len(streams) and streams[si][0]<=i:
                    pend=list(streams[si][2]); cur_end=streams[si][1]; si+=1; carry=0.0
                else: break
            e=min(cur_end,n)
            must = cur_end<=n
            extra=0
            if must:
                rem=sum(cost(x) for x in pend)
                avail=max(room,0)+sum(max(cap-fixed[j],0) for j in range(i+1,e))
                gaps=max(e-i,1)
                if rem>avail:
                    carry+= (rem-avail)/gaps
                    extra=int(carry+0.5) if i<e-1 else rem
            room2=max(room,0)+extra
            used=0
            while pend:
                pick=None
                for k in range(min(window,len(pend))):
                    if (cost(pend[k])<=room2-used or (cost(pend[k])>cap and used==0 and room>=cap)) and ready(k): pick=k; break
                if pick is None:
                    if must and i>=e-1:
                        pick=next((k for k in range(min(window,len(pend))) if ready(k)),None)
                        if pick is None: emit(Ins("s_nop 0")); continue
                    else: break
                x=pend.pop(pick); emit(x); used+=cost(x)
            over=max(used-max(room,0),0); carry-=over
            room-=used
            if pend or room<=0: break
    while pend or si<len(streams):
        if not pend:
            pend=list(streams[si][2]); si+=1
        pick=next((k for k in range(min(window,len(pend))) if ready(k)),None)
        if pick is None: emit(Ins("s_nop 0")); continue
        emit(pend.pop(pick))
    return out

def gapstats(l):
    import collections
    h=collections.Counter(); c=None
    for x in l:
        if x.kind=='mfma':
            if c is not None: h[c]+=1
            c=0
        elif c is not None: c+=cost(x)
    tot=sum(max(k,2)*v for k,v in h.items())+2*sum(h.values())+c
    return dict(sorted(h.items())), c, tot*4

def auto_lgkm(items):
    out=[]; q=[]
    for it in items:
        if it.kind=='pseudo':
            if getattr(it,'drain',False) and q:
                out.append(Ins("s_waitcnt lgkmcnt(0)")); q=[]
            out.append(it); continue
        if it.kind=='wait' and it.lgkm is not None:
            while len(q)>it.lgkm: q.pop(0)
        touch=it.rd|it.wr; last=-1
        for k,o in enumerate(q):
            if set(o.dst)&touch: last=k
        if last>=0:
            n=min(len(q)-last-1,15)
            out.append(Ins(f"s_waitcnt lgkmcnt({n})")); q=q[len(q)-n:] if n else []
        if it.kind in('ds_read','ds_write'): q.append(it)
        out.append(it)
    return out

def auto_nop(items):
    import re
    l=list(items)
    for _ in range(400):
        errs=[e for e in check(l) if 'states after' in e]
        if not errs: return l
        m=re.match(r"\[(\d+)\].*needs (\d+) states.*has (\d+)",errs[0])
        idx,need,has=map(int,m.groups())
        l.insert(idx,Ins(f"s_nop {need-has-1}"))
    raise RuntimeError("auto_nop")

def spread(post, groups, g0, g1):
    n=len(groups)
    for i,g in enumerate(groups):
        post.setdefault(g0+i*(g1-g0)//n,[]).extend(g if isinstance(g,list) else [g])
def weave(mf, pre, post):
    out=[]
    for i,m in enumerate(mf):
        out+=pre.get(i,[]); out.append(m); out+=post.get(i,[])
    return out
```

```python
import sys, json
from pcommon import *
import pcommon, pp0, pg, pssm
NAME="recurrent_scan__ssm_conv_s4d__geglu_ffn__prompt_kernel"
def span(p,opt):
    if not opt.get('span'): return
    p('''
    s_waitcnt vmcnt(0)
    s_memrealtime s[90:91]
    s_waitcnt lgkmcnt(0)
    s_not_b32 s92, s86
    s_mov_b64 exec, 1
    v_mov_b32 v0, 0
    v_mov_b32 v1, s92
    v_mov_b32 v2, s90
    v_mov_b32 v3, s86
    global_atomic_umax v0, v1, s[88:89]
    global_atomic_umax v0, v2, s[88:89] offset:4
    global_atomic_umax v0, v3, s[88:89] offset:8
    ''')
def probe_pub(p,opt):
    if not opt.get('probe'): return
    p(f'''
    s_getreg_b32 s80, hwreg(HW_REG_XCC_ID, 0, 4)
    s_sub_u32 s80, s80, s2
    s_and_b32 s80, s80, 7
    v_mov_b32 v10, s80
    s_lshl_b32 s81, s2, 2
    s_add_u32 s81, s81, {WS_F+0x30000}
    v_mov_b32 v11, s81
    buffer_store_dword v10, v11, s[{sWS}:{sWS+3}], 0 offen sc1
    s_waitcnt vmcnt(0)
    ''')
def probe_chk(p,opt):
    if not opt.get('probe'): return
    p(f'''
    s_cmp_lg_u32 s2, 255
    s_cbranch_scc1 Lend
    s_mov_b32 s80, {WS_F+0x30000}
    v_lshrrev_b32 v1, 2, v1
    buffer_load_dword v2, v1, s[{sWS}:{sWS+3}], s80 offen sc1
    s_waitcnt vmcnt(0)
    v_readfirstlane_b32 s81, v2
    s_nop 1
    v_cmp_ne_u32 vcc, s81, v2
    s_cbranch_vccz Lend
    s_mov_b32 s80, 0
    Lprobe:
    s_sleep 64
    s_add_u32 s80, s80, 1
    s_cmp_lt_u32 s80, 60
    s_cbranch_scc1 Lprobe
    ''')
def amp(p,opt):
    if opt.get('amp') is None: return
    p(f'''
    s_cmp_lg_u32 s2, {opt['amp']}
    s_cbranch_scc1 Lend
    s_waitcnt vmcnt(0)
    s_memrealtime s[62:63]
    s_waitcnt lgkmcnt(0)
    s_sub_u32 s64, {'s62' if len(opt['map'])==1 else f's{ST0+2}'}, s{ST0}
    s_min_u32 s64, s64, 10000
    s_mul_i32 s64, s64, 10
    s_add_u32 s64, s64, s62
    Lamp:
    s_sleep 8
    s_memrealtime s[62:63]
    s_waitcnt lgkmcnt(0)
    s_sub_u32 s65, s62, s64
    s_cmp_lt_i32 s65, 0
    s_cbranch_scc1 Lamp
    ''')
def gen(opt):
    MODE['stamp']=opt.get('stamp'); MODE['map']=opt.get('map')
    cx=Ctx(); B=pp0.B
    p=Prog()
    p(f"s_cmp_ge_u32 s2, 256\ns_cbranch_scc1 Lend")
    p.ext(stamp('start'))
    if opt.get('span'): p(f"s_memrealtime s[86:87]\ns_load_dwordx2 s[88:89], s[0:1], {KA['dbg']}")
    p(f"""
    s_load_dwordx2 s[{sXP}:{sXP+1}], s[0:1], {KA['x']}
    s_load_dwordx8 s[60:67], s[0:1], {KA['logA']}
    s_load_dwordx2 s[68:69], s[0:1], {KA['logdt']}
    s_load_dwordx2 s[{sWS}:{sWS+1}], s[0:1], {KA['ws']}
    s_load_dwordx2 s[{sWg}:{sWg+1}], s[0:1], {KA['Wg']}
    s_load_dwordx2 s[{sS}:{sS+1}], s[0:1], {KA['Wu']}
    s_getpc_b64 s[82:83]
    Lpc:
    s_lshr_b32 s80, s2, 3
    s_mul_i32 s80, s80, CODE_LINES*128
    v_lshl_add_u32 v13, v0, 7, s80
    v_cmp_gt_u32 vcc, CODE_LINES, v0
    v_lshrrev_b32 v1, 6, v0
    s_and_saveexec_b64 s[80:81], vcc
    s_cbranch_execz Lnotouch
    global_load_dword v63, v13, s[82:83]
    Lnotouch:
    s_mov_b64 exec, -1
    v_readfirstlane_b32 s3, v1
    v_and_b32 v0, 63, v0
    v_mov_b32 v{B}, v0
    s_cmp_eq_u32 s3, 3
    s_cbranch_scc1 Lw3
    """)
    pp0.kgen_addr(p)
    p("s_waitcnt lgkmcnt(0)"); pp0.kgen_loads(p)
    p("s_branch Lcommon\nLw3:")
    pp0.ln_issue(p)
    p(f"s_mov_b32 s84, {OOB}\ns_mov_b32 s{sKO}, 0\ns_waitcnt lgkmcnt(0)"); pp0.ln_loads(p)
    p(f"""
    Lcommon:
    s_add_u32 s80, s{sWS}, {F_EPOCH}
    s_addc_u32 s81, s{sWS+1}, 0
    s_load_dword s{sTAG}, s[80:81], 0
    s_load_dwordx2 s[{sWd}:{sWd+1}], s[0:1], {KA['Wd']}
    s_load_dwordx2 s[{sOP}:{sOP+1}], s[0:1], {KA['out']}
    s_load_dwordx2 s[{sDP}:{sDP+1}], s[0:1], {KA['Dskip']}
    s_mov_b32 s{sWg+2}, {WB}
    s_mov_b32 s{sWg+3}, 0x20000
    s_sub_u32 s{sWu}, s{sS}, 1024
    s_subb_u32 s{sWu+1}, s{sS+1}, 0
    s_mov_b32 s{sWu+2}, {WB+1024}
    s_mov_b32 s{sWu+3}, 0x20000
    """)
    pg.setup_min(p)
    pp0.cold_addr(p)
    early=opt.get('early',0); cold=pp0.cold_part(opt)
    if early: p.ext(cold); cold=[]
    p(f"s_mov_b32 s{sWS+2}, {WSZ}\ns_mov_b32 s{sWS+3}, 0x20000")
    pg.setup_min2(p)
    p(f"""
    s_waitcnt lgkmcnt(0)
    s_mul_i32 s{sTAG}, s{sTAG}, 1664525
    s_add_u32 s{sTAG}, s{sTAG}, 1013904223
    v_mov_b32 v15, s{sTAG}
    s_cmp_lg_u32 s3, 3
    s_cbranch_scc1 Lkg
    """)
    pp0.service_addr(p)
    pp0.ln_compute(p,6*early,cold)
    p.ext(stamp('ln'))
    pp0.service(p,opt)
    p.ext(stamp('svc'))
    p(f"s_sub_u32 s80, s31, {3*128}")
    p.ext(resolve_waits([cx.poll_issue(13,12,80)]+cx.poll_check(13,12,80)))
    p("s_branch Ljoin\nLkg:\ns_cmp_ge_u32 s2, 192\ns_cbranch_scc1 Lnok")
    pp0.kgen(p,6*early,cold)
    p("s_branch Lkdone\nLnok:\ns_waitcnt vmcnt(0)"); p.ext(cold); p("s_waitcnt vmcnt(0)\nLkdone:")
    p.ext(stamp('ln')); p.ext(stamp('lnf')); p.ext(stamp('svc'))
    p("Ljoin:")
    p.ext(stamp('join'))
    errs=[]
    head_=[Ins('s_barrier')]+stamp('flag')
    n0=cx.n
    gA=pg.G1(opt); XR,SR=pg.add_g2(gA,cx)
    A=head_+gA.pro+fill(gA.mf,gA.pre,gA.post,gA.streams)+pg.final(cx,XR,SR,opt)
    A=auto_nop(resolve_waits(A))
    gB=pg.G1(opt); rest=pssm.add_ssm(gB,cx)
    Bm=fill(gB.mf,gB.pre,gB.post,gB.streams)
    Bs=auto_nop(resolve_waits(head_+gB.pro+Bm+auto_lgkm(rest)))
    def cut(l):
        k=0
        for i,x in enumerate(l):
            if x.kind=='mfma':
                if k==8*144: return i
                k+=1
    ca,cb=cut(A),cut(Bs)
    assert [x.text for x in A[:ca]]==[x.text for x in Bs[:cb]], "prefix differs"
    print("gaps common",gapstats(A[:ca]),"\n g2role",gapstats(A[ca:]),"\n ssmrole",gapstats(Bs[cb:]))
    p.ext(A[:ca]); p("s_cmp_ge_u32 s2, 192\ns_cbranch_scc1 Lrole_ssm")
    p.ext(A[ca:])
    amp(p,opt)
    if opt.get('amp') is not None: MODE['stamp']=None
    if MODE['stamp']: p("s_waitcnt vmcnt(0)");
    stamp_flush(p,0)
    if MODE['stamp']:
        p(f"{'s_memrealtime' if MODE['stamp']=='rt' else 's_memtime'} s[62:63]\ns_waitcnt lgkmcnt(0)\nv_mov_b32 v1, s62\nbuffer_store_dword v1, v0, s[{sWS}:{sWS+3}], s60 offen offset:32")
    span(p,opt)
    p("s_endpgm\nLrole_ssm:")
    p.ext(Bs[cb:])
    stamp_flush(p,1)
    if MODE['stamp']:
        p(f"{'s_memrealtime' if MODE['stamp']=='rt' else 's_memtime'} s[62:63]\ns_waitcnt lgkmcnt(0)\nv_mov_b32 v1, s62\nbuffer_store_dword v1, v0, s[{sWS}:{sWS+3}], s60 offen offset:32")
    span(p,opt); probe_chk(p,opt)
    p("Lend:\ns_endpgm")
    for nm,tk in (('g2/kg',('Lkg','Lnotouch')),('g2/kg0',('Lkg',)),('g2/w3',('Lw3','Lnotouch')),('ssm/nok',('Lkg','Lnok','Lrole_ssm','Lnotouch')),('ssm/w3',('Lw3','Lrole_ssm','Lnotouch'))):
        errs+=check(follow(p.l,tk),nm)
    for e in errs: print("HAZARD:",e)
    txt=head(NAME)+p.text()+"".join(cx.ool)+"Lcode_end:\n"
    return txt
def build_file(path,opt):
    from build import HEADER
    import subprocess
    txt=gen(opt)
    pre=HEADER+"; @launch grid=(256,1,1) block=(256,1,1) lds=163840\n"+'.amdgcn_target "amdgcn-amd-amdhsa--gfx950"\n'
    open('sz.s','w').write(pre+txt.replace("CODE_LINES*128","2560").replace("CODE_LINES","20")+kd(NAME,512,256))
    subprocess.run(["clang","-x","assembler","-target","amdgcn-amd-amdhsa","-mcpu=gfx950","-c","sz.s","-o","sz.o"],check=True)
    sym=subprocess.run(["llvm-readelf","-s","sz.o"],capture_output=True,text=True).stdout
    ad={l.split()[-1]:int(l.split()[1],16) for l in sym.split('\n') if l.strip().endswith(('Lpc','Lcode_end'))}
    size=ad['Lcode_end']-ad['Lpc']; n=size//128//32
    print("code bytes",size,"lines/wg",n)
    src=pre+txt.replace("CODE_LINES*128",str(n*128)).replace("CODE_LINES",str(n)).replace("Lcode_end:\n","")+kd(NAME,512,256)
    open(path,'w').write(src)
    import mbh
    co=mbh.build(path,NAME,14,lists=True)
    print("srdcheck:",mbh.cl.address_register_problem(co,NAME),"size",len(src))
if __name__=="__main__":
    build_file(sys.argv[1], json.loads(sys.argv[2]) if len(sys.argv)>2 else {})
```

```python
import re
import common
from common import *
from sched import *

WSZ = 0x4000000
WS_F   = 0x2400000
F_EPOCH= WS_F
F_LN   = WS_F+0x1000
F_HA   = WS_F+0x4000
F_HB   = F_HA+0x4000
F_K    = WS_F+0x10000
F_S    = WS_F+0x20000
F_P    = WS_F+0x24000
WS_SX  = WS_K+512*4096
F_R    = WS_F+0x30000
OOB    = 0x7ff00000
sXP,sOP=4,6
sWS,sWg,sWu,sS,sWd=8,12,16,20,24
sDP=28; sTAG=30
SK=32; sM0=50; sM0S=51; sXO=52; sHO=53; sGK=58; sKO=59
ST0=86
MODE={'stamp':None}
DEFMAP=['start','ln','flag','g1_0','g1_72','p2|g2_0','fin0|ssm_288','fin1|ssm_end']
def stamp(name):
    if not MODE['stamp']: return []
    j=[k for k,n in enumerate(MODE.get('map') or DEFMAP) if name in n.split('|')]
    if not j: return []
    j=j[0]; assert j<8
    op='s_memrealtime' if MODE['stamp']=='rt' else 's_memtime'
    return [Ins(f"{op} s[{ST0+2*j}:{ST0+2*j+1}]",'stamp')]
def stamp_flush(p, kidx):
    if not MODE['stamp']: return
    p(f"s_lshl_b32 s60, s2, 2\ns_add_u32 s60, s60, s3\ns_lshl_b32 s60, s60, 6\ns_add_u32 s60, s60, {0x3000000+kidx*65536}\nv_mov_b32 v0, 0\ns_waitcnt lgkmcnt(0)")
    for j in range(8):
        p(f"v_mov_b32 v1, s{ST0+2*j}\nbuffer_store_dword v1, v0, s[{sWS}:{sWS+3}], s60 offen offset:{4*j}")

def remap(l, vshift=0, smap={}):
    out=[]
    for i in l:
        t=i.text.split(';')[0]
        t=re.sub(r'\bv\[(\d+):(\d+)\]',lambda m:f"v[{int(m.group(1))+vshift}:{int(m.group(2))+vshift}]",t)
        t=re.sub(r'\bv(\d+)\b',lambda m:f"v{int(m.group(1))+vshift}",t)
        t=re.sub(r'\bs(\d+)\b',lambda m:f"s{smap.get(int(m.group(1)),int(m.group(1)))}",t)
        out.append(Ins(t,i.tag))
    return out

class Ctx:
    def __init__(self): self.ool=[]; self.n=0
    def poll_issue(self, areg, dreg, so, off=0):
        return Ins(f"buffer_load_dword v{dreg}, v{areg}, s[{sWS}:{sWS+3}], s{so} offen offset:{off} sc1",('poll',self.n+1))
    def poll_check(self, areg, dreg, so, off=0, vtag=15, pre=''):
        self.n+=1; k=self.n
        self.ool.append(f"""
Lspin{k}:
    s_mov_b32 s85, 0
Lspin{k}_l:
    s_sleep {MODE.get('slp',4)}
    {pre}
    buffer_load_dword v{dreg}, v{areg}, s[{sWS}:{sWS+3}], s{so} offen offset:{off} sc1
    s_add_u32 s85, s85, 1
    s_cmp_gt_u32 s85, 0x8000
    s_cbranch_scc1 Lspin{k}_r
    s_waitcnt vmcnt(0)
    v_cmp_ne_u32 vcc, v{dreg}, v{vtag}
    s_cbranch_vccnz Lspin{k}_l
Lspin{k}_r:
    s_waitcnt vmcnt(0)
    s_branch Lback{k}
""")
        return [WaitVM([('poll',k)]), Ins(f"v_cmp_ne_u32 vcc, v{dreg}, v{vtag}"), Ins(f"s_cbranch_vccnz Lspin{k}"), Ins(f"Lback{k}:")]
```

```python
from pcommon import *
K1C = -2*math.sqrt(2/math.pi)*LOG2E
GK0 = K1C; GK1 = K1C*0.044715
RING=16; NR=3; HP=40; ACC=64
F_HC=F_HA+0x8000
sM2=70; sWO=71; sH2=72; sPO=73; sFA=74; sFP=75; sFQ=76; sFS=77; sFX=78; sTW=79
sPS=[0,1,28]; sSO=29; sSX=59; sFR=30
R2BASE=8192
def xreg(b,t):
    i=4*b+t
    return f"a[{4*i}:{4*i+3}]" if i<64 else f"v[{224+4*(i-64)}:{224+4*(i-64)+3}]"
def hreg(b,t,lo=0,n=4):
    i=2*b+t
    return (f"a[{4*i+lo}:{4*i+lo+n-1}]" if i<64 else f"v[{224+4*(i-64)+lo}:{224+4*(i-64)+lo+n-1}]")

NWD=[27]
def setup_min(p):
    p(f"""
    s_and_b32 s80, s2, 7                     ; quad
    s_mul_i32 s80, s80, 1152
    s_lshr_b32 s81, s2, 6                    ; i
    s_lshl_b32 s81, s81, 8
    s_add_u32 s80, s80, s81
    s_mul_i32 s81, s3, {8*9216}
    s_add_u32 s80, s80, s81
    s_and_b32 s81, s3, 1
    s_lshl_b32 s81, s81, 1
    s_lshl_b32 s{sM0}, s3, 11
    v_lshrrev_b32 v10, 3, v0
    v_bfe_u32 v11, v0, 4, 1
    v_or_b32 v11, s81, v11
    v_bfe_u32 v12, v0, 1, 2
    v_xor_b32 v11, v11, v12
    v_lshlrev_b32 v1, 4, v0
    v_and_b32 v12, 16, v1
    v_mul_u32_u24 v2, 9216, v10
    v_lshl_add_u32 v2, v11, 5, v2
    v_add3_u32 v2, v2, v12, s80
    """)
def setup_min2(p):
    p(f"""
    s_bfe_u32 s80, s2, 0x30003               ; mt
    s_lshl_b32 s80, s80, 2
    s_add_u32 s80, s80, s3                   ; tok64
    s_lshl_b32 s31, s80, 7
    s_add_u32 s31, s31, {F_LN}
    s_mul_i32 s{sXO}, s80, {18*4096}
    v_lshrrev_b32 v10, 4, v0
    v_bfe_u32 v11, v0, 2, 2
    v_and_b32 v12, 3, v0
    v_lshlrev_b32 v12, 3, v12
    v_lshl_add_u32 v4, v10, 11, v12
    v_lshl_add_u32 v4, v11, 7, v4
    v_bfe_u32 v13, v0, 3, 2
    v_lshl_add_u32 v4, v13, 5, v4
    v_xor_b32 v5, 32, v4
    v_xor_b32 v6, 64, v4
    v_xor_b32 v7, 96, v4
    v_and_b32 v13, 0x1f0, v1
    """)
def setup_late(p):
    p(f"""
    s_and_b32 s60, s2, 7
    s_lshr_b32 s61, s2, 3                    ; idx
    s_lshr_b32 s67, s60, 1                   ; ks
    s_lshr_b32 s69, s2, 6                    ; i
    s_mul_i32 s63, s60, 1152
    s_lshl_b32 s64, s69, 8
    s_add_u32 s64, s64, s63
    s_and_b32 s65, s61, 7
    s_lshl_b32 s65, s65, 1
    s_lshr_b32 s66, s3, 1
    s_add_u32 s65, s65, s66
    s_mul_i32 s68, s65, 36
    v_add_u32 v57, s68, v0
    v_mul_u32_u24 v57, 9216, v57
    s_add_u32 s68, s64, 128
    v_add_u32 v57, s68, v57
    v_cmp_gt_u32 vcc, 36, v0
    v_mov_b32 v60, {OOB}
    s_lshl_b32 s68, s69, 4
    s_add_u32 s68, s68, s65
    s_mul_i32 s68, s68, 9
    v_cndmask_b32 v57, v60, v57, vcc
    v_add_u32 v59, s68, v0
    v_mul_u32_u24 v59, 9216, v59
    s_add_u32 s68, s63, 1024
    v_add_u32 v59, s68, v59
    v_cmp_gt_u32 vcc, 9, v0
    s_lshl_b32 s65, s69, 5
    s_add_u32 s65, s65, s63
    v_cndmask_b32 v59, v60, v59, vcc
    v_cmp_gt_u32 vcc, {NWD[0]}, v0
    v_lshlrev_b32 v58, 7, v0
    s_nop 0
    v_cndmask_b32 v58, v60, v58, vcc
    v_mov_b32 v192, {OOB}
    v_writelane_b32 v192, s84, 0
    s_and_b32 s68, s61, 7
    s_lshl_b32 s84, s60, 3
    s_add_u32 s84, s84, s68
    s_lshl_b32 s84, s84, 7
    s_add_u32 s84, s84, {F_K}
    s_lshl_b32 s83, s3, 10
    s_add_u32 s83, s83, {F_LN}
    s_bitcmp1_b32 s3, 0
    s_cselect_b32 s{sS}, s{sS}, s{sWg}
    s_cselect_b32 s{sS+1}, s{sS+1}, s{sWg+1}
    s_mov_b32 s{sS+2}, {WB}
    s_mov_b32 s{sS+3}, 0x20000
    """)
    for b in range(18): p(f"s_mov_b32 s{SK+b}, {b*32*9216}")
    n1=len(p.l)
    p(f"""
    s_add_u32 s65, s65, 1024
    s_mul_i32 s66, s66, {32*9216}
    s_add_u32 s65, s65, s66
    s_lshl_b32 s{sM0S}, s3, 10
    s_mov_b32 s{sGK}, {fhex(GK1)}
    v_mov_b32 v8, {fhex(GK0)}
    v_and_b32 v12, 16, v1
    v_bfe_u32 v10, v0, 1, 2
    v_bfe_u32 v11, v0, 3, 1
    v_lshl_add_u32 v10, v11, 3, v10
    v_bfe_u32 v11, v0, 4, 1
    v_lshl_add_u32 v10, v11, 2, v10
    v_bfe_u32 v11, v0, 5, 1
    v_lshl_add_u32 v10, v11, 4, v10
    v_mul_u32_u24 v3, 9216, v10
    v_add3_u32 v3, v3, v12, s65
    v_and_b32 v12, 3, v0
    v_lshlrev_b32 v12, 3, v12
    v_bfe_u32 v13, v0, 3, 2
    v_bfe_u32 v11, v0, 2, 3                  ; 4*(g&1)+e
    v_lshl_add_u32 v9, v11, 5, v12
    v_lshrrev_b32 v10, 5, v0
    v_lshl_add_u32 v9, v10, 9, v9
    v_mul_u32_u24 v10, 3072, v10
    v_lshl_add_u32 v10, v11, 7, v10
    v_lshl_add_u32 v10, v13, 5, v10
    v_add_u32 v56, v10, v12
    v_add_u32 v56, {R2BASE}, v56
    s_sub_u32 s62, s31, {F_LN}
    s_lshr_b32 s62, s62, 7                   ; tok64
    s_lshl_b32 s68, s62, 3
    s_add_u32 s68, s68, s60
    s_lshl_b32 s68, s68, 2
    s_add_u32 s68, s68, s69
    s_lshl_b32 s68, s68, 4
    s_add_u32 s68, s68, {F_HA}
    v_mov_b32 v14, {OOB}
    v_writelane_b32 v14, s68, 0
    s_mul_i32 s63, s62, 144
    s_mul_i32 s64, s60, 18
    s_add_u32 s63, s63, s64
    s_add_u32 s63, s63, {WS_H//4096}
    s_lshl_b32 s64, s69, 2
    s_add_u32 s64, s64, s63
    s_lshl_b32 s{sHO}, s64, 12
    s_add_u32 s{sHO+1}, s{sHO}, 4096
    s_add_u32 s{sHO+2}, s{sHO}, 8192
    s_add_u32 s{sHO+3}, s{sHO}, 12288
    s_lshr_b32 s64, s69, 1
    s_add_u32 s64, s64, s63
    s_add_u32 s64, s64, 16
    s_lshl_b32 s64, s64, 12
    s_and_b32 s65, s69, 1
    s_lshl_b32 s65, s65, 10
    s_add_u32 s{sHO+4}, s64, s65
    s_sub_u32 s{sWd}, s{sWd}, 2048
    s_subb_u32 s{sWd+1}, s{sWd+1}, 0
    s_mov_b32 s{sWd+2}, {WB+2048}
    s_mov_b32 s{sWd+3}, 0x20000
    s_lshl_b32 s63, s61, 2
    s_add_u32 s63, s63, s3
    s_mul_i32 s63, s63, 5184
    s_mul_i32 s{sWO}, s67, {1152*1152}
    s_add_u32 s63, s63, s{sWO}
    s_add_u32 s63, s63, 2048
    s_and_b32 s64, s2, 1
    s_mul_i32 s64, s64, {18*36864}
    s_add_u32 s{sTW}, s63, s64
    s_sub_u32 s63, s63, s64
    s_add_u32 s31, s63, {18*36864}
    s_lshl_b32 s82, s2, 2
    s_add_u32 s82, s82, s3
    s_mul_i32 s82, s82, 2304
    """)
    return n1
def setup_g2(p):
    p(f"""
    s_and_b32 s60, s2, 1
    s_lshl_b32 s60, s60, 3
    s_and_b32 s63, s61, 7
    s_add_u32 s60, s60, s63                  ; mt128
    s_lshr_b32 s61, s61, 3                   ; nt
    s_lshl_b32 s62, s60, 1
    s_lshr_b32 s63, s3, 1
    s_add_u32 s62, s62, s63                  ; tok64
    s_lshl_b32 s64, s62, 2
    s_add_u32 s64, s64, s67
    s_lshl_b32 s64, s64, 7
    s_add_u32 s{sFA}, s64, {F_HA}
    s_and_b32 s63, s3, 1
    s_lshl_b32 s63, s63, 11                  ; tb0*1024
    s_mul_i32 s64, s62, 144
    s_mul_i32 s65, s67, 36
    s_add_u32 s64, s64, s65
    s_lshl_b32 s64, s64, 12
    s_add_u32 s64, s64, s63
    s_add_u32 s{sH2}, s64, {WS_H}
    s_and_b32 s69, s61, 1
    s_mul_i32 s69, s69, 18
    s_and_b32 s64, s61, 2
    s_add_u32 s69, s69, s64
    s_lshl_b32 s64, s69, 12
    s_add_u32 s{sPO}, s64, s{sH2}
    s_mul_i32 s65, s61, 6
    s_lshl_b32 s64, s60, 2
    s_add_u32 s64, s64, s67
    s_lshl_b32 s64, s64, 2
    s_add_u32 s64, s64, s3
    s_lshl_b32 s64, s64, 7
    s_add_u32 s{sFR}, s64, {F_R}
    s_mul_i32 s64, s60, 3
    s_add_u32 s64, s64, s61
    s_lshl_b32 s64, s64, 9
    s_add_u32 s64, s64, {F_P}
    s_lshl_b32 s66, s3, 7
    s_lshl_b32 s68, s67, 4
    s_add_u32 s66, s66, s68
    s_add_u32 s{sFP}, s64, s66
    s_mov_b32 s77, s{sFP}
    s_lshl_b32 s66, s67, 7
    s_add_u32 s{sFQ}, s64, s66
    s_lshl_b32 s62, s60, 1
    s_lshr_b32 s63, s67, 1
    s_add_u32 s62, s62, s63
    s_mul_i32 s62, s62, 144
    s_add_u32 s62, s62, s69
    s_lshr_b32 s64, s3, 1                    ; h
    s_add_u32 s62, s62, s64
    s_lshl_b32 s62, s62, 2
    s_and_b32 s63, s67, 1
    s_lshl_b32 s63, s63, 1
    s_and_b32 s66, s3, 1
    s_add_u32 s63, s63, s66
    s_add_u32 s62, s62, s63
    s_lshl_b32 s62, s62, 10
    s_add_u32 s62, s62, {WS_H}
    s_add_u32 s63, s67, 1
    s_and_b32 s63, s63, 3
    s_mul_i32 s63, s63, {36*4096}
    s_add_u32 s{sPS[0]}, s62, s63
    s_add_u32 s63, s67, 2
    s_and_b32 s63, s63, 3
    s_mul_i32 s63, s63, {36*4096}
    s_add_u32 s{sPS[1]}, s62, s63
    s_add_u32 s63, s67, 3
    s_and_b32 s63, s63, 3
    s_mul_i32 s63, s63, {36*4096}
    s_add_u32 s{sPS[2]}, s62, s63
    s_lshl_b32 s62, s60, 2
    s_add_u32 s62, s62, s67
    s_lshl_b32 s62, s62, 1
    s_add_u32 s62, s62, s66                  ; T0/16
    s_add_u32 s65, s65, s64
    s_lshl_b32 s63, s62, 5
    s_lshl_b32 s64, s64, 17
    s_add_u32 s63, s63, s64
    s_add_u32 s{sSX}, s63, {WS_SX}
    s_lshl_b32 s63, s62, 8
    s_lshl_b32 s64, s65, 17
    s_add_u32 s63, s63, s64
    s_add_u32 s{sSO}, s63, {WS_K}
    s_mul_i32 s62, s62, {16*1152}
    s_lshl_b32 s65, s65, 6
    s_add_u32 s{sFX}, s62, s65
    s_mul_i32 s64, s61, 384
    s_mul_i32 s65, s3, {8*1152}
    s_add_u32 s64, s64, s65
    s_add_u32 s64, s64, 2048
    s_mul_i32 s{sM2}, s3, 3072
    s_add_u32 s{sM2}, s{sM2}, {R2BASE}
    v_lshrrev_b32 v10, 3, v0
    v_lshrrev_b32 v11, 4, v0
    v_bfe_u32 v12, v0, 1, 2
    v_xor_b32 v11, v11, v12
    v_and_b32 v12, 1, v0
    v_lshlrev_b32 v12, 4, v12
    v_mul_u32_u24 v10, 1152, v10
    v_lshl_add_u32 v10, v11, 5, v10
    v_add3_u32 v61, v10, v12, s64
    v_and_b32 v62, 0x70, v1
    """)

HST=['sc1']; PKOPT=['']
def gelu_ops(c, aset):
    ops=[]; base=ACC+32*aset
    for t in range(4):
        o=[]
        g=[base+4*t+j for j in range(4)]; u=[base+16+4*t+j for j in range(4)]
        tm=[10+(4*t+j)%4 for j in range(4)]
        PKM=PKOPT[0]
        pr=lambda r:f"v[{r}:{r+1}]"
        for j in (0,2):
            def two(key,pk,sc):
                if key in PKM: o.append(pk)
                else: o.extend([sc(j),sc(j+1)])
            two('a',f"v_pk_mul_f32 {pr(tm[j])}, {pr(g[j])}, {pr(g[j])}",lambda k:f"v_mul_f32 v{tm[k]}, v{g[k]}, v{g[k]}")
            two('b',f"v_pk_mul_f32 {pr(u[j])}, {pr(u[j])}, {pr(g[j])}",lambda k:f"v_mul_f32 v{u[k]}, v{u[k]}, v{g[k]}")
            two('c',f"v_pk_fma_f32 {pr(tm[j])}, {pr(tm[j])}, s[{sGK}:{sGK+1}], v[8:9] op_sel_hi:[1,0,0]",lambda k:f"v_fma_f32 v{tm[k]}, v{tm[k]}, s{sGK}, v8")
            two('d',f"v_pk_mul_f32 {pr(g[j])}, {pr(tm[j])}, {pr(g[j])}",lambda k:f"v_mul_f32 v{g[k]}, v{tm[k]}, v{g[k]}")
            o+=[f"v_exp_f32 v{g[j]}, v{g[j]}",f"v_exp_f32 v{g[j+1]}, v{g[j+1]}"]
        for j in (0,2):
            if 'e' in PKM: o.append(f"v_pk_add_f32 {pr(g[j])}, {pr(g[j])}, 1.0 op_sel_hi:[1,0]")
            else: o+=[f"v_add_f32 v{g[j]}, 1.0, v{g[j]}",f"v_add_f32 v{g[j+1]}, 1.0, v{g[j+1]}"]
            o+=[f"v_rcp_f32 v{g[j]}, v{g[j]}",f"v_rcp_f32 v{g[j+1]}, v{g[j+1]}"]
        for j in (0,2):
            if 'f' in PKM: o.append(f"v_pk_mul_f32 {pr(u[j])}, {pr(u[j])}, {pr(g[j])}")
            else: o+=[f"v_mul_f32 v{u[j]}, v{u[j]}, v{g[j]}",f"v_mul_f32 v{u[j+1]}, v{u[j+1]}, v{g[j+1]}"]
        d=HP+4*t+2*(c&1) if c<8 else HP+2*t
        o+=[f"v_cvt_pk_bf16_f32 v{d}, v{u[0]}, v{u[1]}", f"v_cvt_pk_bf16_f32 v{d+1}, v{u[2]}, v{u[3]}"]
        if c<8 and c&1: o.append(f"buffer_store_dwordx4 v[{HP+4*t}:{HP+4*t+3}], v1, s[{sWS}:{sWS+3}], s{sHO+c//2} offen offset:{1024*t} {HST[0]}")
        if c==8 and t&1: o.append(f"buffer_store_dwordx4 v[{HP+2*t-2}:{HP+2*t+1}], v1, s[{sWS}:{sWS+3}], s{sHO+4} offen offset:{1024*(t-1)} {HST[0]}")
        ops.append([Ins(x,('hst',c//2)) for x in o])
    return ops

def flag_store(off,so='0'): return Ins(f"buffer_store_dword v15, v14, s[{sWS}:{sWS+3}], {so} offen offset:{off} sc1",'flag')
def touch(areg, srd_, so, fl, off=0): return Ins(f"buffer_load_dword v63, v{areg}, s[{srd_}:{srd_+3}], {so} offen offset:{off} {fl}",'touch')

class G1:
    def __init__(s, opt, cx):
        s.opt=opt; HST[0]=opt.get('hst','sc1'); PKOPT[0]=opt.get('pk',''); TF=opt.get('tf',''); hwd=opt.get('hwd',(85,)); NWD[0]=41
        HU=[]
        M4=opt.get('m4',3); first={}
        for j in range(9):
            first[j]=len(HU)
            for c in range(4 if j<M4 else 3):
                for m in range(2): HU.append((c,m,j))
        def seg(c,j0,j1):
            for j in range(j0,j1):
                for m in range(2): HU.append((c,m,j))
        seg(3,M4,9); seg(4,0,3); seg(5,0,3); seg(6,0,3); seg(4,3,9); seg(7,0,3); seg(5,3,9); seg(6,3,9); seg(7,3,9); seg(8,0,9)
        s.HU=HU; nH=len(HU)
        aset={0:0,1:1,2:2,3:3,4:4,5:0,6:1,7:2,8:3}; s.aset=aset
        def slot_addr(c,m,j,k):
            b=2*j+k
            if c<4: return b*8192+m*1024
            if c<8: return ((18+b)%20)*8192+m*1024
            return ((36+j//2)%20)*8192+(j&1)*4096+k*2048+m*1024
        win={r:0 for r in (4,5,6,7,9)}
        def reads(h):
            c,m,j=HU[h]; r=9 if c==8 else 4+c%4; R=RING+8*(h%NR); o=[]
            w=slot_addr(c,m,j,0)>>16
            if w!=win[r]:
                o.append(Ins(f"v_add_u32 v{r}, {((w-win[r])*65536)&0xffffffff}, v{r}")); win[r]=w
            d2=256 if c==8 else 512
            for k in range(2):
                a=slot_addr(c,m,j,k)-w*65536
                o.append(Ins(f"ds_read_b64_tr_b16 v[{R+4*k}:{R+4*k+1}], v{r} offset:{a}",('r1',h)))
                o.append(Ins(f"ds_read_b64_tr_b16 v[{R+4*k+2}:{R+4*k+3}], v{r} offset:{a+d2}",('r1',h)))
            return o
        XF=opt.get('xf','sc1'); WF=opt.get('wf','')
        def xload(b):
            o=[[Ins(f"buffer_load_dwordx4 {xreg(b,t)}, v1, s[{sWS}:{sWS+3}], s{sXO} offen offset:{1024*t} {XF}",('x',b))] for t in range(4)]
            if b<17: o[3].append(Ins(f"s_add_u32 s{sXO}, s{sXO}, 4096"))
            return o
        def wload(grp,b):
            sl=(18*grp+b)%20
            return [[Ins(f"s_add_u32 m0, s{sM0}, {sl*8192}")],
                    [Ins(f"buffer_load_dwordx4 v2, s[{sWg}:{sWg+3}], s{SK+b} offen {WF} lds",('w',grp,b))],
                    [Ins(f"buffer_load_dwordx4 v2, s[{sWu}:{sWu+3}], s{SK+b} offen offset:1024 {WF} lds",('w',grp,b))]]
        def sload(j):
            return [[Ins(f"s_add_u32 m0, s{sM0S}, {slot_addr(8,0,j,0)}")],
                    [Ins(f"buffer_load_dwordx4 v3, s[{sS}:{sS+3}], s{SK+2*j} offen {WF} lds",('s',j))]]
        NX0=opt.get('nx0',2)
        s.x0=sum((g for b in range(NX0) for g in xload(b)),[])
        s.pro=reads(0)+reads(1)
        pre={}; post={}; mf=[]
        s.pre,s.post,s.mf=pre,post,mf
        for h,(c,m,j) in enumerate(HU):
            R=RING+8*(h%NR)
            for t in range(4):
                d=ACC+32*aset[c]+16*m+4*t
                for k in range(2):
                    cc="0" if (j==0 and k==0) else f"v[{d}:{d+3}]"
                    mf.append(Ins(f"v_mfma_f32_16x16x32_bf16 v[{d}:{d+3}], v[{R+4*k}:{R+4*k+3}], {xreg(2*j+k,t)}, {cc}"))
            pre.setdefault(8*h,[]).append(WaitLG([('r1',h)]))
            if h+2<nH:
                r=reads(h+2)
                if len(r)==5: pre[8*h].insert(0,r.pop(0))
                post.setdefault(8*h,[]).extend(r[:2]); post.setdefault(8*h+opt.get('rp1',4),[]).extend(r[2:])
        for j in range(1,9): pre[8*first[j]].append(WaitVM([('x',2*j),('x',2*j+1)]))
        assert NX0==2
        XE=opt.get('xend',38)
        xs=[xload(b) for b in range(NX0,18)]
        kp=opt.get('p8at',8)
        s.place(sum(xs[:kp],[])+wload(0,16)+xs[kp]+wload(0,17)+[[Ins("v_add_u32 v2, 128, v2")]]+sum(xs[kp+1:],[]),0,XE)
        ht=opt.get('ht',XE-1)
        post.setdefault(8*ht+7,[]).append(touch(57,sS,0,opt.get('tf1','')))
        if opt.get('ht2') is not None: post.setdefault(8*opt['ht2']+7,[]).append(touch(57,sS,0,'sc1'))
        post.setdefault(8*(ht-1)+7,[]).append(Ins(f"buffer_store_dword v15, v192, s[{sWS}:{sWS+3}], 0 offen sc1",'flag'))
        b1=opt.get('b1',first[8]-2); assert b1<=first[8]-2 and b1>=8*M4 and M4>=2
        pre[8*b1].append(WaitVM([('w',0,16),('w',0,17)],True))
        n1=min(2+2*M4,opt.get('n1',12))
        s.place(sum((wload(1,b) for b in range(n1)),[]),max(b1,opt.get('hd',54)),opt.get('hd1',64))
        pre[8*70].append(WaitVM([('w',1,b) for b in range(6)],True))
        he=opt.get('he',78)
        s.place(sum((wload(1,b) for b in range(n1,18)),[]),70,he)
        if opt.get('b94'):
            pre[8*88].append(WaitVM([('w',1,b) for b in range(12)],True)); pre[8*94].append(WaitVM([('w',1,b) for b in range(18)],True))
        else: pre[8*88].append(WaitVM([('w',1,b) for b in range(18)],True))
        s.place([[Ins("v_min_u32 v2, 8, v0"),Ins("v_lshlrev_b32 v2, 3, v2")],[cx.poll_issue(1,57,83)]],he,he+1)
        c1=cx.poll_check(1,57,83)
        s.place([[cx.poll_issue(2,2,84)]],he+1,he+2)
        c2=cx.poll_check(2,2,84,pre="v_min_u32 v2, 8, v0\n    v_lshlrev_b32 v2, 3, v2")
        pre[8*opt.get('hchk',100)]+=c1+c2
        post.setdefault(8*(hwd[0]-1)+5,[]).append(touch(59,sS,0,TF))
        for hh,so in zip(hwd,(sTW,31)): post.setdefault(8*hh+5,[]).append(touch(58,sWd,f"s{so}",TF))
        hx=opt.get('hx',0)
        if hx:
            s.place([[Ins("v_min_u32 v2, 17, v0"),Ins("v_lshl_add_u32 v2, v2, 7, s82")]],hx-1,hx)
            post.setdefault(8*hx+4,[]).append(Ins(f"global_load_dword v63, v2, s[{sXP}:{sXP+1}]",'touch'))
        if opt.get('prealloc',1): post.setdefault(8*hwd[0]+1,[]).append(Ins(f"buffer_store_dword v15, v60, s[{sWS}:{sWS+3}], 0 offen offset:12 sc1",'flag'))
        pre[8*108].append(WaitVM([],True))
        s0,s1=opt.get('srange',(112,134))
        s.place(sum((sload(j) for j in range(9)),[]),s0,s1); assert s0+(s1-s0)*4//9>=108
        hf=opt.get('hfa',122)
        pre[8*hf]+=[WaitVM([('hst',1)])]; post.setdefault(8*hf+1,[]).append(flag_store(0))
        if opt.get('htouch',0): post.setdefault(8*hf+4,[]).append(touch(60,sWS,f"s{sHO}",''))
        pre[8*142].append(WaitVM([('s',j) for j in range(9)],True))
        for h in range(nH): pre[8*h]+=stamp(f'g1_{h}')
        G=lambda c:gelu_ops(c,aset[c])
        import pssm
        q=Prog(); n1_=setup_late(q); setup_g2(q); sel=pssm.setup_ssm_sel()
        s.streams=[(0,8*opt.get('su1',14),glue_scc(q.l[:n1_])),(0,8*(first[8]+2),glue_scc(q.l[n1_:]+sel+[Ins("v_mov_b32 v60, v14"),Ins(f"v_writelane_b32 v60, s{sFR}, 1"),Ins("v_writelane_b32 v60, s77, 2")]))]
        g0=8*(first[8]+2); Lg=(8*162-g0)/8; wb=[int(g0+c*Lg) for c in range(9)]
        last={c:max(h for h,x in enumerate(HU) if x[0]==c) for c in range(9)}; fst={c:min(h for h,x in enumerate(HU) if x[0]==c) for c in range(9)}
        for c in range(8):
            assert wb[c]>=8*(last[c]+1),(c,wb[c],last[c])
            if c+5<9: assert wb[c+1]<=8*fst[c+5],(c,wb[c+1],fst[c+5])
            ops=sum(G(c),[])
            if c in opt.get('stlate',(1,)):
                stv=[x for x in ops if x.kind=='vm_store']; ops=[x for x in ops if x.kind!='vm_store']; n_=len(ops)
                for t in (3,2,1,0): ops.insert(n_-(3-t)*opt.get('stsp',11),stv[t])
            a_,e_=wb[c]+(1 if wb[c]==8*(last[c]+1) else 0),wb[c+1]
            if a_<8*144<e_:
                k=int(len(ops)*(8*144-a_)/(e_-a_)); s.streams+=[(a_,8*144,ops[:k]),(8*144,e_,ops[k:])]
            else: s.streams.append((a_,e_,ops))
        s.gS=sum(G(8),[])
    def place(s,groups,h0,h1,offs=(1,2,3,4,5,6)):
        gaps=[8*h+o for h in range(h0,h1) for o in offs if not (s.post.get(8*h+o))]
        assert len(groups)<=len(gaps),(len(groups),len(gaps))
        for i,g in enumerate(groups): s.post.setdefault(gaps[i*len(gaps)//len(groups)],[]).extend(g)

SEQ=[18*Q+4*i for Q in range(2) for i in range(4)]+[18*Q+4*i+2 for Q in range(2) for i in range(4)]+[16,34]
RG=[192,208,16]; AW=[[4,5,6,7],[32,33,34,35],[36,37,38,39]]; PK=40
def add_g2(s, cx):
    opt=s.opt; pre,post,mf=s.pre,s.post,s.mf; H0=162
    NSEC=opt.get('nsec',4)
    HU=[(j,cp) for j in range(18-NSEC) for cp in range(6)]+[(j,cp) for cp in range(6) for j in range(18-NSEC,18)]
    nH=len(HU); blk=lambda n:SEQ[n//2]+(n&1)
    def reads(h):
        j,cp=HU[h]; R=RG[h%3]; o=[]
        for x in range(2):
            ct=2*cp+x
            for k in range(2):
                sl=(2*j+k)%12; r=AW[sl//4][ct&3]; a=(sl%4)*12288+(ct>>2)*1024; d=R+8*x+4*k
                o.append(Ins(f"ds_read_b64_tr_b16 v[{d}:{d+1}], v{r} offset:{a}",('r2',h)))
                o.append(Ins(f"ds_read_b64_tr_b16 v[{d+2}:{d+3}], v{r} offset:{a+6144}",('r2',h)))
        return o
    HF=opt.get('hf','sc1'); WF=opt.get('wf2','')
    DV=[[61,2,3],[58,59,60]]; HV=[1,63]
    def wl(n):
        sal=[Ins(f"s_add_u32 m0, s{sM2}, {(n%12)*12288}")]+([Ins(f"s_add_u32 s81, s{sWO}, {blk(n)*32*1152}")] if n%2==0 else [])
        return sal,[Ins(f"buffer_load_dwordx4 v{DV[n&1][jc]}, s[{sWd}:{sWd+3}], s81 offen offset:{1024*jc} {WF} lds",('w2',n)) for jc in range(3)]
    def hl(n,part=None):
        sal=[Ins(f"s_add_u32 s82, s{sH2}, {blk(n)*4096}")] if (n%2==0 and not part) else []
        if n<32: return sal,[Ins(f"buffer_load_dwordx4 {hreg(n,t)}, v{HV[n&1]}, s[{sWS}:{sWS+3}], s82 offen offset:{1024*t} {HF}",('h2',n)) for t in range(2)]
        return sal,[Ins(f"buffer_load_dwordx2 {hreg(n,t,2*part,2)}, v{HV[n&1]}, s[{sWS}:{sWS+3}], s82 offen offset:{1024*part+8*t}",('h2',n)) for t in range(2)]
    grp=lambda x:([x[0]] if x[0] else [])+[[y] for y in x[1]]
    G=lambda h:8*(H0+h)
    RP=opt.get('rp',(0,2,4,6)); VP=[g for g in range(7) if g not in RP]
    for h,(j,cp) in enumerate(HU):
        R=RG[h%3]
        for x in range(2):
            for t in range(2):
                d=ACC+8*(2*cp+x)+4*t
                for k in range(2):
                    cc="0" if (j==0 and k==0) else f"v[{d}:{d+3}]"
                    mf.append(Ins(f"v_mfma_f32_16x16x32_bf16 v[{d}:{d+3}], v[{R+8*x+4*k}:{R+8*x+4*k+3}], {hreg(2*j+k,t)}, {cc}"))
        pre.setdefault(G(h),[]).append(WaitLG([('r2',h)]))
    for h in range(-2,nH-2):
        r=reads(h+2)
        for gi,a in zip(RP,(0,2,4,6)): post.setdefault(G(h)+gi,[]).extend(r[a:a+2])
    tr=[[cx.poll_issue(62,57,sFA)],[Ins("v_subrev_u32 v2, 896, v61"),Ins("v_subrev_u32 v3, 1792, v61")],
        [Ins(f"v_add_u32 v58, {36864}, v61"),Ins(f"v_add_u32 v59, {36864-896}, v61")],[Ins(f"v_add_u32 v60, {36864-1792}, v61"),Ins("v_add_u32 v63, 4096, v1")]]
    s.place(tr,144,145)
    hA=opt.get('hA',149)
    pre[8*hA]+=cx.poll_check(62,57,sFA)
    NW=opt.get('npw',6); NHP=opt.get('nph',8)
    s.place(sum((grp(wl(n)) for n in range(4)),[])+[[Ins("v_mov_b32 v4, v56"),Ins("v_xor_b32 v5, 32, v56")],[Ins("v_xor_b32 v6, 64, v56"),Ins("v_xor_b32 v7, 96, v56")]],145,hA)
    seq=sum((grp(hl(n)) for n in range(4)),[])
    for n in range(4,max(NW,NHP)):
        if n<NW: seq+=grp(wl(n))
        if n<NHP: seq+=grp(hl(n))
    s.place(seq,hA,160); assert NHP<=16 and NW<=10 and NW%2==0 and NHP%2==0
    pre[G(-2)].append(WaitVM([(k,n) for n in range(4) for k in('w2','h2')],True))
    aw=[Ins(f"v_add_u32 v{AW[w][c]}, {49152*w}, v{AW[0][c]}") for w in (1,2) for c in range(4)]
    bars={10:range(4,6),16:range(6,8)} if NW<8 else {10:range(4,8)}
    for e in range(2,9): bars[12*e-2]=range(4*e,4*e+4)
    if NSEC==4: bars.pop(94); bars[82]=range(28,36)
    assert NSEC in (2,4)
    need={n:h for h,bl in bars.items() for n in bl}; needH=dict(need)
    if NSEC==4:
        for n in range(32,36): needH[n]=86
        pre[G(86)].append(WaitVM([('h2',n) for n in range(32,36)]))
    for h,bl in bars.items(): pre[G(h)].append(WaitVM([('w2',n) for n in bl]+[('h2',n) for n in bl if needH[n]==h],True))
    hB=opt.get('hB',30); hC=opt.get('hC',76 if NSEC==2 else 71)
    Wq=[]; Hq=[]
    for n in range(NW,36):
        ew=2 if n>=10 else 0
        if n>=12:
            last=6*((n-12)//2)+5
            ew=min(max(q, last+opt.get('warm',2) if q<last else q) for q in bars if q>=last-1)
        Wq.append((ew,need[n],12,wl(n)))
    for n in range(NHP,36):
        eh=0 if n<16 else (hB if n<32 else hC)
        Hq+=[(eh,needH[n],8,hl(n))] if n<32 else [(eh,needH[n],4,hl(n,0)),(eh,needH[n],4,hl(n,1))]
    rate=opt.get('rate2',7.3); credit=opt.get('credit2',6); log=[]
    for h in range(0,100):
        credit=min(credit+rate,opt.get('cmax2',20))
        cand=[q for q in (Wq,Hq) if q and q[0][0]<=h]
        if not cand: continue
        q=min(cand,key=lambda q:(q[0][1],q is Hq))
        if credit<q[0][2]: continue
        e,nd,by,(sal,vm)=q.pop(0); credit-=by
        assert h<=nd-opt.get('margin2',4),(h,nd,vm[0].tag)
        for k,x in enumerate(sal): post.setdefault(G(h-1)+7 if (k==0 or post.get(G(h-1)+VP[2])) else G(h-1)+VP[2],[]).append(x)
        for k,x in enumerate(vm): post.setdefault(G(h)+(VP[k] if len(vm)==3 else VP[2*k]),[]).append(x)
        log.append((h,vm[0].tag[0][0]+str(vm[0].tag[1]),nd-h)); hlast=h
    assert not Wq and not Hq
    if opt.get('log'): print(log)
    s.streams.append((G(0),G(8),aw))
    gE=opt.get('gE',40)
    s.streams.append((G(0)+4,G(gE),s.gS))
    for (hh,tag,off,to) in ((opt.get('hfb',9),('hst',3),4,None),(gE+9,('hst',4),8,None)):
        pre[G(hh)]+=[WaitVM([tag])]; post.setdefault(G(hh)+7,[]).append(flag_store(off))
        if to and opt.get('htouch',0): post.setdefault(G(hh+1)+7,[]).append(touch(60,sWS,f"s{to}",''))
    for hh,off in ((hB,4),(hC,8)):
        post.setdefault(G(hh-opt.get('plead',7))+7,[]).append(cx.poll_issue(62,57,sFA,off))
        pre[G(hh)]+=cx.poll_check(62,57,sFA,off)
    for h in range(nH): pre[G(h)]+=stamp(f'g2_{h}')
    OWN=R2BASE
    su=[f"v_bfe_u32 v10, v1, 8, 1",f"v_bfe_u32 v11, v1, 9, 1","v_lshl_add_u32 v10, v10, 1, v11","v_and_b32 v11, 0xf0, v1","v_lshl_add_u32 v58, v10, 8, v11",
        "s_mul_i32 s83, s3, 12288",f"s_add_u32 s83, s83, {OWN}","v_add_u32 v59, s83, v58",
        "v_mul_u32_u24 v60, 72, v11","v_lshrrev_b32 v10, 8, v1","v_lshl_add_u32 v60, v10, 4, v60",
        "s_bfe_u32 s83, s2, 0x20001","s_mul_i32 s84, s83, 12288","s_lshl_b32 s83, s3, 10","s_add_u32 s84, s84, s83",f"s_add_u32 s84, s84, {OWN}","v_add_u32 v9, s84, v1",
        f"s_mov_b32 s{sWg}, s{sXP}",f"s_mov_b32 s{sWg+1}, s{sXP+1}",f"s_mov_b32 s{sWg+2}, {XB}",
        f"s_mov_b32 s{sWu}, s{sOP}",f"s_mov_b32 s{sWu+1}, s{sOP+1}",f"s_mov_b32 s{sWu+2}, {XB}",
        "s_bfe_u32 s83, s2, 0x20001","s_cmp_eq_u32 s83, s3",f"s_cselect_b32 s84, {OOB}, 0","v_or_b32 v58, s84, v58"]
    su+=[f"s_mov_b32 s36, {F_S}","v_and_b32 v56, 3, v0","v_max_u32 v56, 1, v56","v_add_u32 v56, s83, v56","v_and_b32 v56, 3, v56","v_lshlrev_b32 v56, 4, v56","v_lshlrev_b32 v8, 7, v0"]
    hR=opt.get('hR',59); hRc=opt.get('hRc',hC+7); assert hR>58 and hR>gE+10
    post.setdefault(G(hR-1)+7,[]).extend([Ins("v_writelane_b32 v14, 0, 0"),Ins("s_lshr_b32 s80, s2, 6")])
    post.setdefault(G(hR)+7,[]).extend([Ins("s_lshl_b32 s80, s80, 4"),Ins(f"s_add_u32 s80, s80, s{sFR}")])
    if not opt.get('noR'): post.setdefault(G(hR+1)+7,[]).append(flag_store(0,'s80'))
    post.setdefault(G(hRc-6)+7,[]).append(Ins("v_min_u32 v62, 32, v62")); assert hRc-6>hC
    if not opt.get('noR'):
        post.setdefault(G(hRc-5)+7,[]).append(cx.poll_issue(62,57,sFR))
        pre[G(94 if NSEC==2 else 82)]+=cx.poll_check(62,57,sFR)
    hxl=6*(18-NSEC)+NSEC-1
    XR=160; XU=224
    for k in range(3): post.setdefault(G(hxl)+VP[k],[]).append(Ins(f"buffer_load_dwordx4 v[{XR+4*k}:{XR+4*k+3}], v60, s[{sWg}:{sWg+3}], s{sFX} offen offset:{128*k}",'xl'))
    su+=["v_lshrrev_b32 v13, 3, v11","v_lshl_add_u32 v13, v10, 15, v13","v_lshl_add_u32 v11, v10, 15, v11","s_mov_b32 s38, 0x00003f80","s_mov_b32 s39, 0x3f800000",
         f"s_mov_b32 s40, {fhex(-LOG2E)}",f"s_mov_b32 s41, {fhex(-LOG2E)}",
         f"s_mov_b32 s84, {F_EPOCH}","s_cmp_eq_u32 s2, 0",f"s_cselect_b32 s84, s84, {OOB}","v_mov_b32 v12, s84"]
    s.streams.append((G(hlast+1),G(hxl),glue_scc([Ins(x) for x in su])))
    for cp in range(6):
        ops=[]
        for t in range(2):
            a0=ACC+8*(2*cp)+4*t; a1=a0+8; d=PK+4*((2*cp+t)%4)
            ops+=[f"v_cvt_pk_bf16_f32 v{d}, v{a0}, v{a0+1}",f"v_cvt_pk_bf16_f32 v{d+2}, v{a1}, v{a1+1}",
                  f"v_cvt_pk_bf16_f32 v{d+1}, v{a0+2}, v{a0+3}",f"v_cvt_pk_bf16_f32 v{d+3}, v{a1+2}, v{a1+3}"]
        for t in range(2):
            d=PK+4*((2*cp+t)%4)
            ops+=[f"v_permlane16_swap_b32 v{d}, v{d+2}",f"v_permlane16_swap_b32 v{d+1}, v{d+3}",
                  f"buffer_store_dwordx4 v[{d}:{d+3}], v58, s[{sWS}:{sWS+3}], s{sPO} offen offset:{1024*t} {opt.get('pf','sc1')}",
                  f"ds_write_b128 v59, v[{d}:{d+3}] offset:{2048*cp+1024*t}"]
        if cp<5: ops.append(f"s_add_u32 s{sPO}, s{sPO}, {4096*(3 if cp&1 else 1)}")
        hd=6*(18-NSEC)+NSEC*(cp+1)
        s.streams.append((G(hd)+3, 99999, [Ins(o,('pst',cp//2)) for o in ops]))
    if NSEC==4:
        for k,hh in enumerate(opt.get('hpf',(99,))):
            pre[G(hh)]+=[WaitVM([('pst',k)])]; post.setdefault(G(hh)+VP[0],[]).append(flag_store(4*k,f"s{sFP}"))
    return XR,NSEC

def final(cx, XR, NSEC, opt):
    o=[]; W=f"s[{sWS}:{sWS+3}]"
    def I(t,tag=None):
        q=Prog(); q(t,tag); o.extend(q.l)
    o+=stamp('fin0')
    P=64; OWN=100; SR=112; A=128; SU=172; XU=196; E=224
    o.append(cx.poll_issue(8,57,36)); cS=cx.poll_check(8,57,36)
    cP=[]
    for k in range(2):
        o.append(cx.poll_issue(56,3+k,sFQ,4*k)); cP.append(cx.poll_check(56,3+k,sFQ,4*k))
    assert NSEC==4
    I("s_waitcnt lgkmcnt(0)\ns_barrier")
    for k in range(3): I(f"ds_read_b128 v[{OWN+4*k}:{OWN+4*k+3}], v9 offset:{4096*k}")
    for e in range(8): I(f"v_mov_b32 v{SU+16+e}, 0")
    o.append(WaitVM(['xl']))
    for d in range(12): I(f"v_lshlrev_b32 v{XU+2*d}, 16, v{XR+d}\nv_and_b32 v{XU+2*d+1}, 0xffff0000, v{XR+d}")
    for d in range(12): I(f"v_lshlrev_b32 v{A+2*d}, 16, v{OWN+d}\nv_and_b32 v{A+2*d+1}, 0xffff0000, v{OWN+d}")
    o.append(WaitVM([('pst',2)]))
    o.append(flag_store(4,f"s{sFP}"))
    o+=stamp('fin05')
    o+=[cP[1][0]]+cS[1:]
    for k in range(2): I(f"buffer_load_dwordx4 v[{SR+4*k}:{SR+4*k+3}], v11, {W}, s{sSO} offen sc1\ns_add_u32 s{sSO}, s{sSO}, 262144",'sl')
    I("s_cmp_ge_u32 s2, 128\ns_cbranch_scc1 Lfin_x")
    I(f"buffer_load_dwordx4 v[{SR+8}:{SR+11}], v11, {W}, s{sSO} offen sc1",'sl')
    I("s_branch Lfin_y\nLfin_x:")
    for e in range(8): I(f"buffer_load_short_d16_hi v{SU+16+e}, v13, {W}, s{sSX} offen sc1\ns_add_u32 s{sSX}, s{sSX}, 4096",'sl')
    I("Lfin_y:")
    def pl(k):
        for i in range(3):
            I(f"buffer_load_dwordx4 v[{P+12*k+4*i}:{P+12*k+4*i+3}], v1, {W}, s{sPS[i]} offen sc1",('pl',k))
            if k<2: I(f"s_add_u32 s{sPS[i]}, s{sPS[i]}, 16384")
    def math(k):
        o.append(WaitVM([('pl',k)])); a=A+8*k
        for i in range(3):
            for d in range(4): I(f"v_dot2c_f32_bf16 v{a+2*d}, s38, v{P+12*k+4*i+d}\nv_dot2c_f32_bf16 v{a+2*d+1}, s39, v{P+12*k+4*i+d}")
        for d in range(4): I(f"v_pk_mul_f32 v[{E+2*d}:{E+2*d+1}], v[{a+2*d}:{a+2*d+1}], s[40:41]")
        for e in range(8): I(f"v_exp_f32 v{E+e}, v{E+e}")
        for d in range(4): I(f"v_pk_mul_f32 v[{a+2*d}:{a+2*d+1}], v[{a+2*d}:{a+2*d+1}], v[{SU+8*k+2*d}:{SU+8*k+2*d+1}]")
        for d in range(4): I(f"v_pk_add_f32 v[{E+2*d}:{E+2*d+1}], v[{E+2*d}:{E+2*d+1}], 1.0 op_sel_hi:[1,0]")
        for e in range(8): I(f"v_rcp_f32 v{E+e}, v{E+e}")
        for d in range(4): I(f"v_pk_fma_f32 v[{a+2*d}:{a+2*d+1}], v[{a+2*d}:{a+2*d+1}], v[{E+2*d}:{E+2*d+1}], v[{XU+8*k+2*d}:{XU+8*k+2*d+1}]")
        for d in range(4): I(f"v_cvt_pk_bf16_f32 v{XR+4*k+d}, v{a+2*d}, v{a+2*d+1}")
        I(f"buffer_store_dwordx4 v[{XR+4*k}:{XR+4*k+3}], v60, s[{sWu}:{sWu+3}], s{sFX} offen offset:{128*k} {opt.get('outf','')}",'out')
    o+=cP[0][1:]; pl(0)
    I("v_cmp_ne_u32 s[42:43], v4, v15\ns_cmp_lg_u64 s[42:43], 0\ns_cbranch_scc1 Lfin_slow")
    def sunp(lab):
        o.append(WaitVM(['sl']))
        for d in range(8): I(f"v_lshlrev_b32 v{SU+2*d}, 16, v{SR+d}\nv_and_b32 v{SU+2*d+1}, 0xffff0000, v{SR+d}")
        I(f"s_cmp_ge_u32 s2, 128\ns_cbranch_scc1 {lab}")
        for d in range(8,12): I(f"v_lshlrev_b32 v{SU+2*d}, 16, v{SR+d}\nv_and_b32 v{SU+2*d+1}, 0xffff0000, v{SR+d}")
        I(f"{lab}:")
    common=list(o); del o[:]
    pl(1); pl(2); o+=stamp('fin1'); sunp("Lfin_z"); math(0); math(1); math(2)
    fast=list(o); del o[:]
    sunp("Lfin_z2"); o.append(WaitVM([('pl',0)]))
    o.append(Ins(f"buffer_load_dword v4, v56, {W}, s{sFQ} offen offset:4 sc1",'poll2')); math(0)
    o.append(WaitVM(['poll2'])); o+=cP[1][1:]; o+=stamp('fin1'); pl(1); pl(2); math(1); math(2)
    slow=list(o)
    ep=flag_store(0); ep=[Ins(ep.text.replace("v14","v12"),'flag')]
    return common,fast+ep,slow+ep
```

```python
from pcommon import *
ROWB=544
KLDS=131072; CNT=163824
LNR=[0]
B=64

def ln_issue(p):
    p(f"""
    v_and_b32 v{B+2}, 7, v0                  ; n8
    v_lshrrev_b32 v{B+3}, 3, v0              ; j
    v_mul_u32_u24 v{B+4}, 1152, v{B+2}
    v_lshl_add_u32 v{B+4}, v{B+3}, 4, v{B+4}
    s_mul_i32 s80, s2, {8*1152}
    v_add_u32 v{B+4}, s80, v{B+4}
    """)
def ln_loads(p,opt):
    for k in range(9):
        p(f"global_load_dwordx4 v[{B+16+4*k}:{B+19+4*k}], v{B+4}, s[{sXP}:{sXP+1}] offset:{128*k} {opt.get('xnt','')}")
def kgen_addr(p):
    p(f"""
    s_mul_hi_u32 s80, s2, {(2**32+2)//3}
    s_mul_i32 s81, s80, 3
    s_sub_u32 s81, s2, s81
    s_mul_i32 s81, s81, 3
    s_add_u32 s81, s81, s3                   ; slot
    s_lshl_b32 s83, s80, 3
    s_add_u32 s83, s83, s81
    s_add_u32 s82, s80, 512
    s_cmp_eq_u32 s81, 8
    s_cselect_b32 s83, s82, s83              ; channel
    s_lshl_b32 s84, s80, 7
    s_lshl_b32 s81, s81, 3
    s_add_u32 s84, s84, s81
    s_add_u32 s84, s84, {F_K}
    s_lshl_b32 s{sKO}, s83, 12
    s_add_u32 s{sKO}, s{sKO}, {WS_K}
    s_cmp_lt_u32 s2, 192
    s_cselect_b32 s81, s3, 3
    s_cmp_lt_u32 s81, 3
    s_cselect_b32 s84, s84, {OOB}
    s_cselect_b32 s{sKO}, s{sKO}, 0
    s_cselect_b32 s83, s83, 0
    s_lshl_b32 s80, s83, 8
    v_lshl_add_u32 v{B+7}, v0, 2, s80
    s_lshl_b32 s80, s83, 1
    v_mov_b32 v{B+8}, s80
    """)
def kgen_loads(p,opt):
    r=B+56; F=opt.get('pnt',''); G=opt.get('dnt','')
    p(f"""
    global_load_dword v{r}, v{B+7}, s[60:61] {F}
    global_load_ushort v{r+4}, v{B+8}, s[68:69] {G}
    global_load_dword v{r+1}, v{B+7}, s[62:63] {F}
    global_load_dword v{r+2}, v{B+7}, s[64:65] {F}
    global_load_dword v{r+3}, v{B+7}, s[66:67] {F}
    global_load_ushort v{B+63}, v{B+8}, s[{sDP}:{sDP+1}] {G}
    """)

def ln_compute(p, nafter, cold):
    R=B+16; U=B+64
    p(f"""
    v_lshrrev_b32 v{B+9}, 2, v{B+3}
    v_lshlrev_b32 v{B+9}, 12, v{B+9}
    v_and_b32 v{B+3}, 3, v{B+3}
    v_lshl_add_u32 v{B+9}, v{B+3}, 8, v{B+9}
    v_lshl_add_u32 v{B+9}, v{B+2}, 4, v{B+9}
    s_lshr_b32 s60, s2, 3
    s_mul_i32 s60, s60, {18*4096}
    s_bfe_u32 s61, s2, 0x20001
    s_lshl_b32 s61, s61, 10
    s_add_u32 s60, s60, s61
    s_and_b32 s61, s2, 1
    s_lshl_b32 s61, s61, 7
    s_add_u32 s60, s60, s61
    s_mov_b32 s63, 0x3f803f80
    s_mov_b32 s64, {fhex(1.0/576)}
    s_mov_b32 s65, 0x00003f80
    s_mov_b32 s66, 0x3f800000
    v_mov_b32 v{B+10}, 0
    v_mov_b32 v{B+11}, 0
    v_mov_b32 v{B+12}, 0
    v_mov_b32 v{B+13}, 0
    """)
    assert WS_XN==0
    for k in range(9):
        if k%3==0 or k>5: p(f"s_waitcnt vmcnt({nafter+8-(k+2 if k<6 else k)})")
        if k==0 and cold: p.ext(cold); nafter+=6
        for j in range(4):
            d=R+4*k+j
            p(f"v_dot2c_f32_bf16 v{B+10+(j&1)}, s63, v{d}\nv_dot2c_f32_bf16 v{B+12+(j&1)}, v{d}, v{d}")
    a,b,t,u=B+10,B+12,B+11,B+13
    p(f"s_nop 1\nv_add_f32 v{a}, v{a}, v{t}\nv_add_f32 v{b}, v{b}, v{u}\ns_nop 0")
    p(f"v_add_f32_dpp v{a}, v{a}, v{a} row_ror:8 row_mask:0xf bank_mask:0xf\nv_add_f32_dpp v{b}, v{b}, v{b} row_ror:8 row_mask:0xf bank_mask:0xf")
    for sw in ('v_permlane16_swap_b32','v_permlane32_swap_b32'):
        p(f"v_mov_b32 v{t}, v{a}\nv_mov_b32 v{u}, v{b}\ns_nop 0")
        p(f"{sw} v{t}, v{a}\n{sw} v{u}, v{b}\nv_add_f32 v{a}, v{a}, v{t}\nv_add_f32 v{b}, v{b}, v{u}")
    m=B+14
    p(f"""
    v_mul_f32 v{a}, s64, v{a}                ; mean
    v_mul_f32 v{b}, s64, v{b}
    v_cvt_pk_bf16_f32 v{m}, 0, -v{a}         ; -bf16(mean)
    v_fma_f32 v{b}, -v{a}, v{a}, v{b}        ; var
    v_max_f32 v{b}, 0, v{b}
    v_cvt_pk_bf16_f32 v{b}, 0, v{b}
    v_add_f32 v{b}, {fhex(1e-5)}, v{b}
    v_cvt_pk_bf16_f32 v{b}, 0, v{b}
    v_sqrt_f32 v{b}, v{b}
    """)
    for k in range(9):
        for j in range(4):
            d=R+4*k+j
            p(f"v_dot2_f32_bf16 v{U+2*j}, v{d}, s65, v{m}\nv_dot2_f32_bf16 v{U+2*j+1}, v{d}, s66, v{m}")
        if k==0: p(f"v_cvt_pk_bf16_f32 v{b}, 0, v{b}\nv_rcp_f32 v{a}, v{b}")
        if LNR[0]:
            for j in range(8): p(f"v_cvt_pk_bf16_f32 v{U+j}, 0, v{U+j}")
        elif k==0: p("s_nop 0")
        for j in range(4): p(f"v_pk_mul_f32 v[{U+2*j}:{U+2*j+1}], v[{U+2*j}:{U+2*j+1}], v[{a}:{a+1}] op_sel_hi:[1,0]")
        for j in range(4): p(f"v_cvt_pk_bf16_f32 v{R+4*k+j}, v{U+2*j}, v{U+2*j+1}")
        p(f"buffer_store_dwordx4 v[{R+4*k}:{R+4*k+3}], v{B+9}, s[{sWS}:{sWS+3}], s60 offen sc1")
        if k<8: p("s_add_u32 s60, s60, 8192")

def kgen(p0, nafter, cold, mid_at, mid):
    p=Prog(); marks={}
    p(f"""
    s_mul_i32 s63, s3, {16*ROWB}
    s_add_u32 s63, s63, {KLDS}
    v_lshl_add_u32 v4, v0, 3, s63
    v_and_b32 v2, 15, v0
    v_lshrrev_b32 v3, 4, v0
    v_lshl_add_u32 v12, v3, 4, s63
    v_mov_b32 v13, {ROWB}
    v_mad_u32_u24 v5, v2, v13, v12
    v_lshrrev_b32 v14, 2, v2
    v_and_b32 v15, 3, v2
    v_subrev_u32 v6, 1, v15
    v_max_i32 v6, 0, v6
    v_lshl_add_u32 v6, v14, 1, v6
    v_mad_u32_u24 v6, v6, v13, v12
    v_min_u32 v15, 2, v15
    v_lshrrev_b32 v7, 1, v14
    v_lshl_add_u32 v7, v14, 1, v7
    v_add_u32 v7, v7, v15
    v_mad_u32_u24 v7, v7, v13, v12
    v_mad_u32_u24 v8, v14, 3, v15
    v_mad_u32_u24 v8, v8, v13, v12
    v_lshl_add_u32 v9, v2, 5, s63
    v_lshl_add_u32 v11, v3, 9, v9
    v_lshrrev_b32 v14, 1, v3
    v_lshl_add_u32 v10, v14, 9, v9
    v_and_b32 v14, 1, v3
    v_lshl_add_u32 v10, v14, 4, v10
    v_lshl_add_u32 v9, v3, 3, v9
    v_lshl_add_u32 v1, v0, 4, s63
    s_mov_b32 s64, {fhex(LOG2E_HI)}
    s_mov_b32 s65, {fhex(LOG2E_LO)}
    s_mov_b32 s66, {fhex(math.log(2))}
    s_waitcnt vmcnt({nafter})
    v_lshlrev_b32 v22, 16, v56
    v_and_b32 v23, 0xffff0000, v56
    v_lshlrev_b32 v24, 16, v60
    v_cmp_eq_u32 vcc, 0, v0
    v_lshlrev_b32 v63, 16, v63
    """)
    for r in range(3): p(f"v_mul_f32 v{26+r}, s64, v{22+r}")
    p("v_cndmask_b32 v2, 0, v63, vcc")
    for r in range(3): p(f"v_fma_f32 v{30+r}, v{22+r}, s64, -v{26+r}")
    for r in range(3): p(f"v_exp_f32 v{26+r}, v{26+r}")
    for r in range(3): p(f"v_fmac_f32 v{30+r}, s65, v{22+r}")
    for r in range(3): p(f"v_mul_f32 v{30+r}, s66, v{30+r}")
    for r in range(3): p(f"v_fmac_f32 v{26+r}, v{26+r}, v{30+r}")
    p(f"""
    v_cvt_pk_bf16_f32 v26, v26, v27
    v_cvt_pk_bf16_f32 v28, v28, v28
    v_and_b32 v24, 0xffff0000, v28
    v_lshlrev_b32 v22, 16, v26
    v_and_b32 v23, 0xffff0000, v26
    v_lshlrev_b32 v26, 16, v57
    v_and_b32 v27, 0xffff0000, v57
    v_pk_mul_f32 v[22:23], v[22:23], v[24:25] op_sel_hi:[1,0]
    v_pk_mul_f32 v[26:27], v[26:27], v[24:25] op_sel_hi:[1,0]
    v_mul_f32 v22, {fhex(-LOG2E)}, v22
    v_mul_f32 v23, {fhex(-LOG2E)}, v23
    v_mul_f32 v26, 0.15915494, v26
    v_mul_f32 v27, 0.15915494, v27
    v_add_f32 v24, v24, v24
    v_lshlrev_b32 v28, 16, v58
    v_and_b32 v29, 0xffff0000, v58
    v_lshlrev_b32 v30, 16, v59
    v_and_b32 v31, 0xffff0000, v59
    v_pk_mul_f32 v[28:29], v[28:29], v[24:25] op_sel_hi:[1,0]
    v_pk_mul_f32 v[30:31], v[30:31], v[24:25] op_sel_hi:[1,0]
    """)
    W={16:36, 1:32, 256:40}
    for pp,b in W.items():
        if pp==1:
            for k in range(2): p(f"v_exp_f32 v{12+k}, v{22+k}")
            for k in range(2): p(f"v_fract_f32 v{14+k}, v{26+k}")
        else:
            for k in range(2): p(f"v_mul_f32 v{12+k}, {fhex(float(pp))}, v{22+k}")
            for k in range(2): p(f"v_mul_f32 v{14+k}, {fhex(float(pp))}, v{26+k}")
            for k in range(2): p(f"v_exp_f32 v{12+k}, v{12+k}")
            for k in range(2): p(f"v_fract_f32 v{14+k}, v{14+k}")
        for k in range(2): p(f"v_cos_f32 v{b+k}, v{14+k}")
        for k in range(2): p(f"v_sin_f32 v{b+2+k}, v{14+k}")
        p(f"v_pk_mul_f32 v[{b}:{b+1}], v[{b}:{b+1}], v[12:13]\nv_pk_mul_f32 v[{b+2}:{b+3}], v[{b+2}:{b+3}], v[12:13]")
    def cmul(d,a,b):
        assert d!=a and d!=b
        p(f"""
        v_pk_mul_f32 v[{d}:{d+1}], v[{a}:{a+1}], v[{b}:{b+1}]
        v_pk_mul_f32 v[{d+2}:{d+3}], v[{a}:{a+1}], v[{b+2}:{b+3}]
        v_pk_fma_f32 v[{d}:{d+1}], v[{a+2}:{a+3}], v[{b+2}:{b+3}], v[{d}:{d+1}] neg_lo:[1,0,0] neg_hi:[1,0,0]
        v_pk_fma_f32 v[{d+2}:{d+3}], v[{a+2}:{a+3}], v[{b}:{b+1}], v[{d+2}:{d+3}]
        """)
    wcnt=[0]; tb=[0]
    def emit(z,row,neg=False):
        t=16+2*(wcnt[0]%3); wcnt[0]+=1
        n='-' if neg else ''
        if side: p(side.pop(0))
        p(f"v_cvt_pk_bf16_f32 v{t}, v{z}, v{z+1}\nv_cvt_pk_bf16_f32 v{t+1}, {n}v{z+2}, {n}v{z+3}")
        if side: p(side.pop(0))
        p(f"ds_write_b64 v4, v[{t}:{t+1}] offset:{row*ROWB}")
        p.ext(stamp(f'k{wcnt[0]}'))
        marks[wcnt[0]]=len(p.l)
    RB=64; A0=96; A1=128; ACC=160; O=176
    side=[]
    def reads(dst, areg):
        for s_ in range(8): p(f"ds_read_b128 v[{dst+4*s_}:{dst+4*s_+3}], v{areg} offset:{64*s_+tb[0]}")
    def mm(acc, A):
        return [f"v_mfma_f32_16x16x32_bf16 v[{acc}:{acc+3}], v[{A+4*s_}:{A+4*s_+3}], v[{RB+4*s_}:{RB+4*s_+3}], "+("0" if s_==0 else f"v[{acc}:{acc+3}]") for s_ in range(8)]
    Z=[44,48]; W2,W4,W8,BS=52,56,60,[24,28]
    cur=28; emit(cur,0,True)
    for a in range(1,16):
        nx=Z[a&1]; cmul(nx,cur,W[16]); emit(nx,a,True); cur=nx
    reads(RB,5)
    p("v_mov_b32 v22, 0x3f803f80\nv_mov_b32 v23, 0\nds_write_b64 v4, v[22:23]")
    emit(W[1],1); cur=W[1]
    for j in range(2,16):
        nx={2:W2,4:W4,8:W8}.get(j, Z[j&1]); cmul(nx,cur,W[1]); emit(nx,j); cur=nx
    reads(A0,5)
    cur=W[256]; emit(cur,0)
    for q in range(1,9):
        if q==3: p("s_waitcnt lgkmcnt(3)"); side+=mm(ACC,A0)
        nx=Z[q&1]; cmul(nx,cur,W2); emit(nx,q); cur=nx
    reads(A1,6)
    base=W[256]
    for be in range(2):
        nb=BS[be&1]; cmul(nb,base,W[256]); base=nb; emit(base,5*be); cur=base
        for q in range(1,5):
            if be==0 and q==3: p("s_waitcnt lgkmcnt(3)"); side+=mm(ACC+4,A1)
            nx=Z[q&1]; cmul(nx,cur,W4); emit(nx,5*be+q); cur=nx
    reads(A0,7)
    for be in range(4):
        if be==1: p("s_waitcnt lgkmcnt(3)"); side+=mm(ACC+8,A0)
        nb=BS[be&1]; cmul(nb,base,W[256]); base=nb; emit(base,3*be)
        cmul(Z[0],base,W8); emit(Z[0],3*be+1)
        cmul(Z[1],base,W[16]); emit(Z[1],3*be+2)
    assert not side
    reads(A1,8)
    p(f"v_add_f32 v{ACC}, v{ACC}, v2")
    cv=[f"v_cvt_pk_bf16_f32 v{O+k}, v{ACC+2*k}, v{ACC+2*k+1}" for k in range(4)]
    cv+=[f"v_cvt_pk_bf16_f32 v{O+4+k}, v{ACC+8+x}, v{ACC+8+y}" for k,(x,y) in enumerate(((0,0),(0,1),(1,1),(2,2)))]
    for x in cv: p(x)
    p(f"ds_write_b64 v9, v[{O}:{O+1}]\nds_write_b64 v9, v[{O+2}:{O+3}] offset:512\nds_write_b128 v10, v[{O+4}:{O+7}] offset:1024")
    p("s_waitcnt lgkmcnt(3)")
    for x in mm(ACC+12,A1): p(x)
    p(f"ds_read_b128 v[{A0}:{A0+3}], v1\nds_read_b128 v[{A0+4}:{A0+7}], v1 offset:1024\ns_nop 5")
    a=ACC+12
    for k,(x,y) in enumerate(((0,0),(0,0),(0,1),(1,1),(1,1),(1,1),(2,2),(2,2))): p(f"v_cvt_pk_bf16_f32 v{O+8+k}, v{a+x}, v{a+y}")
    p(f"ds_write_b128 v11, v[{O+8}:{O+11}] offset:2048\nds_write_b128 v11, v[{O+12}:{O+15}] offset:2064")
    p(f"ds_read_b128 v[{A0+8}:{A0+11}], v1 offset:2048\nds_read_b128 v[{A0+12}:{A0+15}], v1 offset:3072")
    l=remap(p.l,B)
    cut=[i for i,x in enumerate(l) if x.kind=='wait'][0]+1
    c2=marks[mid_at]
    p0.ext(l[:cut-1]); p0.ext(stamp('kw')); p0.ext(l[cut-1:cut]); p0.ext(stamp('kp')); p0.ext(cold); p0.ext(l[cut:c2]); p0("s_waitcnt vmcnt(0)"); p0.ext(mid); p0.ext(l[c2:])
    p0("s_waitcnt lgkmcnt(4)")
    for k in range(4):
        if k>=2: p0(f"s_waitcnt lgkmcnt({3-k})")
        p0(f"buffer_store_dwordx4 v[{B+A0+4*k}:{B+A0+4*k+3}], v1, s[{sWS}:{sWS+3}], s{sKO} offen offset:{1024*k} sc1")

def cold_addr(p):
    p(f"""
    s_bfe_u32 s83, s2, 0x30003
    s_lshl_b32 s83, s83, 1
    s_mul_i32 s81, s83, {32*9216}
    s_lshl_b32 s82, s83, 13
    s_add_u32 m0, s82, s{sM0}
    s_add_u32 s83, s83, 2
    s_bfe_u32 s82, s2, 0x10005
    s_add_u32 s82, s82, 16
    s_mul_i32 s82, s82, {32*9216}
    s_bfe_u32 s80, s2, 0x20003
    s_cmp_eq_u32 s80, s3
    s_cselect_b32 s80, 0, {OOB}
    v_or_b32 v62, s80, v2
    """)
def cold_part(opt):
    F=opt.get('svcf','nt'); p=Prog()
    for k in range(2):
        if k: p(f"s_add_u32 m0, m0, 8192\ns_add_u32 s81, s81, {32*9216}")
        p(f"buffer_load_dwordx4 v2, s[{sWg}:{sWg+3}], s81 offen {F} lds\nbuffer_load_dwordx4 v2, s[{sWu}:{sWu+3}], s81 offen offset:1024 {F} lds")
    p(f"s_waitcnt lgkmcnt(0)\ns_mul_i32 s{sTAG}, s{sTAG}, 1664525\ns_add_u32 s{sTAG}, s{sTAG}, 1013904223\nv_mov_b32 v15, s{sTAG}")
    p.l[-4:-4]=[Ins(f"buffer_load_dword v63, v62, s[{sWg}:{sWg+3}], s82 offen",'touch'),Ins(f"buffer_load_dword v63, v62, s[{sWu}:{sWu+3}], s82 offen offset:1024",'touch')]
    return p.l

def service_addr(p):
    V=B+52
    p(f"""
    v_subrev_u32 v{V+1}, {2*8*9216}, v2
    v_xor_b32 v{V+2}, 64, v2
    v_subrev_u32 v{V+2}, {8*9216}, v{V+2}
    v_subrev_u32 v{V}, {2*8*9216}, v{V+2}
    v_mov_b32 v{V+3}, v2
    s_lshl_b32 s80, s2, 4
    s_add_u32 s80, s80, {F_LN}
    v_mov_b32 v{V+4}, {OOB}
    v_writelane_b32 v{V+4}, s80, 0
    """)

def service(p, opt):
    V=B+52; F=opt.get('svcf2',''); n1=opt.get('svc_n1',2)
    def loop(lab,n,thr):
        p(f"s_mov_b32 s80, 0\n{lab}:\ns_and_b32 s83, s83, 15\ns_mul_i32 s81, s83, {32*9216}\ns_lshl_b32 s82, s83, 13")
        for pc in range(4):
            p(f"s_add_u32 m0, s82, {2048*pc}")
            p("s_add_u32 s83, s83, 1" if pc==0 else ("s_add_u32 s80, s80, 1" if pc==1 else "s_nop 0"))
            p(f"buffer_load_dwordx4 v{V+pc}, s[{sWg}:{sWg+3}], s81 offen {F} lds\nbuffer_load_dwordx4 v{V+pc}, s[{sWu}:{sWu+3}], s81 offen offset:1024 {F} lds")
        if thr is not None: p(f"s_waitcnt vmcnt({thr})")
        p(f"s_cmp_lt_u32 s80, {n}\ns_cbranch_scc1 {lab}")
    assert 6+9+8*n1<=63
    loop("Lsvc1",n1,None)
    p(f"s_waitcnt vmcnt({8*n1})\nbuffer_store_dword v15, v{V+4}, s[{sWS}:{sWS+3}], 0 offen sc1")
    p.ext(stamp('lnf'))
    loop("Lsvc2",14-n1,opt.get('svc_thr',10))
```

```python
from pcommon import *
import pg
XR0=8192; KB=XR0+32768; KCS=4128; UB=KB+9*KCS; UCS=4624; UDS=1152; XR1=UB+9*UCS
assert UB%16==0 and XR1%16==0 and XR1<=131072
ZL=XR1; ZS=8208; assert ZL+4*ZS<=163840
ABUF=[0,64]; BBUF=[128,192]; SETS=[64,96,128,160,192]; TT=192; Z0=4
sG0,sG1,sKA,sKX,sKL,sXS,sCH,sQ=70,71,72,73,74,75,76,78
def setup_ssm(p):
    p(f"""
    s_and_b32 s60, s2, 7
    s_lshr_b32 s61, s2, 3
    s_sub_u32 s{sCH}, s61, 24
    s_lshl_b32 s62, s60, 3
    s_add_u32 s{sQ}, s62, s{sCH}             ; q
    s_add_u32 s63, s60, 64
    s_lshr_b32 s64, s{sQ}, 2
    s_lshl_b32 s64, s64, 12
    s_and_b32 s65, s{sQ}, 3
    s_lshl_b32 s65, s65, 8
    s_add_u32 s66, s64, s65
    s_lshr_b32 s64, s63, 2
    s_lshl_b32 s64, s64, 12
    s_and_b32 s65, s63, 3
    s_lshl_b32 s65, s65, 8
    s_add_u32 s67, s64, s65
    s_mul_i32 s64, s3, {8*18*4096}
    s_add_u32 s{sG0}, s66, s64
    s_add_u32 s{sG1}, s67, s64
    s_lshl_b32 s64, s{sQ}, 3
    s_add_u32 s64, s64, s3                   ; chA
    s_lshl_b32 s64, s64, 12
    s_add_u32 s{sKA}, s64, {WS_K}
    s_lshl_b32 s64, s{sQ}, 12
    s_lshl_b32 s65, s3, 10
    s_add_u32 s64, s64, s65
    s_add_u32 s{sKX}, s64, {WS_K+512*4096}
    s_add_u32 s{sXS}, s64, {WS_SX}
    s_lshl_b32 s64, s{sQ}, 5
    s_add_u32 s77, s64, {F_S}
    s_mul_i32 s64, s3, {KCS}
    s_add_u32 s{sKL}, s64, {KB+32}
    v_lshrrev_b32 v10, 4, v0                 ; g
    v_and_b32 v11, 0xf0, v1
    v_lshl_add_u32 v62, v10, 10, v11         ; tb*1024+n*16
    v_bfe_u32 v11, v0, 2, 2                  ; e
    v_and_b32 v12, 32, v0
    v_lshl_add_u32 v12, v11, 2, v12
    v_and_b32 v10, 1, v10
    v_lshl_add_u32 v12, v10, 1, v12
    v_lshlrev_b32 v12, 4, v12
    v_and_b32 v11, 3, v0
    v_lshl_add_u32 v12, v11, 3, v12
    s_lshl_b32 s64, s3, 13
    s_add_u32 s64, s64, {XR0}
    v_add_u32 v56, s64, v12
    v_and_b32 v10, 7, v0
    v_bfe_u32 v11, v0, 3, 2
    v_lshrrev_b32 v12, 5, v0
    v_mul_u32_u24 v11, {UDS}, v11
    v_lshl_add_u32 v11, v12, 4, v11
    v_mul_u32_u24 v10, {UCS}, v10
    s_lshl_b32 s64, s3, 8
    s_add_u32 s64, s64, {UB+128}
    v_add3_u32 v61, v10, v11, s64
    """)

def setup_ssm_sel():
    p=Prog(); setup_ssm(p); out=[Ins("s_cmp_ge_u32 s2, 192"),Ins("s_cselect_b64 s[68:69], -1, 0")]
    for x in p.l:
        d=x.ops[0]; t=x.text.split(';')[0]
        if d in [f"s{k}" for k in range(70,79)]:
            out+=[Ins(t.replace(d+",","s85,",1)),Ins("s_cmp_ge_u32 s2, 192"),Ins(f"s_cselect_b32 {d}, s85, {d}")]
        elif d in ('v56','v61','v62'):
            out+=[Ins(t.replace(d+",","v13,",1)),Ins(f"v_cndmask_b32 {d}, {d}, v13, s[68:69]")]
        else: out.append(x)
    return out

def T(text,tag=None):
    q=Prog(); q(text,tag); return q.l

def add_ssm(s, cx):
    opt=s.opt; pre,post,mf,st=s.pre,s.post,s.mf,s.streams
    LF='sc1'; W=f"s[{sWS}:{sWS+3}]"
    M0=len(mf); P=lambda i:M0+72*i
    def xr(base,so,tag):
        o=[]
        for k in range(8): o+=T(f"s_add_u32 m0, s32, {base+1024*k}\ns_add_u32 s81, s{so}, {WS_XN+k*18*4096}")+T(f"buffer_load_dwordx4 v62, {W}, s81 offen {LF} lds",tag)
        return o
    def kl(m0,so,tag,n=4):
        return T(m0)+sum((T(f"buffer_load_dwordx4 v1, {W}, s{so} offen offset:{1024*k} {LF} lds",tag) for k in range(n)),[])
    def transp(areg,wreg,tag):
        rd=[]; wr=[]
        for k in range(8):
            d=TT+4*k
            rd+=T(f"ds_read_b64_tr_b16 v[{d}:{d+1}], v{areg} offset:{1024*k}\nds_read_b64_tr_b16 v[{d+2}:{d+3}], v{areg} offset:{1024*k+256}",(tag,k//4))
            wr+=T(f"ds_write_b128 v{wreg}, v[{d}:{d+3}] offset:{32*k}",(tag,'w'))
        return rd,wr
    def aload(buf,reg,off,tag):
        o=[]
        for k in range(16):
            d=ABUF[buf]+4*k
            o+=T(f"ds_read_b64_tr_b16 a[{d}:{d+1}], v{reg} offset:{off+256*k+32}\nds_read_b64_tr_b16 a[{d+2}:{d+3}], v{reg} offset:{off+256*k}",tag)
        return o
    R2=opt.get('read2',0)
    def bload(buf,reg,tag):
        o=[]
        for jj in range(16):
            d=BBUF[buf]+4*jj
            if R2: o+=T(f"ds_read2_b64 a[{d}:{d+3}], v{reg} offset0:{8*jj} offset1:{8*jj+1}",tag)
            else: o+=T(f"ds_read_b64 a[{d}:{d+1}], v{reg} offset:{64*jj}\nds_read_b64 a[{d+2}:{d+3}], v{reg} offset:{64*jj+8}",tag)
        return o
    H=lambda h:8*h
    st.append((H(144),H(149),T("s_lshl_b32 s32, s3, 13\ns_lshl_b32 s33, s3, 10")+xr(XR0,sG0,'xr0')+kl(f"s_mov_b32 m0, s{sKL}",sKA,'kA')))
    a,b,g_,i_=64,65,66,67
    st.append((H(149),H(155),T(f"""
    v_mov_b32 v{Z0}, 0
    v_mov_b32 v{Z0+1}, 0
    v_mov_b32 v{Z0+2}, 0
    v_mov_b32 v{Z0+3}, 0
    v_lshrrev_b32 v{a}, 3, v0
    v_and_b32 v{b}, 0x70, v1
    s_mul_i32 s36, s3, {UDS}
    s_add_u32 s37, s36, {UB}
    v_add_u32 v{b}, s37, v{b}
    v_mul_u32_u24 v{a}, {UCS}, v{a}
    v_add_u32 v{a}, v{a}, v{b}
    ds_write_b128 v{a}, v[{Z0}:{Z0+3}]
    ds_write_b128 v{b}, v[{Z0}:{Z0+3}] offset:{8*UCS}
    v_lshrrev_b32 v{a}, 1, v0
    v_min_u32 v{a}, 8, v{a}
    v_mul_u32_u24 v{a}, {KCS}, v{a}
    v_and_b32 v{b}, 16, v1
    v_add_u32 v{a}, v{a}, v{b}
    ds_write_b128 v{a}, v[{Z0}:{Z0+3}] offset:{KB}
    v_lshrrev_b32 v{g_}, 4, v0
    v_bfe_u32 v{a}, v0, 2, 2
    v_and_b32 v{b}, 3, v0
    v_lshl_add_u32 v{a}, v{g_}, 3, v{a}
    v_sub_u32 v{a}, v{b}, v{a}
    s_add_u32 s37, s{sKL}, 192
    v_lshl_add_u32 v2, v{a}, 3, s37
    v_and_b32 v{i_}, 15, v0
    v_lshl_add_u32 v{a}, v{g_}, 1, v{i_}
    s_mul_i32 s39, s3, {UCS}
    s_add_u32 s39, s39, {UB+8}
    v_lshl_add_u32 v3, v{a}, 3, s39
    """,'z')))
    hw=opt.get('ssm_hw',155); hb=opt.get('ssm_hb',160)
    pre[H(hw)].append(WaitVM(['xr0','kA']))
    rd,wr=transp(56,61,'t0')
    st.append((H(hw),H(hb),rd+wr))
    pre[H(hb)]+=[WaitLG([('t0','w'),'z']),WaitVM([],True)]
    al=aload(0,2,0,('A',0)); bl=bload(0,3,('B',0)); nb=len(bl)//4
    for k in range(1,4):
        for x in al[8*k:8*k+8]+bl[nb*k:nb*k+nb]: x.tag=('AB',k)
    st.append((H(hb),H(162)-5,al[:8]+bl[:nb]))
    st.append((H(hb),P(0)+1,al[8:16]+bl[nb:2*nb])); st.append((H(hb),P(0)+14,al[16:24]+bl[2*nb:3*nb])); st.append((P(0),P(0)+34,al[24:]+bl[3*nb:]))
    passes=[(0,0,0),(0,1,1),(0,0,2),(0,1,3),(1,0,4),(0,1,0),(0,0,1),(0,1,2),(0,0,3)]
    for pi,(ab,bb,se) in enumerate(passes):
        pre.setdefault(len(mf),[]).append(WaitLG([('B',pi),('A',pi)]))
        for b_ in range(8):
            if pi==0 and b_ in (2,4,6): pre.setdefault(len(mf),[]).append(WaitLG([('AB',b_//2)]))
            for jp in range(b_+1):
                d=SETS[se]+4*b_
                for k in range(2):
                    s_=2*b_-2*jp+1-k; jj=2*jp+k
                    cc="0" if (jp==0 and k==0) else f"v[{d}:{d+3}]"
                    mf.append(Ins(f"v_mfma_f32_16x16x32_bf16 v[{d}:{d+3}], a[{ABUF[ab]+4*s_}:{ABUF[ab]+4*s_+3}], a[{BBUF[bb]+4*jj}:{BBUF[bb]+4*jj+3}], {cc}"))
    pre[P(0)]+=stamp('p2')
    for k in range(8,648,8):
        if stamp(f'ssm_{k}'): pre.setdefault(M0+k,[]).extend(stamp(f'ssm_{k}'))
    late=kl(f"s_add_u32 m0, s33, {KB+32+8*KCS}",sKX,'kX',1)+xr(XR1,sG1,'xr1')+kl(f"s_add_u32 m0, s{sKL}, {4*KCS}\ns_add_u32 s{sKA}, s{sKA}, {4*4096}",sKA,'kB')
    assert hb>=160
    st.append((P(0)+12,P(1),late))
    a,b,c,d_=32,33,34,35
    st.append((P(0),P(2),glue_scc(T(f"""
    v_and_b32 v{a}, 7, v0
    v_cmp_eq_u32 s[40:41], s{sCH}, v{a}
    v_cmp_eq_u32 s[42:43], 63, v0
    v_sub_u32 v{a}, 8, v{a}
    v_mul_u32_u24 v{a}, {UCS}, v{a}
    v_add_u32 v16, v61, v{a}
    v_add_u32 v17, {XR1-XR0}, v56
    s_sub_u32 s37, {KB+32+8*KCS}, s{sKL}
    v_add_u32 v18, s37, v2                   ; A extra
    v_lshrrev_b32 v{c}, 4, v0
    v_and_b32 v{d_}, 15, v0
    v_lshl_add_u32 v{a}, v{c}, 1, v{d_}
    s_add_u32 s37, s36, {UB+8+8*UCS}
    v_lshl_add_u32 v20, v{a}, 3, s37         ; B extra
    v_and_b32 v{b}, 2, v{c}
    v_xor_b32 v{a}, v0, v{b}
    v_lshl_add_u32 v25, v{a}, 3, s{sKL}
    v_lshlrev_b32 v{b}, 2, v{b}
    v_xor_b32 v{a}, v0, v{b}
    s_mul_i32 s37, s3, {ZS}
    s_add_u32 s37, s37, {ZL+16}
    v_lshl_add_u32 v26, v{a}, 4, s37
    v_subrev_u32 v29, 16, v26
    v_subrev_u32 v{a}, 16, v0
    v_add_u32 v{b}, 47, v0
    v_cmp_gt_u32 vcc, 16, v0
    v_cndmask_b32 v{a}, v{a}, v{b}, vcc
    v_lshlrev_b32 v27, 2, v{a}
    s_movk_i32 s37, 252
    v_writelane_b32 v27, s37, 0
    s_lshl_b32 s37, s3, 6
    v_add_u32 v{d_}, s37, v0                 ; tid
    v_bfe_u32 v{a}, v{d_}, 1, 4
    v_and_b32 v{b}, 1, v{d_}
    v_mul_u32_u24 v{b}, 40, v{b}
    v_xor_b32 v{a}, v{a}, v{b}
    v_lshrrev_b32 v{b}, 5, v{d_}
    v_lshl_add_u32 v{a}, v{b}, 6, v{a}
    v_lshlrev_b32 v{a}, 4, v{a}
    v_add_u32 v28, {ZL+16}, v{a}
    v_subrev_u32 v{d_}, 1, v{d_}
    v_bfe_u32 v{a}, v{d_}, 1, 4
    v_and_b32 v{b}, 1, v{d_}
    v_mul_u32_u24 v{b}, 40, v{b}
    v_xor_b32 v{a}, v{a}, v{b}
    v_ashrrev_i32 v{b}, 5, v{d_}
    v_lshl_add_u32 v{a}, v{b}, 6, v{a}
    v_lshlrev_b32 v{a}, 4, v{a}
    v_add_u32 v{a}, {ZL+16+256}, v{a}
    v_max_u32 v24, {ZL}, v{a}
    v_bfe_u32 v{a}, v0, 2, 2
    v_mul_u32_u24 v{a}, {KCS}, v{a}
    v_and_b32 v{b}, 3, v0
    v_lshl_add_u32 v{a}, v{b}, 7, v{a}
    v_and_b32 v{b}, 2, v0
    v_xor_b32 v{b}, v{b}, v{c}
    v_lshl_add_u32 v{a}, v{b}, 3, v{a}
    s_add_u32 s37, s33, {KB+32}
    v_add_u32 v30, s37, v{a}
    s_lshl_b32 s37, s{sQ}, 15
    s_add_u32 s37, s37, s32
    s_add_u32 s{sG0}, s37, {WS_K}
    s_cmp_eq_u32 s3, 0
    s_cselect_b32 s37, s77, {OOB}
    v_mov_b32 v31, {OOB}
    v_writelane_b32 v31, s37, 0
    """))))
    badv={1:UDS,2:UDS,3:UDS,5:4*UCS-3*UDS,6:UDS,7:UDS,8:UDS}
    for pi in range(1,9):
        o=(T(f"v_add_u32 v3, {badv[pi]}, v3") if pi in badv else [])+bload(passes[pi][1],20 if pi==4 else 3,('B',pi))
        st.append((P(pi-1)+(34 if pi==1 else 3),P(pi)-(3 if pi==1 else 8),o))
    st.append((P(0),M0+opt.get('ssm_gE',200),[x for x in s.gS if x.kind!='vm_store']))
    for k,x in enumerate([x for x in s.gS if x.kind=='vm_store']): post.setdefault(M0+opt.get('ssm_st',200)+4*k,[]).append(x)
    rd,wr=transp(17,16,'t1')
    pre.setdefault(P(2)+8,[]).append(WaitVM(['xr1','kX','kB']))
    st.append((P(2)+8,P(3)-6,rd+[Glue(T("s_mov_b64 exec, s[40:41]")+wr[2*k:2*k+2]+T("s_mov_b64 exec, -1")) for k in range(4)]))
    pre.setdefault(P(3)+2,[]).extend([WaitLG([('t1','w')]),WaitVM([],True)])
    st.append((P(3)+3,P(4)-8,aload(1,18,0,('A',4))))
    st.append((P(4)+1,P(5)-8,aload(0,2,4*KCS,('A',5))))
    done=[1,5,11,19,29,41,55,71]
    def finish(p0,yoff,end):
        S,Z1,Z2,Z3=SETS[:4]
        st.append((P(p0+2)+5,P(p0+3),[Ins(f"v_add_f32 v{S+4*k+1+j}, v{S+4*k+1+j}, v{Z1+4*k+j}") for k in range(8) for j in range(3)]))
        for k in range(8):
            C=[Z1+4*k+3,Z2+4*k+3,Z3+4*k+3]
            o=[Ins(f"v_add_f32 v{x}, v{x}, v{Z2+4*k+j}") for j,x in enumerate((S+4*k+2,S+4*k+3,C[0]))]
            o+=[Ins(f"v_add_f32 v{x}, v{x}, v{Z3+4*k+j}") for j,x in enumerate((S+4*k+3,C[0],C[1]))]
            o+=[Ins(f"v_cndmask_b32 v{Z1+4*k+j}, v{C[j]}, {f'v{C[j]-4}' if k else '0'}, s[42:43]") for j in range(3)]
            o+=[Ins(f"ds_bpermute_b32 v{Z2+4*k+j}, v27, v{Z1+4*k+j}",('bp',p0,k)) for j in range(3)]
            o2=[Ins(f"v_add_f32 v{S+4*k+j}, v{S+4*k+j}, v{Z2+4*k+j}") for j in range(3)]
            o2+=T(f"v_cvt_pk_bf16_f32 v{Z3+4*k}, v{S+4*k}, v{S+4*k+1}\nv_cvt_pk_bf16_f32 v{Z3+4*k+1}, v{S+4*k+2}, v{S+4*k+3}\nds_write_b64 v25, v[{Z3+4*k}:{Z3+4*k+1}] offset:{yoff+512*k}",'y')
            yield P(p0+3)+done[k]+5,o,o2
    def chain(parts):
        seq=parts[0][1]+parts[1][1]
        for k in range(len(parts)):
            seq+=parts[k][2]
            if k+2<len(parts): seq+=parts[k+2][1]
        return seq
    fa=list(finish(0,0,P(5)))
    st.append((fa[2][0],P(3)+60,chain(fa[:3]))); st.append((P(3)+60,P(4)+30,chain(fa[3:6]))); st.append((P(4)+30,P(5),chain(fa[6:])))
    fb=list(finish(5,4*KCS,None))
    st.append((fb[1][0],fb[3][0]+4,chain(fb[:2]))); st.append((fb[3][0]+4,fb[5][0]+2,fb[2][1]+fb[3][1]+fb[2][2]+fb[3][2]))
    st.append((fb[5][0]+2,P(9)-1,chain(fb[4:6])))
    tail=chain(fb[6:])
    ZX=SETS[4]
    st.append((P(5)+6,P(6)-8,[Glue(T(f"s_mov_b64 exec, 1\nds_write_b128 v29, v[{Z0}:{Z0+3}]\ns_mov_b64 exec, -1",'zw'))]+
               [Ins(f"ds_write_b128 v26, v[{ZX+4*k}:{ZX+4*k+3}] offset:{1024*k}",'zw') for k in range(8)]))
    pre.setdefault(P(6)+2,[]).extend([WaitLG(['zw']),WaitVM([],True)])
    Y=ZX; E=[None,ZX+8,ZX+20,224]
    xo=T(f"ds_read_b128 v[{Y}:{Y+3}], v28\nds_read_b128 v[{Y+4}:{Y+7}], v28 offset:256",'zr')
    for dl in (1,2,3): xo+=sum((T(f"ds_read_b128 v[{E[dl]+4*k}:{E[dl]+4*k+3}], v{(24,28,28)[k]} offset:{dl*ZS+(0,0,256)[k]}",'zr') for k in range(3)),[])
    st.append((P(6)+3,P(6)+30,xo))
    xo=[Ins(f"v_add_f32 v{Y+j}, v{Y+j}, v{E[dl]+4+j-dl}") for dl in (1,2,3) for j in range(8)]
    xo+=[Ins(f"v_cvt_pk_bf16_f32 v{Y+8+j}, v{Y+2*j}, v{Y+2*j+1}") for j in range(4)]
    xo+=T(f"buffer_store_dwordx4 v[{Y+8}:{Y+11}], v1, {W}, s{sXS} offen sc1",'xs')
    st.append((P(6)+38,P(7)+10,xo))
    for at,tag,off in ((P(0)+opt.get('ssm_fb',70),('hst',3),4),(M0+opt.get('ssm_fc',260),('hst',4),8)):
        pre.setdefault(at,[]).append(WaitVM([tag])); post.setdefault(at,[]).append(pg.flag_store(off))
    bar=WaitVM([],True); bar.drain=True
    tail=stamp('ssm_end')+tail+[bar]
    fs=[]
    for k in range(8):
        d=TT+4*k
        tail+=T(f"ds_read_b64_tr_b16 v[{d}:{d+1}], v30 offset:{512*(k//4)+32*(k%4)}\nds_read_b64_tr_b16 v[{d+2}:{d+3}], v30 offset:{512*(k//4)+32*(k%4)+4*KCS}")
        fs+=T(f"buffer_store_dwordx4 v[{d}:{d+3}], v1, {W}, s{sG0} offen offset:{1024*(k%4)} sc1",'fs')+(T(f"s_add_u32 s{sG0}, s{sG0}, 4096") if k==3 else [])
    tail+=fs+[WaitVM(['fs'],True)]+T(f"buffer_store_dword v15, v31, {W}, 0 offen sc1",'flag')
    return tail
```

```python
from asmlib import *

class WaitVM:
    def __init__(self, tags, barrier=False): self.tags=set(tags); self.barrier=barrier; self.kind='pseudo'; self.cost=1+(1 if barrier else 0)

def resolve_waits(items):
    out=[]; issued=[]; done=0
    for it in items:
        if isinstance(it,WaitVM):
            last=-1
            for tg in it.tags:
                idx=[i for i,t in enumerate(issued) if t==tg]
                assert idx, f"wait for unissued tag {tg}"
                last=max(last,idx[-1])
            if last+1>done:
                n=len(issued)-(last+1)
                assert n<=63
                if out and out[-1].kind=='wait' and out[-1].vm is None:
                    out[-1]=Ins(f"s_waitcnt vmcnt({n}) lgkmcnt({out[-1].lgkm})")
                else: out.append(Ins(f"s_waitcnt vmcnt({n})"))
                done=last+1
            if it.barrier: out.append(Ins("s_barrier"))
        else:
            if it.kind in('vm_load','vm_dma','vm_store'): issued.append(it.tag)
            if it.kind=='wait' and it.vm is not None: done=max(done,len(issued)-it.vm)
            out.append(it)
    return out

class Glue:
    def __init__(self, l):
        self.l=l; self.kind='glue'; self.base='glue'; self.op='glue'; self.data=[]; self.tag=None
        self.rd=set().union(*[x.rd for x in l]); self.wr=set().union(*[x.wr for x in l]); self.cost=sum(cost(x) for x in l)
def glue_scc(l):
    out=[]; i=0
    while i<len(l):
        x=l[i]; j=i
        if 'scc' in x.wr:
            k=i+1
            while k<len(l):
                if 'scc' in l[k].rd: j=k
                if 'scc' in l[k].wr: break
                k+=1
        out.append(x if j==i else Glue(l[i:j+1])); i=j+1
    return out
VMCOST=2
DSW={'ds_write_b32':2,'ds_write_b64':3,'ds_write_b128':5,'ds_bpermute_b32':2}
def cost(i):
    if i.kind in('vm_load','vm_dma','vm_store'): return VMCOST
    if i.kind in('ds_write','ds_read') and i.op in DSW: return DSW[i.op]
    return i.cost

def fill(mfmas, pre, post, streams, cap=2, window=10, lat_trans=2):
    n=len(mfmas); out=[]
    fixed=[sum(cost(x) for x in post.get(i,[]))+sum(cost(x) for x in pre.get(i+1,[])) for i in range(n)]
    si=0; pend=[]; cur_end=None
    recent=[]
    def ready(k):
        o=pend[k]
        for e in pend[:k]:
            if (e.wr&(o.rd|o.wr)) or (e.rd&o.wr): return False
        for d,e in enumerate(reversed(recent[-lat_trans:])):
            if e.kind=='trans' and e.wr&o.rd: return False
        if o.kind in('valu','trans'):
            for e in recent[-2:]:
                if e.kind=='vm_store' and len(e.data)>=3 and set(e.data)&o.wr: return False
                if e.kind=='valu' and any(r[0]=='s' or r=='vcc' for r in e.wr&o.rd): return False
                if o.base.startswith('v_permlane') and e.kind in('valu','trans') and e.wr&o.rd: return False
        return True
    def emit(x):
        if x.kind=='glue':
            for y in x.l: emit(y)
            return
        out.append(x)
        if x.kind!='pseudo': recent.append(x)
    carry=0.0
    for i in range(n):
        for x in pre.get(i,[]): emit(x)
        emit(mfmas[i])
        for x in post.get(i,[]): emit(x)
        room=cap-fixed[i]
        while True:
            if not pend:
                if si<len(streams) and streams[si][0]<=i:
                    pend=list(streams[si][2]); cur_end=streams[si][1]; si+=1; carry=0.0
                else: break
            e=min(cur_end,n)
            must = cur_end<=n
            extra=0
            if must:
                rem=sum(cost(x) for x in pend)
                avail=max(room,0)+sum(max(cap-fixed[j],0) for j in range(i+1,e))
                gaps=max(e-i,1)
                if rem>avail:
                    carry+= (rem-avail)/gaps
                    extra=int(carry+0.5) if i<e-1 else rem
            room2=max(room,0)+extra
            used=0
            while pend:
                pick=None
                for k in range(min(window,len(pend))):
                    if (cost(pend[k])<=room2-used or (cost(pend[k])>cap and used==0 and room>=cap)) and ready(k): pick=k; break
                if pick is None:
                    if must and i>=e-1:
                        pick=next((k for k in range(min(window,len(pend))) if ready(k)),None)
                        if pick is None: emit(Ins("s_nop 0")); continue
                    else: break
                x=pend.pop(pick); emit(x); used+=cost(x)
            over=max(used-max(room,0),0); carry-=over
            room-=used
            if pend or room<=0: break
    while pend or si<len(streams):
        if not pend:
            pend=list(streams[si][2]); si+=1
        pick=next((k for k in range(min(window,len(pend))) if ready(k)),None)
        if pick is None: emit(Ins("s_nop 0")); continue
        emit(pend.pop(pick))
    return out

def gapstats(l):
    import collections
    h=collections.Counter(); c=None
    for x in l:
        if x.kind=='mfma':
            if c is not None: h[c]+=1
            c=0
        elif c is not None: c+=cost(x)
    tot=sum(max(k,2)*v for k,v in h.items())+2*sum(h.values())+c
    return dict(sorted(h.items())), c, tot*4

def auto_lgkm(items):
    out=[]; q=[]
    for it in items:
        if it.kind=='pseudo':
            if getattr(it,'drain',False) and q:
                out.append(Ins("s_waitcnt lgkmcnt(0)")); q=[]
            out.append(it); continue
        if it.kind=='wait' and it.lgkm is not None:
            while len(q)>it.lgkm: q.pop(0)
        touch=it.rd|it.wr; last=-1
        for k,o in enumerate(q):
            if set(o.dst)&touch: last=k
        if last>=0:
            n=min(len(q)-last-1,15)
            out.append(Ins(f"s_waitcnt lgkmcnt({n})")); q=q[len(q)-n:] if n else []
        if it.kind in('ds_read','ds_write'): q.append(it)
        out.append(it)
    return out

def auto_nop(items):
    import re
    l=list(items)
    for _ in range(400):
        errs=[e for e in check(l) if 'states after' in e]
        if not errs: return l
        m=re.match(r"\[(\d+)\].*needs (\d+) states.*has (\d+)",errs[0])
        idx,need,has=map(int,m.groups())
        l.insert(idx,Ins(f"s_nop {need-has-1}"))
    raise RuntimeError("auto_nop")

def spread(post, groups, g0, g1):
    n=len(groups)
    for i,g in enumerate(groups):
        post.setdefault(g0+i*(g1-g0)//n,[]).extend(g if isinstance(g,list) else [g])
def weave(mf, pre, post):
    out=[]
    for i,m in enumerate(mf):
        out+=pre.get(i,[]); out.append(m); out+=post.get(i,[])
    return out

class WaitLG:
    def __init__(self, tags): self.tags=set(tags); self.kind='pseudo'; self.cost=1; self.lg=True

def auto_lgkm2(items):
    out=[]; q=[]
    def wait(n):
        nonlocal q
        n=min(n,15); out.append(Ins(f"s_waitcnt lgkmcnt({n})")); q=q[len(q)-n:] if n else []
    for it in items:
        if it.kind=='pseudo':
            if getattr(it,'lg',False):
                last=max([k for k,o in enumerate(q) if o.tag in it.tags],default=-1)
                if last>=0: wait(len(q)-last-1)
                continue
            if getattr(it,'drain',False) and q: wait(0)
            out.append(it); continue
        if it.kind=='wait' and it.lgkm is not None:
            if len(q)<=it.lgkm and it.vm is None: continue
            while len(q)>it.lgkm: q.pop(0)
        touch=it.rd|it.wr; last=-1
        for k,o in enumerate(q):
            if set(o.dst)&touch: last=k
        if last>=0:
            tg=q[last].tag
            if tg is not None:
                while last+1<len(q) and q[last+1].tag==tg: last+=1
            wait(len(q)-last-1)
        if it.kind in('ds_read','ds_write'): q.append(it)
        out.append(it)
    return out

LDSC={'ds_read_b128':16,'ds_write_b64':24,'ds_write_b128':52,'ds_bpermute_b32':16,'ds_read2_b64':32}
def ldsc(x):
    if x.kind=='glue': return sum(ldsc(y) for y in x.l)
    if x.kind in('ds_read','ds_write'): return LDSC.get(x.op,8)
    return 0
def fill2(mfmas, pre, post, streams, cap=2, window=8, lat_trans=2, lat_lds=7, rate=12):
    n=len(mfmas); out=[]; recent=[]
    fixed=[sum(cost(x) for x in post.get(i,[]))+sum(cost(x) for x in pre.get(i+1,[])) for i in range(n)]
    free=[max(cap-f,0) for f in fixed]
    cum=[0]*(n+1)
    for i in range(n): cum[i+1]=cum[i]+free[i]
    S=[dict(a=a,e=e,ops=list(o),n0=max(sum(ldsc(x) for x in o),1)) for a,e,o in streams]
    lb=[16]
    ldsat={}
    def ready(st,k,i,strict=True):
        o=st['ops'][k]
        if o.kind=='pseudo': return k==0
        for e in st['ops'][:k]:
            if e.kind=='pseudo': return False
            if (e.wr&(o.rd|o.wr)) or (e.rd&o.wr): return False
            if e.kind in('ds_read','ds_write','glue') and o.kind in('ds_read','ds_write','glue') and 'ds_write' in (e.kind,o.kind): return False
            if e.kind.startswith('vm_') and o.kind.startswith('vm_'): return False
        for e in recent[-lat_trans:]:
            if e.kind=='trans' and e.wr&o.rd: return False
        if o.kind in('valu','trans'):
            for e in recent[-2:]:
                if e.kind=='vm_store' and len(e.data)>=3 and set(e.data)&o.wr: return False
                if e.kind=='valu' and any(r[0]=='s' or r=='vcc' for r in e.wr&o.rd): return False
                if o.base.startswith('v_permlane') and e.kind in('valu','trans') and e.wr&o.rd: return False
            for e in recent[-3:]:
                if e.kind=='valu' and e.base.startswith('v_dot2') and e.wr&(o.rd|o.wr) and o.base!=e.base: return False
        if o.kind=='vm_dma' and recent and 'm0' in recent[-1].wr: return False
        if strict:
            if ldsc(o) and lb[0]<8 and not (sum(ldsc(x) for x in st['ops'])/st['n0']>(st['e']-2-i)/(st['e']-st['a'])): return False
            for r in o.rd:
                if r in ldsat and i-ldsat[r]<lat_lds: return False
        return True
    def emit(x,i):
        if x.kind=='glue':
            for y in x.l: emit(y,i)
            return
        out.append(x)
        if x.kind!='pseudo':
            recent.append(x); lb[0]-=ldsc(x)
            for r in x.wr: ldsat.pop(r,None)
            if x.kind=='ds_read':
                for r in x.dst: ldsat[r]=i
    carry=0.0
    for i in range(n):
        for x in pre.get(i,[]): emit(x,i)
        emit(mfmas[i],i); lb[0]=min(lb[0]+rate,20)
        for x in post.get(i,[]): emit(x,i)
        act=sorted([s for s in S if s['ops'] and s['a']<=i],key=lambda s:s['e'])
        if not act: continue
        need=0; due=0
        for s in act:
            if s['e']>n: break
            due+=sum(cost(x) for x in s['ops'])
            fut=sum(sum(cost(x) for x in t['ops']) for t in S if t['a']>i and t['e']<=s['e'])
            need=max(need,(due+fut-(cum[s['e']]-cum[i]))/max(s['e']-i,1))
        carry=carry+need if need>0 else 0.0
        room=free[i]+(int(carry+0.5) if need>0 else 0); used=0
        while True:
            pick=None
            for s in act:
                force = s['e']<=i+1
                for k in range(min(window,len(s['ops']))):
                    c=cost(s['ops'][k])
                    if (force or c<=room-used or (c>cap and used==0 and (free[i]>=cap or need>0.5))) and ready(s,k,i,not force): pick=(s,k); break
                if pick: break
                if force and s['ops']:
                    emit(Ins("s_nop 0"),i); pick='again'; break
            if pick=='again': continue
            if not pick: break
            x=pick[0]['ops'].pop(pick[1]); emit(x,i); used+=cost(x)
        carry-=max(used-free[i],0); lb[0]+=3*max(used-free[i],0)
    for s in sorted(S,key=lambda s:s['e']):
        while s['ops']:
            k=next((k for k in range(min(window,len(s['ops']))) if ready(s,k,n,False)),None)
            if k is None: emit(Ins("s_nop 0"),n); continue
            emit(s['ops'].pop(k),n)
    return out
```

```python
import sys, json
from pcommon import *
import pcommon, pp0, pg, pssm
NAME="recurrent_scan__ssm_conv_s4d__geglu_ffn__prompt_kernel"
def span(p,opt):
    if not opt.get('span'): return
    p('''
    s_waitcnt vmcnt(0)
    s_memrealtime s[90:91]
    s_waitcnt lgkmcnt(0)
    s_not_b32 s92, s86
    s_mov_b64 exec, 1
    v_mov_b32 v0, 0
    v_mov_b32 v1, s92
    v_mov_b32 v2, s90
    v_mov_b32 v3, s86
    global_atomic_umax v0, v1, s[88:89]
    global_atomic_umax v0, v2, s[88:89] offset:4
    global_atomic_umax v0, v3, s[88:89] offset:8
    ''')
def probe_pub(p,opt):
    if not opt.get('probe'): return
    p(f'''
    s_getreg_b32 s80, hwreg(HW_REG_XCC_ID, 0, 4)
    s_sub_u32 s80, s80, s2
    s_and_b32 s80, s80, 7
    v_mov_b32 v10, s80
    s_lshl_b32 s81, s2, 2
    s_add_u32 s81, s81, {WS_F+0x30000}
    v_mov_b32 v11, s81
    buffer_store_dword v10, v11, s[{sWS}:{sWS+3}], 0 offen sc1
    s_waitcnt vmcnt(0)
    ''')
def probe_chk(p,opt):
    if not opt.get('probe'): return
    p(f'''
    s_cmp_lg_u32 s2, 255
    s_cbranch_scc1 Lend
    s_mov_b32 s80, {WS_F+0x30000}
    v_lshrrev_b32 v1, 2, v1
    buffer_load_dword v2, v1, s[{sWS}:{sWS+3}], s80 offen sc1
    s_waitcnt vmcnt(0)
    v_readfirstlane_b32 s81, v2
    s_nop 1
    v_cmp_ne_u32 vcc, s81, v2
    s_cbranch_vccz Lend
    s_mov_b32 s80, 0
    Lprobe:
    s_sleep 64
    s_add_u32 s80, s80, 1
    s_cmp_lt_u32 s80, 60
    s_cbranch_scc1 Lprobe
    ''')
def amp(p,opt):
    if opt.get('amp') is None: return
    p(f'''
    s_cmp_lg_u32 s2, {opt['amp']}
    s_cbranch_scc1 Lend
    s_waitcnt vmcnt(0)
    s_memrealtime s[62:63]
    s_waitcnt lgkmcnt(0)
    s_sub_u32 s64, {'s62' if len(opt['map'])==1 else f's{ST0+2}'}, s{ST0}
    s_min_u32 s64, s64, 10000
    s_mul_i32 s64, s64, 10
    s_add_u32 s64, s64, s62
    Lamp:
    s_sleep 8
    s_memrealtime s[62:63]
    s_waitcnt lgkmcnt(0)
    s_sub_u32 s65, s62, s64
    s_cmp_lt_i32 s65, 0
    s_cbranch_scc1 Lamp
    ''')
def gen(opt):
    MODE['stamp']=opt.get('stamp'); MODE['map']=opt.get('map'); MODE['slp']=opt.get('slp',1)
    cx=Ctx(); B=pp0.B; pp0.LNR[0]=opt.get('lnr',0)
    p=Prog()
    p(f"s_cmp_ge_u32 s2, 256\ns_cbranch_scc1 Lend")
    p.ext(stamp('start'))
    if opt.get('span'): p(f"s_memrealtime s[86:87]\ns_load_dwordx2 s[88:89], s[0:1], {KA['dbg']}")
    p(f"""
    s_load_dwordx2 s[{sXP}:{sXP+1}], s[0:1], {KA['x']}
    s_load_dwordx8 s[60:67], s[0:1], {KA['logA']}
    s_load_dwordx2 s[68:69], s[0:1], {KA['logdt']}
    s_load_dwordx2 s[{sDP}:{sDP+1}], s[0:1], {KA['Dskip']}
    s_load_dwordx2 s[{sWS}:{sWS+1}], s[0:1], {KA['ws']}
    s_load_dwordx2 s[{sWg}:{sWg+1}], s[0:1], {KA['Wg']}
    s_load_dwordx2 s[{sS}:{sS+1}], s[0:1], {KA['Wu']}
    s_getpc_b64 s[82:83]
    Lpc:
    s_lshr_b32 s80, s2, 3
    s_mul_i32 s80, s80, CODE_LINES*128
    v_lshl_add_u32 v13, v0, 7, s80
    v_cmp_gt_u32 vcc, {'CODE_LINES' if opt.get('ctouch',1) else 0}, v0
    v_lshrrev_b32 v1, 6, v0
    s_and_saveexec_b64 s[80:81], vcc
    s_cbranch_execz Lnotouch
    global_load_dword v63, v13, s[82:83] {opt.get('cnt','')}
    Lnotouch:
    s_mov_b64 exec, -1
    v_readfirstlane_b32 s3, v1
    v_and_b32 v0, 63, v0
    v_mov_b32 v{B}, v0
    s_cmp_eq_u32 s3, 3
    s_cbranch_scc1 Lw3
    """)
    pp0.kgen_addr(p)
    p("s_waitcnt lgkmcnt(0)"); pp0.kgen_loads(p,opt)
    p("s_branch Lcommon\nLw3:")
    pp0.ln_issue(p)
    p(f"s_mov_b32 s84, {OOB}\ns_mov_b32 s{sKO}, 0\ns_waitcnt lgkmcnt(0)"); pp0.ln_loads(p,opt)
    p(f"""
    Lcommon:
    s_add_u32 s80, s{sWS}, {F_EPOCH}
    s_addc_u32 s81, s{sWS+1}, 0
    s_load_dword s{sTAG}, s[80:81], 0
    s_load_dwordx2 s[{sWd}:{sWd+1}], s[0:1], {KA['Wd']}
    s_load_dwordx2 s[{sOP}:{sOP+1}], s[0:1], {KA['out']}
    s_mov_b32 s{sWg+2}, {WB}
    s_mov_b32 s{sWg+3}, 0x20000
    s_sub_u32 s{sWu}, s{sS}, 1024
    s_subb_u32 s{sWu+1}, s{sS+1}, 0
    s_mov_b32 s{sWu+2}, {WB+1024}
    s_mov_b32 s{sWu+3}, 0x20000
    """)
    pg.setup_min(p)
    pp0.cold_addr(p)
    early=opt.get('early',0); cold=pp0.cold_part(opt)
    if early: p.ext(cold); cold=[]
    p(f"s_mov_b32 s{sWS+2}, {WSZ}\ns_mov_b32 s{sWS+3}, 0x20000")
    pg.setup_min2(p)
    p(f"""
    s_cmp_lg_u32 s3, 3
    s_cbranch_scc1 Lkg
    """)
    pp0.service_addr(p)
    pp0.ln_compute(p,6*early,cold)
    p.ext(stamp('ln'))
    pp0.service(p,opt)
    p.ext(stamp('svc'))
    p(f"s_sub_u32 s80, s31, {3*128}")
    p.ext(resolve_waits([cx.poll_issue(13,12,80)]+cx.poll_check(13,12,80)))
    g0=pg.G1(opt,cx)
    mid=stamp('join')+[Ins('s_barrier')]+stamp('flag')+g0.x0
    p("s_branch Lmid\nLkg:\ns_cmp_ge_u32 s2, 192\ns_cbranch_scc1 Lnok")
    pp0.kgen(p,6*early,cold,opt.get('kmid',56),mid)
    p("s_waitcnt vmcnt(4)\ns_branch Ljoin\nLnok:\ns_waitcnt vmcnt(0)"); p.ext(cold); p("s_waitcnt vmcnt(0)")
    p.ext(stamp('ln')+stamp('lnf')+stamp('svc'))
    p("Lmid:"); p.ext(mid); p("s_waitcnt vmcnt(0)\nLjoin:")
    errs=[]
    head_=stamp('kend')+g0.pro+[Ins('s_barrier')]
    import copy
    C=8*144
    def sub(g,i0,i1,f):
        sh=lambda d:{k-i0:v for k,v in d.items() if i0<=k<i1}
        return f(g.mf[i0:i1],sh(g.pre),sh(g.post),[(a-i0,e-i0,o) for a,e,o in g.streams if i0<=a<i1])
    def clone(g):
        h=copy.copy(g); h.mf=list(g.mf); h.streams=list(g.streams)
        h.pre={k:list(v) for k,v in g.pre.items()}; h.post={k:list(v) for k,v in g.post.items()}; return h
    pref=head_+sub(g0,0,C,fill)
    gA=clone(g0); XR,NSEC=pg.add_g2(gA,cx)
    fc,ff,fs=pg.final(cx,XR,NSEC,opt); base=pref+sub(gA,C,1<<20,fill)+fc
    A=auto_nop(resolve_waits(auto_lgkm2(base+ff)))
    A2=auto_nop(resolve_waits(auto_lgkm2(base+fs)))
    k=[i for i,x in enumerate(A2) if 'Lfin_slow' in x.text][0]
    A=A+[Ins("s_branch Lfin_end"),Ins("Lfin_slow:")]+A2[k+1:]+[Ins("Lfin_end:")]
    gB=clone(g0); tail=pssm.add_ssm(gB,cx)
    Bs=auto_nop(resolve_waits(auto_lgkm2(pref+sub(gB,C,1<<20,fill2)+tail)))
    if opt.get('exp'):
        k=0; o=[]
        for x in A:
            if x.kind=='mfma': k+=1
            inr = 8*(162+46)<k<=8*(162+70)
            if inr and 'novm' in opt['exp'] and x.kind in('vm_load','vm_dma') and x.tag and x.tag[0] in('w2','h2'): continue
            if inr and 'now' in opt['exp'] and x.kind=='vm_dma': continue
            if inr and 'noh' in opt['exp'] and x.kind=='vm_load' and x.tag and x.tag[0]=='h2': continue
            if inr and 'nobar' in opt['exp'] and x.kind=='barrier': continue
            if inr and 'nords' in opt['exp'] and x.kind=='ds_read': continue
            o.append(x)
        A=o
    def cut(l):
        k=0
        for i,x in enumerate(l):
            if x.kind=='mfma':
                if k==8*144: return i
                k+=1
    ca,cb=cut(A),cut(Bs)
    assert [x.text for x in A[:ca]]==[x.text for x in Bs[:cb]], "prefix differs"
    print("gaps common",gapstats(A[:ca]),"\n g2role",gapstats(A[ca:]),"\n ssmrole",gapstats(Bs[cb:]))
    p.ext(A[:ca]); p("s_cmp_ge_u32 s2, 192\ns_cbranch_scc1 Lrole_ssm")
    p.ext(A[ca:])
    amp(p,opt)
    if opt.get('amp') is not None: MODE['stamp']=None
    if MODE['stamp']: p("s_waitcnt vmcnt(0)");
    stamp_flush(p,0)
    if MODE['stamp']:
        p(f"{'s_memrealtime' if MODE['stamp']=='rt' else 's_memtime'} s[62:63]\ns_waitcnt lgkmcnt(0)\nv_mov_b32 v1, s62\nbuffer_store_dword v1, v0, s[{sWS}:{sWS+3}], s60 offen offset:32")
    span(p,opt)
    p("s_endpgm\nLrole_ssm:")
    p.ext(Bs[cb:])
    stamp_flush(p,1)
    if MODE['stamp']:
        p(f"{'s_memrealtime' if MODE['stamp']=='rt' else 's_memtime'} s[62:63]\ns_waitcnt lgkmcnt(0)\nv_mov_b32 v1, s62\nbuffer_store_dword v1, v0, s[{sWS}:{sWS+3}], s60 offen offset:32")
    span(p,opt); probe_chk(p,opt)
    p("Lend:\ns_endpgm")
    for nm,tk in (('g2/kg',('Lkg','Lnotouch')),('g2/kg0',('Lkg','Lfin_x','Lfin_z')),('g2/slow',('Lkg','Lfin_slow')),('g2/slow2',('Lkg','Lfin_x','Lfin_slow','Lfin_z2')),('g2/w3',('Lw3','Lnotouch')),('ssm/nok',('Lkg','Lnok','Lrole_ssm','Lnotouch')),('ssm/w3',('Lw3','Lrole_ssm','Lnotouch'))):
        errs+=check(follow(p.l,tk),nm)
    for e in errs[:5]: print("HAZARD:",e)
    if errs and not opt.get('exp'): raise SystemExit("refusing to write a build with hazards")
    txt=head(NAME)+p.text()+"".join(cx.ool)+"Lcode_end:\n"
    return txt
def build_file(path,opt):
    from build import HEADER
    import subprocess
    import os
    if os.path.exists(path): os.remove(path)
    txt=gen(opt)
    pre=HEADER+"; @launch grid=(256,1,1) block=(256,1,1) lds=163840\n"+'.amdgcn_target "amdgcn-amd-amdhsa--gfx950"\n'
    open('sz.s','w').write(pre+txt.replace("CODE_LINES*128","2560").replace("CODE_LINES","20")+kd(NAME,512,256))
    subprocess.run(["clang","-x","assembler","-target","amdgcn-amd-amdhsa","-mcpu=gfx950","-c","sz.s","-o","sz.o"],check=True)
    sym=subprocess.run(["llvm-readelf","-s","sz.o"],capture_output=True,text=True).stdout
    ad={l.split()[-1]:int(l.split()[1],16) for l in sym.split('\n') if l.strip().endswith(('Lpc','Lcode_end'))}
    size=ad['Lcode_end']-ad['Lpc']; n=size//128//32
    print("code bytes",size,"lines/wg",n)
    src=pre+txt.replace("CODE_LINES*128",str(n*128)).replace("CODE_LINES",str(n)).replace("Lcode_end:\n","")+kd(NAME,512,256)
    open(path,'w').write(src)
    import mbh
    co=mbh.build(path,NAME,14,lists=True)
    print("srdcheck:",mbh.cl.address_register_problem(co,NAME),"size",len(src))
if __name__=="__main__":
    build_file(sys.argv[1], json.loads(sys.argv[2]) if len(sys.argv)>2 else {})
```

```python
from pcommon import *
K1C = -2*math.sqrt(2/math.pi)*LOG2E
GK0 = K1C; GK1 = K1C*0.044715
RING=16; NR=3; HP=40; ACC=64
F_HC=F_HA+0x8000
sM2=70; sWO=71; sH2=72; sPO=73; sFA=74; sFP=75; sFQ=76; sFS=77; sFX=78; sTW=79
sPS=[0,1,28]; sSO=29; sSX=59; sFR=30
R2BASE=8192
def xreg(b,t):
    i=4*b+t
    return f"a[{4*i}:{4*i+3}]" if i<64 else f"v[{224+4*(i-64)}:{224+4*(i-64)+3}]"
def hreg(b,t,lo=0,n=4):
    i=2*b+t
    return (f"a[{4*i+lo}:{4*i+lo+n-1}]" if i<64 else f"v[{224+4*(i-64)+lo}:{224+4*(i-64)+lo+n-1}]")

NWD=[27]
def setup_min(p):
    p(f"""
    s_and_b32 s80, s2, 7                     ; quad
    s_mul_i32 s80, s80, 1152
    s_lshr_b32 s81, s2, 6                    ; i
    s_lshl_b32 s81, s81, 8
    s_add_u32 s80, s80, s81
    s_mul_i32 s81, s3, {8*9216}
    s_add_u32 s80, s80, s81
    s_and_b32 s81, s3, 1
    s_lshl_b32 s81, s81, 1
    s_lshl_b32 s{sM0}, s3, 11
    v_lshrrev_b32 v10, 3, v0
    v_bfe_u32 v11, v0, 4, 1
    v_or_b32 v11, s81, v11
    v_bfe_u32 v12, v0, 1, 2
    v_xor_b32 v11, v11, v12
    v_lshlrev_b32 v1, 4, v0
    v_and_b32 v12, 16, v1
    v_mul_u32_u24 v2, 9216, v10
    v_lshl_add_u32 v2, v11, 5, v2
    v_add3_u32 v2, v2, v12, s80
    """)
def setup_min2(p):
    p(f"""
    s_bfe_u32 s80, s2, 0x30003               ; mt
    s_lshl_b32 s80, s80, 2
    s_add_u32 s80, s80, s3                   ; tok64
    s_lshl_b32 s31, s80, 7
    s_add_u32 s31, s31, {F_LN}
    s_mul_i32 s{sXO}, s80, {18*4096}
    v_lshrrev_b32 v10, 4, v0
    v_bfe_u32 v11, v0, 2, 2
    v_and_b32 v12, 3, v0
    v_lshlrev_b32 v12, 3, v12
    v_lshl_add_u32 v4, v10, 11, v12
    v_lshl_add_u32 v4, v11, 7, v4
    v_bfe_u32 v13, v0, 3, 2
    v_lshl_add_u32 v4, v13, 5, v4
    v_xor_b32 v5, 32, v4
    v_xor_b32 v6, 64, v4
    v_xor_b32 v7, 96, v4
    v_and_b32 v13, 0x1f0, v1
    """)
def setup_late(p):
    p(f"""
    s_and_b32 s60, s2, 7
    s_lshr_b32 s61, s2, 3                    ; idx
    s_lshr_b32 s67, s60, 1                   ; ks
    s_lshr_b32 s69, s2, 6                    ; i
    s_mul_i32 s63, s60, 1152
    s_lshl_b32 s64, s69, 8
    s_add_u32 s64, s64, s63
    s_and_b32 s65, s61, 7
    s_lshl_b32 s65, s65, 1
    s_lshr_b32 s66, s3, 1
    s_add_u32 s65, s65, s66
    s_mul_i32 s68, s65, 36
    v_add_u32 v57, s68, v0
    v_mul_u32_u24 v57, 9216, v57
    s_add_u32 s68, s64, 128
    v_add_u32 v57, s68, v57
    v_cmp_gt_u32 vcc, 36, v0
    v_mov_b32 v60, {OOB}
    s_lshl_b32 s68, s69, 4
    s_add_u32 s68, s68, s65
    s_mul_i32 s68, s68, 9
    v_cndmask_b32 v57, v60, v57, vcc
    v_add_u32 v59, s68, v0
    v_mul_u32_u24 v59, 9216, v59
    s_add_u32 s68, s63, 1024
    v_add_u32 v59, s68, v59
    v_cmp_gt_u32 vcc, 9, v0
    s_lshl_b32 s65, s69, 5
    s_add_u32 s65, s65, s63
    v_cndmask_b32 v59, v60, v59, vcc
    v_cmp_gt_u32 vcc, {NWD[0]}, v0
    v_lshlrev_b32 v58, 7, v0
    s_nop 0
    v_cndmask_b32 v58, v60, v58, vcc
    v_mov_b32 v192, {OOB}
    v_writelane_b32 v192, s84, 0
    s_and_b32 s68, s61, 7
    s_lshl_b32 s84, s60, 3
    s_add_u32 s84, s84, s68
    s_lshl_b32 s84, s84, 7
    s_add_u32 s84, s84, {F_K}
    s_lshl_b32 s83, s3, 10
    s_add_u32 s83, s83, {F_LN}
    s_bitcmp1_b32 s3, 0
    s_cselect_b32 s{sS}, s{sS}, s{sWg}
    s_cselect_b32 s{sS+1}, s{sS+1}, s{sWg+1}
    s_mov_b32 s{sS+2}, {WB}
    s_mov_b32 s{sS+3}, 0x20000
    """)
    for b in range(18): p(f"s_mov_b32 s{SK+b}, {b*32*9216}")
    n1=len(p.l)
    p(f"""
    s_add_u32 s65, s65, 1024
    s_mul_i32 s66, s66, {32*9216}
    s_add_u32 s65, s65, s66
    s_lshl_b32 s{sM0S}, s3, 10
    s_mov_b32 s{sGK}, {fhex(GK1)}
    v_mov_b32 v8, {fhex(GK0)}
    v_and_b32 v12, 16, v1
    v_bfe_u32 v10, v0, 1, 2
    v_bfe_u32 v11, v0, 3, 1
    v_lshl_add_u32 v10, v11, 3, v10
    v_bfe_u32 v11, v0, 4, 1
    v_lshl_add_u32 v10, v11, 2, v10
    v_bfe_u32 v11, v0, 5, 1
    v_lshl_add_u32 v10, v11, 4, v10
    v_mul_u32_u24 v3, 9216, v10
    v_add3_u32 v3, v3, v12, s65
    v_and_b32 v12, 3, v0
    v_lshlrev_b32 v12, 3, v12
    v_bfe_u32 v13, v0, 3, 2
    v_bfe_u32 v11, v0, 2, 3                  ; 4*(g&1)+e
    v_lshl_add_u32 v9, v11, 5, v12
    v_lshrrev_b32 v10, 5, v0
    v_lshl_add_u32 v9, v10, 9, v9
    v_mul_u32_u24 v10, 3072, v10
    v_lshl_add_u32 v10, v11, 7, v10
    v_lshl_add_u32 v10, v13, 5, v10
    v_add_u32 v56, v10, v12
    v_add_u32 v56, {R2BASE}, v56
    s_sub_u32 s62, s31, {F_LN}
    s_lshr_b32 s62, s62, 7                   ; tok64
    s_lshl_b32 s68, s62, 3
    s_add_u32 s68, s68, s60
    s_lshl_b32 s68, s68, 2
    s_add_u32 s68, s68, s69
    s_lshl_b32 s68, s68, 4
    s_add_u32 s68, s68, {F_HA}
    v_mov_b32 v14, {OOB}
    v_writelane_b32 v14, s68, 0
    s_mul_i32 s63, s62, 144
    s_mul_i32 s64, s60, 18
    s_add_u32 s63, s63, s64
    s_add_u32 s63, s63, {WS_H//4096}
    s_lshl_b32 s64, s69, 2
    s_add_u32 s64, s64, s63
    s_lshl_b32 s{sHO}, s64, 12
    s_add_u32 s{sHO+1}, s{sHO}, 4096
    s_add_u32 s{sHO+2}, s{sHO}, 8192
    s_add_u32 s{sHO+3}, s{sHO}, 12288
    s_lshr_b32 s64, s69, 1
    s_add_u32 s64, s64, s63
    s_add_u32 s64, s64, 16
    s_lshl_b32 s64, s64, 12
    s_and_b32 s65, s69, 1
    s_lshl_b32 s65, s65, 10
    s_add_u32 s{sHO+4}, s64, s65
    s_sub_u32 s{sWd}, s{sWd}, 2048
    s_subb_u32 s{sWd+1}, s{sWd+1}, 0
    s_mov_b32 s{sWd+2}, {WB+2048}
    s_mov_b32 s{sWd+3}, 0x20000
    s_lshl_b32 s63, s61, 2
    s_add_u32 s63, s63, s3
    s_mul_i32 s63, s63, 5184
    s_mul_i32 s{sWO}, s67, {1152*1152}
    s_add_u32 s63, s63, s{sWO}
    s_add_u32 s63, s63, 2048
    s_and_b32 s64, s2, 1
    s_mul_i32 s64, s64, {18*36864}
    s_add_u32 s{sTW}, s63, s64
    s_sub_u32 s63, s63, s64
    s_add_u32 s31, s63, {18*36864}
    s_lshl_b32 s82, s2, 2
    s_add_u32 s82, s82, s3
    s_mul_i32 s82, s82, 2304
    """)
    return n1
def setup_g2(p):
    p(f"""
    s_and_b32 s60, s2, 1
    s_lshl_b32 s60, s60, 3
    s_and_b32 s63, s61, 7
    s_add_u32 s60, s60, s63                  ; mt128
    s_lshr_b32 s61, s61, 3                   ; nt
    s_lshl_b32 s62, s60, 1
    s_lshr_b32 s63, s3, 1
    s_add_u32 s62, s62, s63                  ; tok64
    s_lshl_b32 s64, s62, 2
    s_add_u32 s64, s64, s67
    s_lshl_b32 s64, s64, 7
    s_add_u32 s{sFA}, s64, {F_HA}
    s_and_b32 s63, s3, 1
    s_lshl_b32 s63, s63, 11                  ; tb0*1024
    s_mul_i32 s64, s62, 144
    s_mul_i32 s65, s67, 36
    s_add_u32 s64, s64, s65
    s_lshl_b32 s64, s64, 12
    s_add_u32 s64, s64, s63
    s_add_u32 s{sH2}, s64, {WS_H}
    s_and_b32 s69, s61, 1
    s_mul_i32 s69, s69, 18
    s_and_b32 s64, s61, 2
    s_add_u32 s69, s69, s64
    s_lshl_b32 s64, s69, 12
    s_add_u32 s{sPO}, s64, s{sH2}
    s_mul_i32 s65, s61, 6
    s_lshl_b32 s64, s60, 2
    s_add_u32 s64, s64, s67
    s_lshl_b32 s64, s64, 2
    s_add_u32 s64, s64, s3
    s_lshl_b32 s64, s64, 7
    s_add_u32 s{sFR}, s64, {F_R}
    s_mul_i32 s64, s60, 3
    s_add_u32 s64, s64, s61
    s_lshl_b32 s64, s64, 9
    s_add_u32 s64, s64, {F_P}
    s_lshl_b32 s66, s3, 7
    s_lshl_b32 s68, s67, 4
    s_add_u32 s66, s66, s68
    s_add_u32 s{sFP}, s64, s66
    s_mov_b32 s77, s{sFP}
    s_lshl_b32 s66, s67, 7
    s_add_u32 s{sFQ}, s64, s66
    s_lshl_b32 s62, s60, 1
    s_lshr_b32 s63, s67, 1
    s_add_u32 s62, s62, s63
    s_mul_i32 s62, s62, 144
    s_add_u32 s62, s62, s69
    s_lshr_b32 s64, s3, 1                    ; h
    s_add_u32 s62, s62, s64
    s_lshl_b32 s62, s62, 2
    s_and_b32 s63, s67, 1
    s_lshl_b32 s63, s63, 1
    s_and_b32 s66, s3, 1
    s_add_u32 s63, s63, s66
    s_add_u32 s62, s62, s63
    s_lshl_b32 s62, s62, 10
    s_add_u32 s62, s62, {WS_H}
    s_add_u32 s63, s67, 1
    s_and_b32 s63, s63, 3
    s_mul_i32 s63, s63, {36*4096}
    s_add_u32 s{sPS[0]}, s62, s63
    s_add_u32 s63, s67, 2
    s_and_b32 s63, s63, 3
    s_mul_i32 s63, s63, {36*4096}
    s_add_u32 s{sPS[1]}, s62, s63
    s_add_u32 s63, s67, 3
    s_and_b32 s63, s63, 3
    s_mul_i32 s63, s63, {36*4096}
    s_add_u32 s{sPS[2]}, s62, s63
    s_lshl_b32 s62, s60, 2
    s_add_u32 s62, s62, s67
    s_lshl_b32 s62, s62, 1
    s_add_u32 s62, s62, s66                  ; T0/16
    s_add_u32 s65, s65, s64
    s_lshl_b32 s63, s62, 5
    s_lshl_b32 s64, s64, 17
    s_add_u32 s63, s63, s64
    s_add_u32 s{sSX}, s63, {WS_SX}
    s_lshl_b32 s63, s62, 8
    s_lshl_b32 s64, s65, 17
    s_add_u32 s63, s63, s64
    s_add_u32 s{sSO}, s63, {WS_K}
    s_mul_i32 s62, s62, {16*1152}
    s_lshl_b32 s65, s65, 6
    s_add_u32 s{sFX}, s62, s65
    s_mul_i32 s64, s61, 384
    s_mul_i32 s65, s3, {8*1152}
    s_add_u32 s64, s64, s65
    s_add_u32 s64, s64, 2048
    s_mul_i32 s{sM2}, s3, 3072
    s_add_u32 s{sM2}, s{sM2}, {R2BASE}
    v_lshrrev_b32 v10, 3, v0
    v_lshrrev_b32 v11, 4, v0
    v_bfe_u32 v12, v0, 1, 2
    v_xor_b32 v11, v11, v12
    v_and_b32 v12, 1, v0
    v_lshlrev_b32 v12, 4, v12
    v_mul_u32_u24 v10, 1152, v10
    v_lshl_add_u32 v10, v11, 5, v10
    v_add3_u32 v61, v10, v12, s64
    v_and_b32 v62, 0x70, v1
    """)

HST=['sc1']; PKOPT=['']
def gelu_ops(c, aset):
    ops=[]; base=ACC+32*aset
    for t in range(4):
        o=[]
        g=[base+4*t+j for j in range(4)]; u=[base+16+4*t+j for j in range(4)]
        tm=[10+(4*t+j)%4 for j in range(4)]
        PKM=PKOPT[0]
        pr=lambda r:f"v[{r}:{r+1}]"
        for j in (0,2):
            def two(key,pk,sc):
                if key in PKM: o.append(pk)
                else: o.extend([sc(j),sc(j+1)])
            two('a',f"v_pk_mul_f32 {pr(tm[j])}, {pr(g[j])}, {pr(g[j])}",lambda k:f"v_mul_f32 v{tm[k]}, v{g[k]}, v{g[k]}")
            two('b',f"v_pk_mul_f32 {pr(u[j])}, {pr(u[j])}, {pr(g[j])}",lambda k:f"v_mul_f32 v{u[k]}, v{u[k]}, v{g[k]}")
            two('c',f"v_pk_fma_f32 {pr(tm[j])}, {pr(tm[j])}, s[{sGK}:{sGK+1}], v[8:9] op_sel_hi:[1,0,0]",lambda k:f"v_fma_f32 v{tm[k]}, v{tm[k]}, s{sGK}, v8")
            two('d',f"v_pk_mul_f32 {pr(g[j])}, {pr(tm[j])}, {pr(g[j])}",lambda k:f"v_mul_f32 v{g[k]}, v{tm[k]}, v{g[k]}")
            o+=[f"v_exp_f32 v{g[j]}, v{g[j]}",f"v_exp_f32 v{g[j+1]}, v{g[j+1]}"]
        for j in (0,2):
            if 'e' in PKM: o.append(f"v_pk_add_f32 {pr(g[j])}, {pr(g[j])}, 1.0 op_sel_hi:[1,0]")
            else: o+=[f"v_add_f32 v{g[j]}, 1.0, v{g[j]}",f"v_add_f32 v{g[j+1]}, 1.0, v{g[j+1]}"]
            o+=[f"v_rcp_f32 v{g[j]}, v{g[j]}",f"v_rcp_f32 v{g[j+1]}, v{g[j+1]}"]
        for j in (0,2):
            if 'f' in PKM: o.append(f"v_pk_mul_f32 {pr(u[j])}, {pr(u[j])}, {pr(g[j])}")
            else: o+=[f"v_mul_f32 v{u[j]}, v{u[j]}, v{g[j]}",f"v_mul_f32 v{u[j+1]}, v{u[j+1]}, v{g[j+1]}"]
        d=HP+4*t+2*(c&1) if c<8 else HP+2*t
        o+=[f"v_cvt_pk_bf16_f32 v{d}, v{u[0]}, v{u[1]}", f"v_cvt_pk_bf16_f32 v{d+1}, v{u[2]}, v{u[3]}"]
        if c<8 and c&1: o.append(f"buffer_store_dwordx4 v[{HP+4*t}:{HP+4*t+3}], v1, s[{sWS}:{sWS+3}], s{sHO+c//2} offen offset:{1024*t} {HST[0]}")
        if c==8 and t&1: o.append(f"buffer_store_dwordx4 v[{HP+2*t-2}:{HP+2*t+1}], v1, s[{sWS}:{sWS+3}], s{sHO+4} offen offset:{1024*(t-1)} {HST[0]}")
        ops.append([Ins(x,('hst',c//2)) for x in o])
    return ops

def flag_store(off,so='0'): return Ins(f"buffer_store_dword v15, v14, s[{sWS}:{sWS+3}], {so} offen offset:{off} sc1",'flag')
def touch(areg, srd_, so, fl, off=0): return Ins(f"buffer_load_dword v63, v{areg}, s[{srd_}:{srd_+3}], {so} offen offset:{off} {fl}",'touch')

class G1:
    def __init__(s, opt, cx):
        s.opt=opt; HST[0]=opt.get('hst','sc1'); PKOPT[0]=opt.get('pk',''); TF=opt.get('tf',''); hwd=opt.get('hwd',(85,)); NWD[0]=41
        HU=[]
        M4=opt.get('m4',3); first={}
        for j in range(9):
            first[j]=len(HU)
            for c in range(4 if j<M4 else 3):
                for m in range(2): HU.append((c,m,j))
        def seg(c,j0,j1):
            for j in range(j0,j1):
                for m in range(2): HU.append((c,m,j))
        seg(3,M4,9); seg(4,0,3); seg(5,0,3); seg(6,0,3); seg(4,3,9); seg(7,0,3); seg(5,3,9); seg(6,3,9); seg(7,3,9); seg(8,0,9)
        s.HU=HU; nH=len(HU)
        aset={0:0,1:1,2:2,3:3,4:4,5:0,6:1,7:2,8:3}; s.aset=aset
        def slot_addr(c,m,j,k):
            b=2*j+k
            if c<4: return b*8192+m*1024
            if c<8: return ((18+b)%20)*8192+m*1024
            return ((36+j//2)%20)*8192+(j&1)*4096+k*2048+m*1024
        win={r:0 for r in (4,5,6,7,9)}
        def reads(h):
            c,m,j=HU[h]; r=9 if c==8 else 4+c%4; R=RING+8*(h%NR); o=[]
            w=slot_addr(c,m,j,0)>>16
            if w!=win[r]:
                o.append(Ins(f"v_add_u32 v{r}, {((w-win[r])*65536)&0xffffffff}, v{r}")); win[r]=w
            d2=256 if c==8 else 512
            for k in range(2):
                a=slot_addr(c,m,j,k)-w*65536
                o.append(Ins(f"ds_read_b64_tr_b16 v[{R+4*k}:{R+4*k+1}], v{r} offset:{a}",('r1',h)))
                o.append(Ins(f"ds_read_b64_tr_b16 v[{R+4*k+2}:{R+4*k+3}], v{r} offset:{a+d2}",('r1',h)))
            return o
        XF=opt.get('xf','sc1'); WF=opt.get('wf','')
        def xload(b):
            o=[[Ins(f"buffer_load_dwordx4 {xreg(b,t)}, v1, s[{sWS}:{sWS+3}], s{sXO} offen offset:{1024*t} {XF}",('x',b))] for t in range(4)]
            if b<17: o[3].append(Ins(f"s_add_u32 s{sXO}, s{sXO}, 4096"))
            return o
        def wload(grp,b):
            sl=(18*grp+b)%20
            return [[Ins(f"s_add_u32 m0, s{sM0}, {sl*8192}")],
                    [Ins(f"buffer_load_dwordx4 v2, s[{sWg}:{sWg+3}], s{SK+b} offen {WF} lds",('w',grp,b))],
                    [Ins(f"buffer_load_dwordx4 v2, s[{sWu}:{sWu+3}], s{SK+b} offen offset:1024 {WF} lds",('w',grp,b))]]
        def sload(j):
            return [[Ins(f"s_add_u32 m0, s{sM0S}, {slot_addr(8,0,j,0)}")],
                    [Ins(f"buffer_load_dwordx4 v3, s[{sS}:{sS+3}], s{SK+2*j} offen {WF} lds",('s',j))]]
        NX0=opt.get('nx0',2)
        s.x0=sum((g for b in range(NX0) for g in xload(b)),[])
        s.pro=reads(0)+reads(1)
        pre={}; post={}; mf=[]
        s.pre,s.post,s.mf=pre,post,mf
        for h,(c,m,j) in enumerate(HU):
            R=RING+8*(h%NR)
            for t in range(4):
                d=ACC+32*aset[c]+16*m+4*t
                for k in range(2):
                    cc="0" if (j==0 and k==0) else f"v[{d}:{d+3}]"
                    mf.append(Ins(f"v_mfma_f32_16x16x32_bf16 v[{d}:{d+3}], v[{R+4*k}:{R+4*k+3}], {xreg(2*j+k,t)}, {cc}"))
            pre.setdefault(8*h,[]).append(WaitLG([('r1',h)]))
            if h+2<nH:
                r=reads(h+2)
                if len(r)==5: pre[8*h].insert(0,r.pop(0))
                post.setdefault(8*h,[]).extend(r[:2]); post.setdefault(8*h+opt.get('rp1',4),[]).extend(r[2:])
        for j in range(1,9): pre[8*first[j]].append(WaitVM([('x',2*j),('x',2*j+1)]))
        assert NX0==2
        XE=opt.get('xend',38)
        xs=[xload(b) for b in range(NX0,18)]
        kp=opt.get('p8at',8)
        s.place(sum(xs[:kp],[])+wload(0,16)+xs[kp]+wload(0,17)+[[Ins("v_add_u32 v2, 128, v2")]]+sum(xs[kp+1:],[]),0,XE)
        ht=opt.get('ht',XE-1)
        post.setdefault(8*ht+7,[]).append(touch(57,sS,0,opt.get('tf1','')))
        if opt.get('ht2') is not None: post.setdefault(8*opt['ht2']+7,[]).append(touch(57,sS,0,'sc1'))
        post.setdefault(8*(ht-1)+7,[]).append(Ins(f"buffer_store_dword v15, v192, s[{sWS}:{sWS+3}], 0 offen sc1",'flag'))
        b1=opt.get('b1',first[8]-2); assert b1<=first[8]-2 and b1>=8*M4 and M4>=2
        pre[8*b1].append(WaitVM([('w',0,16),('w',0,17)],True))
        n1=min(2+2*M4,opt.get('n1',12))
        s.place(sum((wload(1,b) for b in range(n1)),[]),max(b1,opt.get('hd',54)),opt.get('hd1',64))
        pre[8*70].append(WaitVM([('w',1,b) for b in range(6)],True))
        he=opt.get('he',78)
        s.place(sum((wload(1,b) for b in range(n1,18)),[]),70,he)
        if opt.get('b94'):
            pre[8*88].append(WaitVM([('w',1,b) for b in range(12)],True)); pre[8*94].append(WaitVM([('w',1,b) for b in range(18)],True))
        else: pre[8*88].append(WaitVM([('w',1,b) for b in range(18)],True))
        s.place([[Ins("v_min_u32 v2, 8, v0"),Ins("v_lshlrev_b32 v2, 3, v2")],[cx.poll_issue(1,57,83)]],he,he+1)
        c1=cx.poll_check(1,57,83)
        s.place([[cx.poll_issue(2,2,84)]],he+1,he+2)
        c2=cx.poll_check(2,2,84,pre="v_min_u32 v2, 8, v0\n    v_lshlrev_b32 v2, 3, v2")
        pre[8*opt.get('hchk',100)]+=c1+c2
        post.setdefault(8*(hwd[0]-1)+5,[]).append(touch(59,sS,0,TF))
        for hh,so in zip(hwd,(sTW,31)): post.setdefault(8*hh+5,[]).append(touch(58,sWd,f"s{so}",TF))
        hx=opt.get('hx',0)
        if hx:
            s.place([[Ins("v_min_u32 v2, 17, v0"),Ins("v_lshl_add_u32 v2, v2, 7, s82")]],hx-1,hx)
            post.setdefault(8*hx+4,[]).append(Ins(f"global_load_dword v63, v2, s[{sXP}:{sXP+1}]",'touch'))
        if opt.get('prealloc',1): post.setdefault(8*hwd[0]+1,[]).append(Ins(f"buffer_store_dword v15, v60, s[{sWS}:{sWS+3}], 0 offen offset:12 sc1",'flag'))
        pre[8*108].append(WaitVM([],True))
        s0,s1=opt.get('srange',(112,134))
        s.place(sum((sload(j) for j in range(9)),[]),s0,s1); assert s0+(s1-s0)*4//9>=108
        hf=opt.get('hfa',122)
        pre[8*hf]+=[WaitVM([('hst',1)])]; post.setdefault(8*hf+1,[]).append(flag_store(0))
        if opt.get('htouch',0): post.setdefault(8*hf+4,[]).append(touch(60,sWS,f"s{sHO}",''))
        pre[8*142].append(WaitVM([('s',j) for j in range(9)],True))
        for h in range(nH): pre[8*h]+=stamp(f'g1_{h}')
        G=lambda c:gelu_ops(c,aset[c])
        import pssm
        q=Prog(); n1_=setup_late(q); setup_g2(q); sel=pssm.setup_ssm_sel()
        s.streams=[(0,8*opt.get('su1',14),glue_scc(q.l[:n1_])),(0,8*(first[8]+2),glue_scc(q.l[n1_:]+sel+[Ins("v_mov_b32 v60, v14"),Ins(f"v_writelane_b32 v60, s{sFR}, 1"),Ins("v_writelane_b32 v60, s77, 2")]))]
        g0=8*(first[8]+2); Lg=(8*162-g0)/8; wb=[int(g0+c*Lg) for c in range(9)]
        last={c:max(h for h,x in enumerate(HU) if x[0]==c) for c in range(9)}; fst={c:min(h for h,x in enumerate(HU) if x[0]==c) for c in range(9)}
        for c in range(8):
            assert wb[c]>=8*(last[c]+1),(c,wb[c],last[c])
            if c+5<9: assert wb[c+1]<=8*fst[c+5],(c,wb[c+1],fst[c+5])
            ops=sum(G(c),[])
            if c in opt.get('stlate',(1,)):
                stv=[x for x in ops if x.kind=='vm_store']; ops=[x for x in ops if x.kind!='vm_store']; n_=len(ops)
                for t in (3,2,1,0): ops.insert(n_-(3-t)*opt.get('stsp',11),stv[t])
            a_,e_=wb[c]+(1 if wb[c]==8*(last[c]+1) else 0),wb[c+1]
            if a_<8*144<e_:
                k=int(len(ops)*(8*144-a_)/(e_-a_)); s.streams+=[(a_,8*144,ops[:k]),(8*144,e_,ops[k:])]
            else: s.streams.append((a_,e_,ops))
        s.gS=sum(G(8),[])
    def place(s,groups,h0,h1,offs=(1,2,3,4,5,6)):
        gaps=[8*h+o for h in range(h0,h1) for o in offs if not (s.post.get(8*h+o))]
        assert len(groups)<=len(gaps),(len(groups),len(gaps))
        for i,g in enumerate(groups): s.post.setdefault(gaps[i*len(gaps)//len(groups)],[]).extend(g)

SEQ=[18*Q+4*i for Q in range(2) for i in range(4)]+[18*Q+4*i+2 for Q in range(2) for i in range(4)]+[16,34]
RG=[192,208,16]; AW=[[4,5,6,7],[32,33,34,35],[36,37,38,39]]; PK=40
def add_g2(s, cx):
    opt=s.opt; pre,post,mf=s.pre,s.post,s.mf; H0=162
    NSEC=opt.get('nsec',4)
    HU=[(j,cp) for j in range(18-NSEC) for cp in range(6)]+[(j,cp) for cp in range(6) for j in range(18-NSEC,18)]
    nH=len(HU); blk=lambda n:SEQ[n//2]+(n&1)
    def reads(h):
        j,cp=HU[h]; R=RG[h%3]; o=[]
        for x in range(2):
            ct=2*cp+x
            for k in range(2):
                sl=(2*j+k)%12; r=AW[sl//4][ct&3]; a=(sl%4)*12288+(ct>>2)*1024; d=R+8*x+4*k
                o.append(Ins(f"ds_read_b64_tr_b16 v[{d}:{d+1}], v{r} offset:{a}",('r2',h)))
                o.append(Ins(f"ds_read_b64_tr_b16 v[{d+2}:{d+3}], v{r} offset:{a+6144}",('r2',h)))
        return o
    HF=opt.get('hf','sc1'); WF=opt.get('wf2','')
    DV=[[61,2,3],[58,59,60]]; HV=[1,63]
    def wl(n):
        sal=[Ins(f"s_add_u32 m0, s{sM2}, {(n%12)*12288}")]+([Ins(f"s_add_u32 s81, s{sWO}, {blk(n)*32*1152}")] if n%2==0 else [])
        return sal,[Ins(f"buffer_load_dwordx4 v{DV[n&1][jc]}, s[{sWd}:{sWd+3}], s81 offen offset:{1024*jc} {WF} lds",('w2',n)) for jc in range(3)]
    def hl(n,part=None):
        sal=[Ins(f"s_add_u32 s82, s{sH2}, {blk(n)*4096}")] if (n%2==0 and not part) else []
        if n<32: return sal,[Ins(f"buffer_load_dwordx4 {hreg(n,t)}, v{HV[n&1]}, s[{sWS}:{sWS+3}], s82 offen offset:{1024*t} {HF}",('h2',n)) for t in range(2)]
        return sal,[Ins(f"buffer_load_dwordx2 {hreg(n,t,2*part,2)}, v{HV[n&1]}, s[{sWS}:{sWS+3}], s82 offen offset:{1024*part+8*t}",('h2',n)) for t in range(2)]
    grp=lambda x:([x[0]] if x[0] else [])+[[y] for y in x[1]]
    G=lambda h:8*(H0+h)
    RP=opt.get('rp',(0,2,4,6)); VP=[g for g in range(7) if g not in RP]
    for h,(j,cp) in enumerate(HU):
        R=RG[h%3]
        for x in range(2):
            for t in range(2):
                d=ACC+8*(2*cp+x)+4*t
                for k in range(2):
                    cc="0" if (j==0 and k==0) else f"v[{d}:{d+3}]"
                    mf.append(Ins(f"v_mfma_f32_16x16x32_bf16 v[{d}:{d+3}], v[{R+8*x+4*k}:{R+8*x+4*k+3}], {hreg(2*j+k,t)}, {cc}"))
        pre.setdefault(G(h),[]).append(WaitLG([('r2',h)]))
    for h in range(-2,nH-2):
        r=reads(h+2)
        for gi,a in zip(RP,(0,2,4,6)): post.setdefault(G(h)+gi,[]).extend(r[a:a+2])
    tr=[[cx.poll_issue(62,57,sFA)],[Ins("v_subrev_u32 v2, 896, v61"),Ins("v_subrev_u32 v3, 1792, v61")],
        [Ins(f"v_add_u32 v58, {36864}, v61"),Ins(f"v_add_u32 v59, {36864-896}, v61")],[Ins(f"v_add_u32 v60, {36864-1792}, v61"),Ins("v_add_u32 v63, 4096, v1")]]
    s.place(tr,144,145)
    hA=opt.get('hA',149)
    pre[8*hA]+=cx.poll_check(62,57,sFA)
    NW=opt.get('npw',6); NHP=opt.get('nph',8)
    s.place(sum((grp(wl(n)) for n in range(4)),[])+[[Ins("v_mov_b32 v4, v56"),Ins("v_xor_b32 v5, 32, v56")],[Ins("v_xor_b32 v6, 64, v56"),Ins("v_xor_b32 v7, 96, v56")]],145,hA)
    seq=sum((grp(hl(n)) for n in range(4)),[])
    for n in range(4,max(NW,NHP)):
        if n<NW: seq+=grp(wl(n))
        if n<NHP: seq+=grp(hl(n))
    s.place(seq,hA,160); assert NHP<=16 and NW<=10 and NW%2==0 and NHP%2==0
    pre[G(-2)].append(WaitVM([(k,n) for n in range(4) for k in('w2','h2')],True))
    aw=[Ins(f"v_add_u32 v{AW[w][c]}, {49152*w}, v{AW[0][c]}") for w in (1,2) for c in range(4)]
    bars={10:range(4,6),16:range(6,8)} if NW<8 else {10:range(4,8)}
    for e in range(2,9): bars[12*e-2]=range(4*e,4*e+4)
    if NSEC==4: bars.pop(94); bars[82]=range(28,36)
    assert NSEC in (2,4)
    need={n:h for h,bl in bars.items() for n in bl}; needH=dict(need)
    if NSEC==4:
        for n in range(32,36): needH[n]=86
        pre[G(86)].append(WaitVM([('h2',n) for n in range(32,36)]))
    for h,bl in bars.items(): pre[G(h)].append(WaitVM([('w2',n) for n in bl]+[('h2',n) for n in bl if needH[n]==h],True))
    hB=opt.get('hB',30); hC=opt.get('hC',76 if NSEC==2 else 71)
    Wq=[]; Hq=[]
    for n in range(NW,36):
        ew=2 if n>=10 else 0
        if n>=12:
            last=6*((n-12)//2)+5
            ew=min(max(q, last+opt.get('warm',2) if q<last else q) for q in bars if q>=last-1)
        Wq.append((ew,need[n],12,wl(n)))
    for n in range(NHP,36):
        eh=0 if n<16 else (hB if n<32 else hC)
        Hq+=[(eh,needH[n],8,hl(n))] if n<32 else [(eh,needH[n],4,hl(n,0)),(eh,needH[n],4,hl(n,1))]
    rate=opt.get('rate2',7.3); credit=opt.get('credit2',6); log=[]
    for h in range(0,100):
        credit=min(credit+rate,opt.get('cmax2',20))
        cand=[q for q in (Wq,Hq) if q and q[0][0]<=h]
        if not cand: continue
        q=min(cand,key=lambda q:(q[0][1],q is Hq))
        if credit<q[0][2]: continue
        e,nd,by,(sal,vm)=q.pop(0); credit-=by
        assert h<=nd-opt.get('margin2',4),(h,nd,vm[0].tag)
        for k,x in enumerate(sal): post.setdefault(G(h-1)+7 if (k==0 or post.get(G(h-1)+VP[2])) else G(h-1)+VP[2],[]).append(x)
        for k,x in enumerate(vm): post.setdefault(G(h)+(VP[k] if len(vm)==3 else VP[2*k]),[]).append(x)
        log.append((h,vm[0].tag[0][0]+str(vm[0].tag[1]),nd-h)); hlast=h
        if q is Wq: hlastW=h
    assert not Wq and not Hq
    if opt.get('log'): print(log)
    s.streams.append((G(0),G(8),aw))
    gE=opt.get('gE',40)
    s.streams.append((G(0)+4,G(gE),s.gS))
    for (hh,tag,off,to) in ((opt.get('hfb',9),('hst',3),4,None),(gE+9,('hst',4),8,None)):
        pre[G(hh)]+=[WaitVM([tag])]; post.setdefault(G(hh)+7,[]).append(flag_store(off))
        if to and opt.get('htouch',0): post.setdefault(G(hh+1)+7,[]).append(touch(60,sWS,f"s{to}",''))
    for hh,off in ((hB,4),(hC,8)):
        post.setdefault(G(hh-opt.get('plead',7))+7,[]).append(cx.poll_issue(62,57,sFA,off))
        pre[G(hh)]+=cx.poll_check(62,57,sFA,off)
    for h in range(nH): pre[G(h)]+=stamp(f'g2_{h}')
    OWN=R2BASE
    su=[f"v_bfe_u32 v10, v1, 8, 1",f"v_bfe_u32 v11, v1, 9, 1","v_lshl_add_u32 v10, v10, 1, v11","v_and_b32 v11, 0xf0, v1","v_lshl_add_u32 v58, v10, 8, v11",
        "s_mul_i32 s83, s3, 12288",f"s_add_u32 s83, s83, {OWN}","v_add_u32 v59, s83, v58",
        "v_mul_u32_u24 v60, 72, v11","v_lshrrev_b32 v10, 8, v1","v_lshl_add_u32 v60, v10, 4, v60",
        "s_bfe_u32 s83, s2, 0x20001","s_mul_i32 s84, s83, 12288","s_lshl_b32 s83, s3, 10","s_add_u32 s84, s84, s83",f"s_add_u32 s84, s84, {OWN}","v_add_u32 v9, s84, v1",
        f"s_mov_b32 s{sWg}, s{sXP}",f"s_mov_b32 s{sWg+1}, s{sXP+1}",f"s_mov_b32 s{sWg+2}, {XB}",
        f"s_mov_b32 s{sWu}, s{sOP}",f"s_mov_b32 s{sWu+1}, s{sOP+1}",f"s_mov_b32 s{sWu+2}, {XB}",
        "s_bfe_u32 s83, s2, 0x20001","s_cmp_eq_u32 s83, s3",f"s_cselect_b32 s84, {OOB}, 0","v_or_b32 v58, s84, v58"]
    su+=[f"s_mov_b32 s36, {F_S}","v_and_b32 v56, 3, v0","v_max_u32 v56, 1, v56","v_add_u32 v56, s83, v56","v_and_b32 v56, 3, v56","v_lshlrev_b32 v56, 4, v56",
         "s_lshr_b32 s37, s2, 6","s_mul_i32 s84, s37, 6","s_lshr_b32 s80, s3, 1","s_add_u32 s84, s84, s80","s_lshl_b32 s84, s84, 2",
         "s_lshr_b32 s37, s37, 1","s_sub_u32 s34, 2, s37","v_lshrrev_b32 v8, 2, v0","v_min_u32 v8, s34, v8","v_and_b32 v2, 3, v0","v_lshl_add_u32 v8, v8, 3, v2","v_add_u32 v8, s84, v8",
         "s_lshl_b32 s80, s80, 5","s_sub_u32 s80, s80, 32","v_add_u32 v2, s80, v0","s_sub_u32 s35, 0, s37","s_mov_b32 s34, 0","v_cndmask_b32 v8, v8, v2, s[34:35]","v_lshlrev_b32 v8, 5, v8"]
    hR=opt.get('hR',59); hRc=opt.get('hRc',hC+7); assert hR>58 and hR>gE+10
    post.setdefault(G(hR-1)+7,[]).extend([Ins("v_writelane_b32 v14, 0, 0"),Ins("s_lshr_b32 s80, s2, 6")])
    post.setdefault(G(hR)+7,[]).extend([Ins("s_lshl_b32 s80, s80, 4"),Ins(f"s_add_u32 s80, s80, s{sFR}")])
    if not opt.get('noR'): post.setdefault(G(hR+1)+7,[]).append(flag_store(0,'s80'))
    post.setdefault(G(hRc-6)+7,[]).append(Ins("v_min_u32 v62, 32, v62")); assert hRc-6>hC
    if not opt.get('noR'):
        post.setdefault(G(hRc-5)+7,[]).append(cx.poll_issue(62,57,sFR))
        pre[G(94 if NSEC==2 else 82)]+=cx.poll_check(62,57,sFR)
    hxl=opt.get('hxl',83); assert hxl>hlast
    XR=160; XU=224
    for k in range(3): post.setdefault(G(hxl)+VP[k],[]).append(Ins(f"buffer_load_dwordx4 v[{XR+4*k}:{XR+4*k+3}], v60, s[{sWg}:{sWg+3}], s{sFX} offen offset:{128*k}",'xl'))
    su+=["v_lshrrev_b32 v13, 3, v11","v_lshl_add_u32 v13, v10, 15, v13","v_lshl_add_u32 v11, v10, 15, v11","s_mov_b32 s38, 0x00003f80","s_mov_b32 s39, 0x3f800000",
         f"s_mov_b32 s40, {fhex(-LOG2E)}",f"s_mov_b32 s41, {fhex(-LOG2E)}",
         f"s_mov_b32 s84, {F_EPOCH}","s_cmp_eq_u32 s2, 0",f"s_cselect_b32 s84, s84, {OOB}","v_mov_b32 v12, s84"]
    SENT=opt.get('sent',1)
    if SENT:
        su+=[f"v_mov_b32 v{172+k}, -1" for k in range(4)]+[f"s_add_u32 s32, s{sPO}, 32768",f"s_add_u32 s33, s{sPO}, 36864"]
        for k,hh in enumerate(opt.get('hclr',(84,85,86,87))):
            assert hh>=hxl and hh>82
            post.setdefault(G(hh)+VP[1],[]).append(Ins(f"buffer_store_dwordx4 v[172:175], v58, s[{sWS}:{sWS+3}], s{32+k//2} offen offset:{1024*(k&1)} sc1",('pst',0)))
    s.streams.append((G(hlastW+1),G(hxl),glue_scc([Ins(x) for x in su])))
    for cp in range(6):
        ops=[]
        for t in range(2):
            a0=ACC+8*(2*cp)+4*t; a1=a0+8; d=PK+4*((2*cp+t)%4)
            ops+=[f"v_cvt_pk_bf16_f32 v{d}, v{a0}, v{a0+1}",f"v_cvt_pk_bf16_f32 v{d+2}, v{a1}, v{a1+1}",
                  f"v_cvt_pk_bf16_f32 v{d+1}, v{a0+2}, v{a0+3}",f"v_cvt_pk_bf16_f32 v{d+3}, v{a1+2}, v{a1+3}"]
        for t in range(2):
            d=PK+4*((2*cp+t)%4)
            ops+=[f"v_permlane16_swap_b32 v{d}, v{d+2}",f"v_permlane16_swap_b32 v{d+1}, v{d+3}",
                  f"buffer_store_dwordx4 v[{d}:{d+3}], v58, s[{sWS}:{sWS+3}], s{sPO} offen offset:{1024*t} {opt.get('pf','sc1')}",
                  f"ds_write_b128 v59, v[{d}:{d+3}] offset:{2048*cp+1024*t}"]
        if cp<5: ops.append(f"s_add_u32 s{sPO}, s{sPO}, {4096*(3 if cp&1 else 1)}")
        hd=6*(18-NSEC)+NSEC*(cp+1)
        s.streams.append((G(hd)+3, 99999, [Ins(o,('pst',cp//2)) for o in ops]))
    if NSEC==4:
        for k,hh in enumerate(opt.get('hpf',(99,107) if SENT else (99,))):
            pre[G(hh)]+=[WaitVM([('pst',k)])]; post.setdefault(G(hh)+VP[0],[]).append(flag_store(4*k,f"s{sFP}"))
    pS=cx.poll_issue(8,57,36); cS=cx.poll_check(8,57,36); pP=cx.poll_issue(56,3,sFQ); cP=cx.poll_check(56,3,sFQ)
    hp=opt.get('hpoll',104); polls=[pS,pP]
    if hp<108:
        post.setdefault(G(opt.get('hpollS',hp))+VP[0],[]).append(pS); post.setdefault(G(hp)+VP[2],[]).append(pP); polls=[]
    return XR,(polls,cS,cP)

def final(cx, XR, PL, opt):
    o=[]; W=f"s[{sWS}:{sWS+3}]"
    def I(t,tag=None):
        q=Prog(); q(t,tag); o.extend(q.l)
    o+=stamp('fin0')
    P=64; OWN=100; SR=112; A=128; SU=172; XU=196; E=224
    polls,cS,cP=PL; SENT=opt.get('sent',1)
    if not SENT: o.append(WaitVM([('pst',1)])); o.append(flag_store(4,f"s{sFP}"))
    o+=polls
    I("s_waitcnt lgkmcnt(0)\ns_barrier")
    for k in range(3): I(f"ds_read_b128 v[{OWN+4*k}:{OWN+4*k+3}], v9 offset:{4096*k}")
    for e in range(8): I(f"v_mov_b32 v{SU+16+e}, 0")
    I("v_add_u32 v4, 16384, v1\nv_add_u32 v5, 32768, v1")
    if not SENT: o.append(WaitVM([('pst',2)])); o.append(flag_store(8,f"s{sFP}"))
    o+=[cP[0]]+stamp('fin05')+cS[1:]
    for k in range(2): I(f"buffer_load_dwordx4 v[{SR+4*k}:{SR+4*k+3}], v11, {W}, s{sSO} offen sc1\ns_add_u32 s{sSO}, s{sSO}, 262144",'sl')
    I("s_cmp_ge_u32 s2, 128\ns_cbranch_scc1 Lfin_x")
    I(f"buffer_load_dwordx4 v[{SR+8}:{SR+11}], v11, {W}, s{sSO} offen sc1",'sl')
    I("s_branch Lfin_y\nLfin_x:")
    for e in range(8): I(f"buffer_load_short_d16_hi v{SU+16+e}, v13, {W}, s{sSX} offen sc1\ns_add_u32 s{sSX}, s{sSX}, 4096",'sl')
    I("Lfin_y:")
    def pl(k):
        for i in range(3):
            I(f"buffer_load_dwordx4 v[{P+12*k+4*i}:{P+12*k+4*i+3}], v{(1,4,5)[k]}, {W}, s{sPS[i]} offen sc1",('pl',k))
    def math(k):
        o.append(WaitVM([('pl',k)])); a=A+8*k
        for i in range(3):
            for d in range(4): I(f"v_dot2c_f32_bf16 v{a+2*d}, s38, v{P+12*k+4*i+d}\nv_dot2c_f32_bf16 v{a+2*d+1}, s39, v{P+12*k+4*i+d}")
        for d in range(4): I(f"v_pk_mul_f32 v[{E+2*d}:{E+2*d+1}], v[{a+2*d}:{a+2*d+1}], s[40:41]")
        for e in range(8): I(f"v_exp_f32 v{E+e}, v{E+e}")
        for d in range(4): I(f"v_pk_mul_f32 v[{a+2*d}:{a+2*d+1}], v[{a+2*d}:{a+2*d+1}], v[{SU+8*k+2*d}:{SU+8*k+2*d+1}]")
        for d in range(4): I(f"v_pk_add_f32 v[{E+2*d}:{E+2*d+1}], v[{E+2*d}:{E+2*d+1}], 1.0 op_sel_hi:[1,0]")
        for e in range(8): I(f"v_rcp_f32 v{E+e}, v{E+e}")
        for d in range(4): I(f"v_pk_fma_f32 v[{a+2*d}:{a+2*d+1}], v[{a+2*d}:{a+2*d+1}], v[{E+2*d}:{E+2*d+1}], v[{XU+8*k+2*d}:{XU+8*k+2*d+1}]")
        for d in range(4): I(f"v_cvt_pk_bf16_f32 v{XR+4*k+d}, v{a+2*d}, v{a+2*d+1}")
        I(f"buffer_store_dwordx4 v[{XR+4*k}:{XR+4*k+3}], v60, s[{sWu}:{sWu+3}], s{sFX} offen offset:{128*k} {opt.get('outf','')}",'out')
    def chk(k):
        b=P+12*k
        t=f"""v_max3_u32 v6, v{b}, v{b+1}, v{b+2}
    v_max3_u32 v7, v{b+3}, v{b+4}, v{b+5}
    v_max3_u32 v6, v6, v{b+6}, v{b+7}
    v_max3_u32 v7, v7, v{b+8}, v{b+9}
    v_max3_u32 v6, v6, v{b+10}, v{b+11}
    v_max_u32 v6, v6, v7
    v_cmp_eq_u32 vcc, -1, v6"""
        ld="\n    ".join(f"buffer_load_dwordx4 v[{b+4*i}:{b+4*i+3}], v{(1,4,5)[k]}, {W}, s{sPS[i]} offen sc1" for i in range(3))
        cx.ool.append(f"""
Lsent{k}:
    s_mov_b32 s85, 0
Lsent{k}_l:
    s_sleep {opt.get('sslp',1)}
    {ld}
    s_add_u32 s85, s85, 1
    s_cmp_gt_u32 s85, 0x8000
    s_waitcnt vmcnt(0)
    s_cbranch_scc1 Lsentb{k}
    {t}
    s_cbranch_vccnz Lsent{k}_l
    s_branch Lsentb{k}
""")
        o.append(WaitVM([('pl',k)])); I(t); I(f"s_cbranch_vccnz Lsent{k}\nLsentb{k}:")
    o+=cP[1:]; pl(0); o.append(cx.poll_issue(56,3,sFQ,4)); c1=cx.poll_check(56,3,sFQ,4)
    o.append(WaitVM(['xl']))
    for d in range(12): I(f"v_lshlrev_b32 v{XU+2*d}, 16, v{XR+d}\nv_and_b32 v{XU+2*d+1}, 0xffff0000, v{XR+d}")
    for d in range(12): I(f"v_lshlrev_b32 v{A+2*d}, 16, v{OWN+d}\nv_and_b32 v{A+2*d+1}, 0xffff0000, v{OWN+d}")
    o.append(WaitVM(['sl']))
    for d in range(8): I(f"v_lshlrev_b32 v{SU+2*d}, 16, v{SR+d}\nv_and_b32 v{SU+2*d+1}, 0xffff0000, v{SR+d}")
    I(f"s_cmp_ge_u32 s2, 128\ns_cbranch_scc1 Lfin_z")
    for d in range(8,12): I(f"v_lshlrev_b32 v{SU+2*d}, 16, v{SR+d}\nv_and_b32 v{SU+2*d+1}, 0xffff0000, v{SR+d}")
    I("Lfin_z:")
    if SENT:
        o+=c1; pl(1); pl(2); math(0); math(1); chk(2); o+=stamp('fin1'); math(2)
    else:
        o+=c1; pl(1); o.append(cx.poll_issue(56,3,sFQ,8)); c2=cx.poll_check(56,3,sFQ,8)
        math(0); o+=c2; o+=stamp('fin1'); pl(2); math(1); math(2)
    o.append(Ins(flag_store(0).text.replace("v14","v12"),'flag'))
    return o
```

```python
import sys, json
from pcommon import *
import pcommon, pp0, pg, pssm
NAME="recurrent_scan__ssm_conv_s4d__geglu_ffn__prompt_kernel"
def span(p,opt):
    if not opt.get('span'): return
    p('''
    s_waitcnt vmcnt(0)
    s_memrealtime s[90:91]
    s_waitcnt lgkmcnt(0)
    s_not_b32 s92, s86
    s_mov_b64 exec, 1
    v_mov_b32 v0, 0
    v_mov_b32 v1, s92
    v_mov_b32 v2, s90
    v_mov_b32 v3, s86
    global_atomic_umax v0, v1, s[88:89]
    global_atomic_umax v0, v2, s[88:89] offset:4
    global_atomic_umax v0, v3, s[88:89] offset:8
    ''')
def probe_pub(p,opt):
    if not opt.get('probe'): return
    p(f'''
    s_getreg_b32 s80, hwreg(HW_REG_XCC_ID, 0, 4)
    s_sub_u32 s80, s80, s2
    s_and_b32 s80, s80, 7
    v_mov_b32 v10, s80
    s_lshl_b32 s81, s2, 2
    s_add_u32 s81, s81, {WS_F+0x30000}
    v_mov_b32 v11, s81
    buffer_store_dword v10, v11, s[{sWS}:{sWS+3}], 0 offen sc1
    s_waitcnt vmcnt(0)
    ''')
def probe_chk(p,opt):
    if not opt.get('probe'): return
    p(f'''
    s_cmp_lg_u32 s2, 255
    s_cbranch_scc1 Lend
    s_mov_b32 s80, {WS_F+0x30000}
    v_lshrrev_b32 v1, 2, v1
    buffer_load_dword v2, v1, s[{sWS}:{sWS+3}], s80 offen sc1
    s_waitcnt vmcnt(0)
    v_readfirstlane_b32 s81, v2
    s_nop 1
    v_cmp_ne_u32 vcc, s81, v2
    s_cbranch_vccz Lend
    s_mov_b32 s80, 0
    Lprobe:
    s_sleep 64
    s_add_u32 s80, s80, 1
    s_cmp_lt_u32 s80, 60
    s_cbranch_scc1 Lprobe
    ''')
def amp(p,opt):
    if opt.get('amp') is None: return
    p(f'''
    s_cmp_lg_u32 s2, {opt['amp']}
    s_cbranch_scc1 Lend
    s_waitcnt vmcnt(0)
    s_memrealtime s[62:63]
    s_waitcnt lgkmcnt(0)
    s_sub_u32 s64, {'s62' if len(opt['map'])==1 else f's{ST0+2}'}, s{ST0}
    s_min_u32 s64, s64, 10000
    s_mul_i32 s64, s64, 10
    s_add_u32 s64, s64, s62
    Lamp:
    s_sleep 8
    s_memrealtime s[62:63]
    s_waitcnt lgkmcnt(0)
    s_sub_u32 s65, s62, s64
    s_cmp_lt_i32 s65, 0
    s_cbranch_scc1 Lamp
    ''')
def gen(opt):
    MODE['stamp']=opt.get('stamp'); MODE['map']=opt.get('map'); MODE['slp']=opt.get('slp',1)
    cx=Ctx(); B=pp0.B; pp0.LNR[0]=opt.get('lnr',0)
    p=Prog()
    p(f"s_cmp_ge_u32 s2, 256\ns_cbranch_scc1 Lend")
    p.ext(stamp('start'))
    if opt.get('span'): p(f"s_memrealtime s[86:87]\ns_load_dwordx2 s[88:89], s[0:1], {KA['dbg']}")
    p(f"""
    s_load_dwordx2 s[{sXP}:{sXP+1}], s[0:1], {KA['x']}
    s_load_dwordx8 s[60:67], s[0:1], {KA['logA']}
    s_load_dwordx2 s[68:69], s[0:1], {KA['logdt']}
    s_load_dwordx2 s[{sDP}:{sDP+1}], s[0:1], {KA['Dskip']}
    s_load_dwordx2 s[{sWS}:{sWS+1}], s[0:1], {KA['ws']}
    s_load_dwordx2 s[{sWg}:{sWg+1}], s[0:1], {KA['Wg']}
    s_load_dwordx2 s[{sS}:{sS+1}], s[0:1], {KA['Wu']}
    s_getpc_b64 s[82:83]
    Lpc:
    s_lshr_b32 s80, s2, 3
    s_mul_i32 s80, s80, CODE_LINES*128
    v_lshl_add_u32 v13, v0, 7, s80
    v_cmp_gt_u32 vcc, {'CODE_LINES' if opt.get('ctouch',1) else 0}, v0
    v_lshrrev_b32 v1, 6, v0
    s_and_saveexec_b64 s[80:81], vcc
    s_cbranch_execz Lnotouch
    global_load_dword v63, v13, s[82:83] {opt.get('cnt','')}
    Lnotouch:
    s_mov_b64 exec, -1
    v_readfirstlane_b32 s3, v1
    v_and_b32 v0, 63, v0
    v_mov_b32 v{B}, v0
    s_cmp_eq_u32 s3, 3
    s_cbranch_scc1 Lw3
    """)
    pp0.kgen_addr(p)
    p("s_waitcnt lgkmcnt(0)"); pp0.kgen_loads(p,opt)
    p("s_branch Lcommon\nLw3:")
    pp0.ln_issue(p)
    p(f"s_mov_b32 s84, {OOB}\ns_mov_b32 s{sKO}, 0\ns_waitcnt lgkmcnt(0)"); pp0.ln_loads(p,opt)
    p(f"""
    Lcommon:
    s_add_u32 s80, s{sWS}, {F_EPOCH}
    s_addc_u32 s81, s{sWS+1}, 0
    s_load_dword s{sTAG}, s[80:81], 0
    s_load_dwordx2 s[{sWd}:{sWd+1}], s[0:1], {KA['Wd']}
    s_load_dwordx2 s[{sOP}:{sOP+1}], s[0:1], {KA['out']}
    s_mov_b32 s{sWg+2}, {WB}
    s_mov_b32 s{sWg+3}, 0x20000
    s_sub_u32 s{sWu}, s{sS}, 1024
    s_subb_u32 s{sWu+1}, s{sS+1}, 0
    s_mov_b32 s{sWu+2}, {WB+1024}
    s_mov_b32 s{sWu+3}, 0x20000
    """)
    pg.setup_min(p)
    pp0.cold_addr(p)
    early=opt.get('early',0); cold=pp0.cold_part(opt)
    if early: p.ext(cold); cold=[]
    p(f"s_mov_b32 s{sWS+2}, {WSZ}\ns_mov_b32 s{sWS+3}, 0x20000")
    pg.setup_min2(p)
    p(f"""
    s_cmp_lg_u32 s3, 3
    s_cbranch_scc1 Lkg
    """)
    pp0.service_addr(p)
    pp0.ln_compute(p,6*early,cold)
    p.ext(stamp('ln'))
    pp0.service(p,opt)
    p.ext(stamp('svc'))
    p(f"s_sub_u32 s80, s31, {3*128}")
    p.ext(resolve_waits([cx.poll_issue(13,12,80)]+cx.poll_check(13,12,80)))
    g0=pg.G1(opt,cx)
    mid=stamp('join')+[Ins('s_barrier')]+stamp('flag')+g0.x0
    p("s_branch Lmid\nLkg:\ns_cmp_ge_u32 s2, 192\ns_cbranch_scc1 Lnok")
    pp0.kgen(p,6*early,cold,opt.get('kmid',56),mid)
    p("s_waitcnt vmcnt(4)\ns_branch Ljoin\nLnok:\ns_waitcnt vmcnt(0)"); p.ext(cold); p("s_waitcnt vmcnt(0)")
    p.ext(stamp('ln')+stamp('lnf')+stamp('svc'))
    p("Lmid:"); p.ext(mid); p("s_waitcnt vmcnt(0)\nLjoin:")
    errs=[]
    head_=stamp('kend')+g0.pro+[Ins('s_barrier')]
    import copy
    C=8*144
    def sub(g,i0,i1,f):
        sh=lambda d:{k-i0:v for k,v in d.items() if i0<=k<i1}
        return f(g.mf[i0:i1],sh(g.pre),sh(g.post),[(a-i0,e-i0,o) for a,e,o in g.streams if i0<=a<i1])
    def clone(g):
        h=copy.copy(g); h.mf=list(g.mf); h.streams=list(g.streams)
        h.pre={k:list(v) for k,v in g.pre.items()}; h.post={k:list(v) for k,v in g.post.items()}; return h
    pref=head_+sub(g0,0,C,fill)
    gA=clone(g0); XR,NSEC=pg.add_g2(gA,cx)
    A=auto_nop(resolve_waits(auto_lgkm2(pref+sub(gA,C,1<<20,fill)+pg.final(cx,XR,NSEC,opt))))
    gB=clone(g0); tail=pssm.add_ssm(gB,cx)
    Bs=auto_nop(resolve_waits(auto_lgkm2(pref+sub(gB,C,1<<20,fill2)+tail)))
    if opt.get('exp'):
        k=0; o=[]
        for x in A:
            if x.kind=='mfma': k+=1
            inr = 8*(162+46)<k<=8*(162+70)
            if inr and 'novm' in opt['exp'] and x.kind in('vm_load','vm_dma') and x.tag and x.tag[0] in('w2','h2'): continue
            if inr and 'now' in opt['exp'] and x.kind=='vm_dma': continue
            if inr and 'noh' in opt['exp'] and x.kind=='vm_load' and x.tag and x.tag[0]=='h2': continue
            if inr and 'nobar' in opt['exp'] and x.kind=='barrier': continue
            if inr and 'nords' in opt['exp'] and x.kind=='ds_read': continue
            o.append(x)
        A=o
    def cut(l):
        k=0
        for i,x in enumerate(l):
            if x.kind=='mfma':
                if k==8*144: return i
                k+=1
    ca,cb=cut(A),cut(Bs)
    assert [x.text for x in A[:ca]]==[x.text for x in Bs[:cb]], "prefix differs"
    print("gaps common",gapstats(A[:ca]),"\n g2role",gapstats(A[ca:]),"\n ssmrole",gapstats(Bs[cb:]))
    p.ext(A[:ca]); p("s_cmp_ge_u32 s2, 192\ns_cbranch_scc1 Lrole_ssm")
    p.ext(A[ca:])
    amp(p,opt)
    if opt.get('amp') is not None: MODE['stamp']=None
    if MODE['stamp']: p("s_waitcnt vmcnt(0)");
    stamp_flush(p,0)
    if MODE['stamp']:
        p(f"{'s_memrealtime' if MODE['stamp']=='rt' else 's_memtime'} s[62:63]\ns_waitcnt lgkmcnt(0)\nv_mov_b32 v1, s62\nbuffer_store_dword v1, v0, s[{sWS}:{sWS+3}], s60 offen offset:32")
    span(p,opt)
    p("s_endpgm\nLrole_ssm:")
    p.ext(Bs[cb:])
    stamp_flush(p,1)
    if MODE['stamp']:
        p(f"{'s_memrealtime' if MODE['stamp']=='rt' else 's_memtime'} s[62:63]\ns_waitcnt lgkmcnt(0)\nv_mov_b32 v1, s62\nbuffer_store_dword v1, v0, s[{sWS}:{sWS+3}], s60 offen offset:32")
    span(p,opt); probe_chk(p,opt)
    p("Lend:\ns_endpgm")
    for nm,tk in (('g2/kg',('Lkg','Lnotouch')),('g2/kg0',('Lkg','Lfin_x','Lfin_z')),('g2/w3',('Lw3','Lnotouch')),('ssm/nok',('Lkg','Lnok','Lrole_ssm','Lnotouch')),('ssm/w3',('Lw3','Lrole_ssm','Lnotouch'))):
        errs+=check(follow(p.l,tk),nm)
    for e in errs[:5]: print("HAZARD:",e)
    if errs and not opt.get('exp'): raise SystemExit("refusing to write a build with hazards")
    txt=head(NAME)+p.text()+"".join(cx.ool)+"Lcode_end:\n"
    return txt
def build_file(path,opt):
    from build import HEADER
    import subprocess
    import os
    if os.path.exists(path): os.remove(path)
    txt=gen(opt)
    pre=HEADER+"; @launch grid=(256,1,1) block=(256,1,1) lds=163840\n"+'.amdgcn_target "amdgcn-amd-amdhsa--gfx950"\n'
    open('sz.s','w').write(pre+txt.replace("CODE_LINES*128","2560").replace("CODE_LINES","20")+kd(NAME,512,256))
    subprocess.run(["clang","-x","assembler","-target","amdgcn-amd-amdhsa","-mcpu=gfx950","-c","sz.s","-o","sz.o"],check=True)
    sym=subprocess.run(["llvm-readelf","-s","sz.o"],capture_output=True,text=True).stdout
    ad={l.split()[-1]:int(l.split()[1],16) for l in sym.split('\n') if l.strip().endswith(('Lpc','Lcode_end'))}
    size=ad['Lcode_end']-ad['Lpc']; n=size//128//32
    print("code bytes",size,"lines/wg",n)
    src=pre+txt.replace("CODE_LINES*128",str(n*128)).replace("CODE_LINES",str(n)).replace("Lcode_end:\n","")+kd(NAME,512,256)
    open(path,'w').write(src)
    import mbh
    co=mbh.build(path,NAME,14,lists=True)
    print("srdcheck:",mbh.cl.address_register_problem(co,NAME),"size",len(src))
if __name__=="__main__":
    build_file(sys.argv[1], json.loads(sys.argv[2]) if len(sys.argv)>2 else {})
```
